```python
import torch

def _softmax(x, axis=-1):
    return torch.softmax(x, dim=axis)
def _gelu(x):
    return torch.nn.functional.gelu(x, approximate="tanh")
def _silu(x):
    return torch.nn.functional.silu(x)
def _sigmoid(x):
    return torch.sigmoid(x)
def _layernorm(x, axis=-1, eps=1e-5):
    m = x.mean(dim=axis, keepdim=True)
    v = x.var(dim=axis, keepdim=True, unbiased=False)
    return (x - m) / torch.sqrt(v + eps)
def _scatter_add(tgt, idx, src, axis=0):
    return tgt.clone().index_add_(axis, idx, src)
def _segment_sum(src, seg, n):
    out = torch.zeros((n,) + src.shape[1:], dtype=src.dtype)
    return out.index_add_(0, seg, src)
def _pad(x, pw):
    flat = tuple(v for pair in reversed(pw) for v in pair)
    return torch.nn.functional.pad(x, flat)

kernel_name = 'sequential_preLN__spectral_gfnet__geglu_ffn__prompt'

def setup_inputs():

    _w = (lambda a: (lambda t: t.to(torch.bfloat16) if t.is_floating_point() else t)(torch.as_tensor(a)))
    def _A_setup():
        B, S, D = 1, 2048, 576
        Df = D // 2 + 1
        return {
            "x": _w((lambda *s: torch.randn(*s, dtype=torch.bfloat16) * 0.05)(B, S, D)),
            "w_r": _w((lambda *s: torch.randn(*s, dtype=torch.bfloat16) * 0.4)(S, Df) * 0.02),
            "w_i": _w((lambda *s: torch.randn(*s, dtype=torch.bfloat16) * 0.4)(S, Df) * 0.02),
        }
    _A_in = _A_setup()

    def _B_setup():
        B, S, D, F = 1, 2048, 576, 4608
        return {
            "x": _w((lambda *s: torch.randn(*s, dtype=torch.bfloat16) * 0.05)(B, S, D)),
            "w_gate": _w((lambda *s: torch.randn(*s, dtype=torch.bfloat16) * 0.05)(D, F)),
            "w_up": _w((lambda *s: torch.randn(*s, dtype=torch.bfloat16) * 0.05)(D, F)),
            "w_down": _w((lambda *s: torch.randn(*s, dtype=torch.bfloat16) * 0.05)(F, D)),
        }
    _B_in = _B_setup()

    return {
        "A_x": _A_in["x"],
        "A_w_r": _A_in["w_r"],
        "A_w_i": _A_in["w_i"],
        "B_x": _B_in["x"],
        "B_w_gate": _B_in["w_gate"],
        "B_w_up": _B_in["w_up"],
        "B_w_down": _B_in["w_down"],
    }

def reference(A_x, A_w_r, A_w_i, B_x, B_w_gate, B_w_up, B_w_down):
    def _A_ref(x, w_r, w_i):
        B, S, D = x.shape
        X = (lambda x, axes=(-2,-1): torch.fft.rfft2(x.float(), dim=axes))(x, axes=(-2, -1))
        W = w_r + 1j * w_i
        X = X * W
        y = (lambda x, s, axes=(-2,-1): torch.fft.irfft2(x, s=s, dim=axes).to(torch.bfloat16))(X, (S, D), axes=(-2, -1))
        return y

    def _B_ref(x, w_gate, w_up, w_down):
        return (_gelu(x @ w_gate) * (x @ w_up)) @ w_down

    x = A_x
    h = x + _A_ref(_layernorm(x, axis=-1), A_w_r, A_w_i)
    h2 = h + _B_ref(_layernorm(h, axis=-1), B_w_gate, B_w_up, B_w_down)
    return h2
```

```python
import struct
def f2u(x): return struct.unpack('<I', struct.pack('<f', x))[0]
def hexf(x): return '0x%08x' % f2u(x)

class Asm:
    def __init__(self):
        self.L = []
        self.vm = []
        self.lg = []
    def __call__(self, s):
        for line in s.split('\n'):
            line = line.strip()
            if line: self.L.append('  ' + line if not line.endswith(':') else line)
    def raw(self, s): self.L.append(s)
    def vmem(self, s, tag=None):
        self(s); self.vm.append(tag)
    def lds(self, s, tag=None):
        self(s); self.lg.append(tag)
    def _need(self, q, tags):
        idx = -1
        for t in tags:
            for i in range(len(q)-1, -1, -1):
                if q[i] == t:
                    idx = max(idx, i); break
        return idx
    def wait(self, vm=(), lg=()):
        if not isinstance(vm, (list, tuple)): vm = [vm]
        if not isinstance(lg, (list, tuple)): lg = [lg]
        parts = []
        i = self._need(self.vm, vm)
        if i >= 0:
            n = len(self.vm) - 1 - i
            n = min(n, 63)
            parts.append(f'vmcnt({n})'); self.vm = self.vm[len(self.vm)-n:] if n else []
        i = self._need(self.lg, lg)
        if i >= 0:
            n = len(self.lg) - 1 - i
            n = min(n, 15)
            parts.append(f'lgkmcnt({n})'); self.lg = self.lg[len(self.lg)-n:] if n else []
        if parts: self('s_waitcnt ' + ' '.join(parts))
    def done(self, tag): return tag not in self.vm
    def waitall(self, vm=True, lg=True):
        parts = []
        if vm: parts.append('vmcnt(0)'); self.vm = []
        if lg: parts.append('lgkmcnt(0)'); self.lg = []
        self('s_waitcnt ' + ' '.join(parts))
    def text(self): return '\n'.join(self.L) + '\n'

def vr(b, n=4, p='v'): return f'{p}[{b}:{b+n-1}]' if n > 1 else f'{p}{b}'

def kernel_header(name):
    return f'.globl {name}\n.p2align 8\n.type {name},@function\n{name}:\n'
def kernel_desc(name, vgpr, agpr=0, sgpr=100):
    acc = (vgpr + 3)//4*4
    nfv = acc + agpr if agpr else vgpr
    return (f'.p2align 6\n.amdhsa_kernel {name}\n  .amdhsa_next_free_vgpr {nfv}\n  .amdhsa_next_free_sgpr {sgpr}\n'
            f'  .amdhsa_accum_offset {acc}\n  .amdhsa_group_segment_fixed_size 0\n  .amdhsa_kernarg_size 80\n'
            f'  .amdhsa_user_sgpr_count 2\n  .amdhsa_user_sgpr_kernarg_segment_ptr 1\n  .amdhsa_system_sgpr_workgroup_id_x 1\n.end_amdhsa_kernel\n')
```

```python
from asmlib import *
from layout import *
from k4 import stamp, diag_end
from k123 import srd

def gen_k0(name='k0_kernel', diag=False):
    a = Asm()
    a.raw(kernel_header(name))
    NGU, ND, NG = 864, 576, 81
    a(f'''s_load_dwordx4 s[4:7], s[0:1], 32
    s_load_dwordx2 s[20:21], s[0:1], 48
    s_load_dwordx2 s[22:23], s[0:1], 72
    v_lshrrev_b32 v8, 6, v0
    v_and_b32 v9, 63, v0
    v_readfirstlane_b32 s16, v8
    v_lshlrev_b32 v1, 4, v9
    s_lshl_b32 s17, s2, 2
    s_add_u32 s17, s17, s16
    s_mul_i32 s30, s16, 12288
    v_lshrrev_b32 v2, 4, v9
    v_bfe_u32 v3, v9, 2, 2
    v_lshl_add_u32 v2, v2, 3, v3
    v_and_b32 v3, 3, v9
    s_waitcnt lgkmcnt(0)''')
    srd(a, 12, 22, WS_SIZE)
    a(f'''s_cmp_ge_u32 s17, {NGU}
    s_cbranch_scc1 L_{name}_d''')
    a(f'''s_and_b32 s18, s17, 1
    s_lshr_b32 s19, s17, 1
    s_mul_i32 s24, s19, 43691
    s_lshr_b32 s24, s24, 18
    s_mul_i32 s25, s24, 6
    s_sub_u32 s25, s19, s25
    s_cmp_eq_u32 s18, 0
    s_cselect_b32 s8, s4, s6
    s_cselect_b32 s9, s5, s7
    s_mov_b32 s10, {576*9216}
    s_mov_b32 s11, 0x20000
    s_mul_i32 s26, s25, {96*9216}
    s_lshl_b32 s27, s24, 7
    s_add_u32 s26, s26, s27
    v_lshrrev_b32 v4, 3, v9
    v_mul_u32_u24 v4, 9216, v4
    v_and_b32 v5, 7, v9
    v_lshl_add_u32 v4, v5, 4, v4''')
    for i in range(12):
        a(f's_add_u32 s27, s30, {i*1024}\ns_mov_b32 m0, s27\ns_add_u32 s28, s26, {i*8*9216}')
        a.vmem(f'buffer_load_dwordx4 v4, s[8:11], s28 offen lds', ('d', i))
    a(f'''s_mul_i32 s19, s24, 57
    s_lshr_b32 s19, s19, 9
    s_mul_i32 s27, s19, 9
    s_sub_u32 s27, s24, s27
    s_mul_i32 s27, s27, 36
    s_mul_i32 s28, s25, 6
    s_add_u32 s27, s27, s28
    s_mul_i32 s28, s18, 3
    s_add_u32 s27, s27, s28
    s_lshl_b32 s27, s27, 10
    s_mul_i32 s19, s19, {4*WSTREAM}
    s_add_u32 s27, s27, s19
    s_add_u32 s27, s27, {WS_W}
    v_lshlrev_b32 v5, 7, v2
    v_lshl_add_u32 v5, v3, 3, v5
    v_add_u32 v5, s30, v5''')
    for sl in range(3):
        a.wait(vm=[('d', 4*sl+3)])
        for w in range(4):
            r = 16 + 16*sl + 4*w
            for hf in range(2):
                a.lds(f'ds_read_b64_tr_b16 {vr(r+2*hf,2)}, v5 offset:{sl*4096+hf*512+32*w}', ('r', sl, w))
        for w in range(4):
            r = 16 + 16*sl + 4*w
            a.wait(lg=[('r', sl, w)])
            a(f's_add_u32 s28, s27, {w*WSTREAM}')
            a.vmem(f'buffer_store_dwordx4 {vr(r)}, v1, s[12:15], s28 offen offset:{sl*1024}', 'st')
    a('s_endpgm')
    a.vm = []; a.lg = []
    a(f'''L_{name}_d:
    s_cmp_ge_u32 s17, {NGU+ND}
    s_cbranch_scc1 L_{name}_g''')
    srd(a, 8, 20, 4608*1152)
    a(f'''s_sub_u32 s17, s17, {NGU}
    s_and_b32 s18, s17, 3
    s_lshr_b32 s19, s17, 2
    s_mul_i32 s24, s19, 3641
    s_lshr_b32 s24, s24, 16
    s_mul_i32 s25, s24, 18
    s_sub_u32 s25, s19, s25
    s_mul_i32 s26, s19, {32*1152}
    s_lshr_b32 s27, s18, 1
    s_mul_i32 s27, s27, 576
    s_add_u32 s26, s26, s27
    s_add_u32 s29, s26, 256
    s_and_b32 s31, s18, 1
    s_mul_i32 s27, s31, 320
    s_add_u32 s26, s26, s27
    v_lshrrev_b32 v4, 4, v9
    v_mul_u32_u24 v4, 1152, v4
    v_and_b32 v5, 15, v9
    v_lshl_add_u32 v4, v5, 4, v4
    v_lshrrev_b32 v6, 2, v9
    v_mul_u32_u24 v6, 1152, v6
    v_lshl_add_u32 v6, v3, 4, v6''')
    for i in range(8):
        a(f's_add_u32 s27, s30, {i*1024}\ns_mov_b32 m0, s27\ns_add_u32 s28, s26, {i*4*1152}')
        a.vmem(f'buffer_load_dwordx4 v4, s[8:11], s28 offen lds', 'd')
    for i in range(2):
        a(f's_add_u32 s27, s30, {8192+i*1024}\ns_mov_b32 m0, s27\ns_add_u32 s28, s29, {i*16*1152}')
        a.vmem(f'buffer_load_dwordx4 v6, s[8:11], s28 offen lds', 'd')
    a(f'''s_lshl_b32 s27, s24, 2
    s_add_u32 s27, s27, s18
    s_mul_i32 s27, s27, {WSTREAM}
    s_add_u32 s27, s27, {WS_W + 324*1024}
    s_lshl_b32 s28, s25, 10
    s_add_u32 s27, s27, s28
    s_cmp_lt_u32 s25, 16
    s_cselect_b32 s32, 0, {16*1024}
    s_cselect_b32 s33, 16, 18
    s_lshl_b32 s33, s33, 10
    v_lshlrev_b32 v5, 8, v2
    v_lshl_add_u32 v5, v3, 4, v5
    v_add_u32 v5, s30, v5
    v_lshlrev_b32 v7, 6, v2
    v_lshl_add_u32 v7, v3, 4, v7
    s_lshl_b32 s31, s31, 3
    s_add_u32 s31, s31, s30
    v_add_u32 v7, s31, v7''')
    a.wait(vm='d')
    for tl in range(9):
        r = 16 + 4*tl
        for hf in range(2):
            if tl < 8: a.lds(f'ds_read_b64_tr_b16 {vr(r+2*hf,2)}, v5 offset:{hf*1024+64*(tl>>1)+8*(tl&1)}', ('r', tl))
            else: a.lds(f'ds_read_b64_tr_b16 {vr(r+2*hf,2)}, v7 offset:{8192+hf*256}', ('r', tl))
    for tl in range(9):
        r = 16 + 4*tl
        a.wait(lg=[('r', tl)])
        if tl < 2: a(f's_add_u32 s28, s27, s{32+tl}')
        else: a(f's_add_u32 s28, s27, {18*tl*1024}')
        a.vmem(f'buffer_store_dwordx4 {vr(r)}, v1, s[12:15], s28 offen', 'st')
    a('s_endpgm')
    a.vm = []; a.lg = []
    a(f'''L_{name}_g:
    s_cmp_ge_u32 s17, {NGU+ND+NG}
    s_cbranch_scc1 L_{name}_end''')
    a(f'''s_sub_u32 s17, s17, {NGU+ND}
    s_mul_i32 s24, s17, 57
    s_lshr_b32 s24, s24, 9
    s_mul_i32 s25, s24, 9
    s_sub_u32 s25, s17, s25
    v_and_b32 v4, 3, v9
    v_bfe_u32 v5, v9, 2, 1
    v_lshl_add_u32 v4, v5, 4, v4
    v_bfe_u32 v5, v9, 3, 2
    v_lshl_add_u32 v4, v5, 2, v4
    s_lshl_b32 s26, s24, 5
    v_add_u32 v4, s26, v4
    v_lshrrev_b32 v5, 5, v9
    v_lshlrev_b32 v5, 3, v5
    s_lshl_b32 s26, s25, 5
    s_add_u32 s26, s26, 1
    v_add_u32 v5, s26, v5
    s_lshl_b32 s27, s17, 12
    s_add_u32 s27, s27, {WS_GT}
    s_mov_b32 s28, 288''')
    for j in range(4):
        for i in range(4):
            a(f'''v_add_u32 v6, {16*(j>>1)+(j&1)+2*i}, v5
            v_mul_u32_u24 v7, v6, v4
            v_cvt_f32_u32 v7, v7
            v_mul_f32 v7, {hexf(1.0/576)}, v7
            v_fract_f32 v7, v7
            v_cos_f32 v10, v7
            v_sin_f32 v11, v7''')
            if j == 3 and i == 3:
                a(f'''v_cmp_eq_u32 vcc, s28, v6
                v_mov_b32 v12, 2.0
                s_nop 0
                v_cndmask_b32 v12, v12, 1.0, vcc
                v_mul_f32 v10, v10, v12
                v_mul_f32 v11, v11, v12''')
            else:
                a('v_add_f32 v10, v10, v10\nv_add_f32 v11, v11, v11')
            a(f'v_cvt_pk_bf16_f32 v{16+4*j+i}, v10, -v11')
        a.vmem(f'buffer_store_dwordx4 {vr(16+4*j)}, v1, s[12:15], s27 offen offset:{j*1024}', 'st')
    a(f'L_{name}_end:\ns_endpgm')
    nwg = -(-(NGU+ND+NG)//4)
    return a.text(), kernel_desc(name, 64, 0), f'; @launch kernel={name} grid=({nwg},1,1) block=(256,1,1) lds=49152'

def gen_k5(name='k5_kernel', diag=False):
    a = Asm()
    a.raw(kernel_header(name))
    a(f's_cmp_ge_u32 s2, 576\ns_cbranch_scc1 L_{name}_end')
    stamp(a, 0, diag)
    if diag: a('s_memrealtime s[80:81]')
    a(f'''s_load_dwordx2 s[4:5], s[0:1], 56
    s_load_dwordx2 s[6:7], s[0:1], 72
    v_lshrrev_b32 v8, 6, v0
    v_and_b32 v9, 63, v0
    v_readfirstlane_b32 s16, v8
    v_and_b32 v1, 7, v9
    v_lshrrev_b32 v2, 3, v9
    s_lshl_b32 s17, s2, 2
    s_add_u32 s17, s17, s16
    s_and_b32 s18, s17, 7
    s_lshr_b32 s19, s17, 3
    s_mul_i32 s20, s19, 7282
    s_lshr_b32 s20, s20, 16
    s_mul_i32 s21, s20, 9
    s_sub_u32 s21, s19, s21
    v_lshlrev_b32 v3, 10, v2
    v_lshl_add_u32 v3, v1, 4, v3
    s_lshl_b32 s22, s19, 13
    s_lshl_b32 s23, s18, 7
    s_add_u32 s22, s22, s23
    s_waitcnt lgkmcnt(0)''')
    srd(a, 8, 4, NB); srd(a, 12, 6, WS_SIZE)
    for p in range(8):
        a(f's_add_u32 s23, s22, {WS_P + p*NB}')
        a.vmem(f'buffer_load_dwordx4 {vr(16+4*p)}, v3, s[12:15], s23 offen', ('p', p))
    a(f's_add_u32 s23, s22, {WS_HC}')
    a.vmem(f'buffer_load_dwordx4 {vr(48)}, v3, s[12:15], s23 offen', ('p', 8))
    a(f'''s_lshl_b32 s24, s20, 8
    s_lshl_b32 s23, s18, 5
    s_add_u32 s24, s24, s23
    s_add_u32 s24, s24, {WS_MU}
    v_lshlrev_b32 v4, 2, v1''')
    a.vmem(f'buffer_load_dword v5, v4, s[12:15], s24 offen', 'mu')
    a(f'''s_mov_b32 s23, 73728
    v_mul_lo_u32 v6, v1, s23
    v_lshl_add_u32 v6, v2, 4, v6
    s_and_b32 s23, s18, 3
    s_mul_i32 s25, s23, {8*73728}
    s_lshl_b32 s23, s20, 1
    s_lshr_b32 s24, s18, 2
    s_add_u32 s23, s23, s24
    s_mul_i32 s23, s23, 1152
    s_add_u32 s25, s25, s23
    s_lshl_b32 s23, s21, 7
    s_add_u32 s25, s25, s23''')
    for p in range(9):
        a.wait(vm=[('p', p)])
        for i in range(4):
            x = 16 + 4*p + i
            if p == 0:
                a(f'v_lshlrev_b32 v{52+2*i}, 16, v{x}\nv_and_b32 v{53+2*i}, 0xffff0000, v{x}')
            else:
                a(f'v_lshlrev_b32 v10, 16, v{x}\nv_and_b32 v11, 0xffff0000, v{x}\nv_add_f32 v{52+2*i}, v{52+2*i}, v10\nv_add_f32 v{53+2*i}, v{53+2*i}, v11')
    a.wait(vm='mu')
    for i in range(8): a(f'v_add_f32 v{52+i}, v{52+i}, v5')
    for i in range(4): a(f'v_cvt_pk_bf16_f32 v{12+i}, v{52+2*i}, v{53+2*i}')
    a.vmem(f'buffer_store_dwordx4 {vr(12)}, v6, s[8:11], s25 offen', 'st')
    if diag: diag_end(a, 's[12:15]', 1, 16, WS_DBG + 0x40000)
    a(f'L_{name}_end:\ns_endpgm')
    return a.text(), kernel_desc(name, 64, 0), f'; @launch kernel={name} grid=(576,1,1) block=(256,1,1) lds=0'
```

```python
from asmlib import *
from layout import *
from k4 import stamp, diag_end
import math

def srd(a, d, lo, size):
    a(f's_mov_b32 s{d}, s{lo}\ns_mov_b32 s{d+1}, s{lo+1}\ns_mov_b32 s{d+2}, {size}\ns_mov_b32 s{d+3}, 0x20000')

def spread(a, mf, fillers, lo=0, hi=None):
    n = len(mf)
    if hi is None: hi = n
    span = max(hi - lo, 1); done = 0
    for i, m in enumerate(mf):
        m()
        if i >= lo:
            want = min(len(fillers), -(-len(fillers)*(i-lo+1)//span))
            while done < want:
                fillers[done](); done += 1
    while done < len(fillers):
        fillers[done](); done += 1

def div3(a, q, r, src):
    a(f's_mul_i32 s{q}, s{src}, 43\ns_lshr_b32 s{q}, s{q}, 7\ns_mul_i32 s{r}, s{q}, 3\ns_sub_u32 s{r}, s{src}, s{r}')

def gen_k1(name='k1_kernel', diag=False):
    a = Asm()
    a.raw(kernel_header(name))
    a(f's_cmp_ge_u32 s2, 192\ns_cbranch_scc1 L_{name}_end')
    stamp(a, 0, diag)
    if diag: a('s_memrealtime s[80:81]')
    XV = 16
    TB = 64
    ACC = [136, 168]
    XB = 200
    TW = 216
    ST = 222
    TMP = 230
    NV = 246
    def xreg(t, s): return vr(XV + 12*t + 4*s) if s < 3 else vr(24*t + 4*(s-3), 4, 'a')
    a(f'''s_load_dwordx2 s[4:5], s[0:1], 0
    s_load_dwordx2 s[6:7], s[0:1], 72
    v_lshrrev_b32 v8, 6, v0
    v_and_b32 v9, 63, v0
    v_readfirstlane_b32 s16, v8
    s_and_b32 s23, s2, 7
    s_lshr_b32 s24, s2, 3''')
    div3(a, 17, 18, 24)
    a(f'''s_lshl_b32 s23, s23, 3
    s_add_u32 s17, s17, s23
    s_mul_i32 s19, s18, 3
    s_add_u32 s19, s19, s16
    v_and_b32 v1, 31, v9
    v_lshrrev_b32 v2, 5, v9
    v_lshrrev_b32 v3, 2, v1
    s_mov_b32 s23, 73728
    v_mul_lo_u32 v4, v3, s23
    v_and_b32 v5, 3, v9
    v_lshl_add_u32 v4, v5, 4, v4
    v_lshl_add_u32 v4, v2, 6, v4
    s_mul_i32 s20, s17, 1152''')
    for g in range(3):
        a(f'''s_add_u32 s23, s16, {g}
        s_cmp_ge_u32 s23, 3
        s_cselect_b32 s24, 3, 0
        s_sub_u32 s{28+g}, s23, s24
        s_mul_i32 s23, s{28+g}, 384
        s_add_u32 s{25+g}, s20, s23''')
    a('s_waitcnt lgkmcnt(0)')
    srd(a, 8, 4, NB); srd(a, 12, 6, WS_SIZE)
    def xload(t, s):
        if s % 3 == 0: a(f's_add_u32 s23, s{25+s//3}, {t*8*73728}')
        a.vmem(f'buffer_load_dwordx4 {xreg(t,s)}, v4, s[8:11], s23 offen offset:{128*(s%3)}', ('x', t, s))
    for t in range(4):
        for s in range(3): xload(t, s)
    rest = [(t, g) for t in range(4) for g in (1, 2)]
    a(f'''s_lshl_b32 s23, s19, 5
    s_add_u32 s23, s23, 1
    v_add_u32 v6, s23, v1
    v_cvt_f32_u32 v6, v6
    v_mul_f32 v7, {hexf(1.0/576)}, v6
    v_mul_f32 v10, {hexf(1.0/18)}, v6
    v_cvt_f32_u32 v11, v2''')
    for s in range(9):
        a(f'''s_mul_i32 s23, s{28+s//3}, 6
        s_add_u32 s23, s23, {2*(s%3)}
        v_cvt_f32_u32 v12, s23
        v_add_f32 v12, v12, v11
        v_mul_f32 v12, v12, v10
        v_fract_f32 v12, v12''')
        for e in range(0, 8, 2):
            c = TMP + 4*((e//2) & 1)
            a(f'''v_add_f32 v13, v12, v7
            v_cos_f32 v{c}, v12
            v_sin_f32 v{c+2}, v12
            v_cos_f32 v{c+1}, v13
            v_sin_f32 v{c+3}, v13
            v_add_f32 v12, v13, v7
            v_cvt_pk_bf16_f32 v{TB+8*s+e//2}, v{c}, v{c+1}
            v_cvt_pk_bf16_f32 v{TB+8*s+4+e//2}, -v{c+2}, -v{c+3}''')
        if s < 8:
            t, g = rest[s]
            for q in range(3): xload(t, 3*g+q)
    a(f'v_mul_f32 v12, {hexf(1.0/72)}, v6\nv_add_f32 v13, v12, v12\nv_add_f32 v14, v13, v12')
    for c in range(3):
        a(f'v_cos_f32 v{TW+2*c}, v{12+c}\nv_sin_f32 v{TW+2*c+1}, -v{12+c}')
    stamp(a, 1, diag)
    a(f'v_mov_b32 v15, 0x3f803f80')
    for i in range(8): a(f'v_mov_b32 v{ST+i}, 0')
    for t in range(4):
        a.wait(vm=[('x', t, 2)])
        for i in range(12):
            x = XV + 12*t + i
            a(f'v_dot2c_f32_bf16 v{ST+2*t}, v{x}, v15\nv_dot2c_f32_bf16 v{ST+2*t+1}, v{x}, v{x}')
    a('s_nop 2')
    for perm in ('[1,0,3,2]', '[2,3,0,1]'):
        for i in range(8): a(f'v_add_f32_dpp v{ST+i}, v{ST+i}, v{ST+i} quad_perm:{perm} row_mask:0xf bank_mask:0xf')
    a(f'''s_lshl_b32 s23, s16, 9
    v_lshlrev_b32 v12, 8, v2
    v_lshl_add_u32 v12, v3, 3, v12
    v_add_u32 v12, s23, v12''')
    for t in range(4): a.lds(f'ds_write_b64 v12, {vr(ST+2*t,2)} offset:{64*t}', 'sw')
    a.wait(lg='sw')
    a('s_barrier')
    stamp(a, 2, diag)

    def tile_mf(t):
        acc = ACC[t & 1]; mf = []
        for s in range(9):
            for cs in range(2):
                d = vr(acc+16*cs, 16)
                def f(s=s, cs=cs, d=d):
                    a.wait(vm=[('x', t, s)])
                    a(f'v_mfma_f32_32x32x16_bf16 {d}, {xreg(t,s)}, {vr(TB+8*s+4*cs)}, {"0" if s == 0 else d}')
                mf.append(f)
        return mf
    def combine(t):
        acc = ACC[t & 1]; ops = []
        def emit(s): ops.append(lambda s=s: a(s))
        for c in range(1, 4):
            tr, ti = TW+2*(c-1), TW+2*(c-1)+1
            for j in range(4):
                emit(f'v_fmac_f32 v{acc+4*j}, v{tr}, v{acc+4*j+c}')
                emit(f'v_fmac_f32 v{acc+16+4*j}, v{tr}, v{acc+16+4*j+c}')
            for j in range(4):
                emit(f'v_fma_f32 v{acc+4*j}, -v{ti}, v{acc+16+4*j+c}, v{acc+4*j}')
                emit(f'v_fmac_f32 v{acc+16+4*j}, v{ti}, v{acc+4*j+c}')
        for j in range(4): emit(f'v_cvt_pk_bf16_f32 v{XB+4*t+j}, v{acc+4*j}, v{acc+16+4*j}')
        return ops
    RS = XV
    def stat_ops():
        ops = []
        def emit(s): ops.append(lambda s=s: a(s))
        emit(f'v_mul_u32_u24 v12, 768, v2')
        emit(f'v_lshl_add_u32 v12, v1, 3, v12')
        for p in range(3): ops.append(lambda p=p: a.lds(f'ds_read_b64 {vr(ST+2*p,2)}, v12 offset:{256*p}', 'sr'))
        emit('s_nop 0'); emit('s_nop 0')
        ops.append(lambda: a.wait(lg='sr'))
        emit(f'v_add_f32 v{ST}, v{ST}, v{ST+2}'); emit(f'v_add_f32 v{ST+1}, v{ST+1}, v{ST+3}')
        emit(f'v_add_f32 v{ST}, v{ST}, v{ST+4}'); emit(f'v_add_f32 v{ST+1}, v{ST+1}, v{ST+5}')
        emit(f'v_mov_b32 v{ST+2}, v{ST}'); emit(f'v_mov_b32 v{ST+3}, v{ST+1}')
        emit('s_nop 1')
        emit(f'v_permlane32_swap_b32 v{ST}, v{ST+2}'); emit(f'v_permlane32_swap_b32 v{ST+1}, v{ST+3}')
        emit('s_nop 1')
        emit(f'v_add_f32 v{ST}, v{ST}, v{ST+2}'); emit(f'v_add_f32 v{ST+1}, v{ST+1}, v{ST+3}')
        emit(f'v_mul_f32 v{ST}, {hexf(1.0/576)}, v{ST}')
        emit(f'v_mov_b32 v{ST+2}, {hexf(1e-5)}')
        emit(f'v_fmac_f32 v{ST+2}, {hexf(1.0/576)}, v{ST+1}')
        emit(f'v_fma_f32 v{ST+2}, -v{ST}, v{ST}, v{ST+2}')
        emit(f'v_max_f32 v{ST+2}, {hexf(1e-5)}, v{ST+2}')
        emit(f'v_rsq_f32 v{ST+2}, v{ST+2}')
        emit(f'v_lshlrev_b32 v12, 2, v2')
        emit(f'v_lshlrev_b32 v13, 2, v1')
        for n in range(16): ops.append(lambda n=n: a.lds(f'ds_bpermute_b32 v{TMP+n}, v12, v{ST+2} offset:{8*n}', 'bp'))
        emit(f's_lshl_b32 s23, s17, 7'); emit(f's_add_u32 s23, s23, {WS_MU}')
        ops.append(lambda: a.vmem(f'buffer_store_dword v{ST}, v13, s[12:15], s23 offen', 'mu'))
        return ops
    A1R, A1I = XV, XV+16
    def a1_ops(lo, hi):
        ops = []
        def emit(s): ops.append(lambda s=s: a(s))
        if lo == 0:
            ops.append(lambda: a.wait(lg='bp'))
            emit(f'v_lshl_add_u32 v12, v2, 6, s17')
            emit(f'v_mul_u32_u24 v12, v12, v1')
            emit(f'v_cvt_f32_u32 v12, v12')
            emit(f'v_mul_f32 v12, {hexf(1.0/2048)}, v12')
            emit(f'v_cvt_f32_u32 v13, v1')
            emit(f'v_mul_f32 v13, {hexf(1.0/16)}, v13')
        for n in range(lo, hi):
            emit(f'v_cos_f32 v14, v12'); emit(f'v_sin_f32 v15, v12')
            emit(f'v_add_f32 v12, v12, v13')
            emit(f'v_mul_f32 v14, v14, v{TMP+n}'); emit(f'v_mul_f32 v15, v15, v{TMP+n}')
            emit(f'v_cvt_pk_bf16_f32 v{A1R+n}, v14, v15')
            emit(f'v_cvt_pk_bf16_f32 v{TMP+n}, -v15, v14')
        return ops
    spread(a, tile_mf(0), stat_ops(), 0)
    spread(a, tile_mf(1), a1_ops(0, 4) + combine(0), 0)
    spread(a, tile_mf(2), a1_ops(4, 10) + combine(1), 0)
    spread(a, tile_mf(3), a1_ops(10, 16) + combine(2), 0)
    stamp(a, 3, diag)
    O = ACC[0]
    def st2(t):
        return [lambda: a(f'v_mfma_f32_32x32x16_bf16 {vr(O,16)}, {vr(A1R+4*t)}, {vr(XB+4*t)}, {"0" if t == 0 else vr(O,16)}'),
                lambda: a(f'v_mfma_f32_32x32x16_bf16 {vr(O+16,16)}, {vr(TMP+4*t)}, {vr(XB+4*t)}, {"0" if t == 0 else vr(O+16,16)}')]
    a('s_nop 1')
    m = st2(0) + st2(1) + st2(2)
    m[0](); m[1](); a('s_nop 7')
    spread(a, m[2:], combine(3), 0)
    a('s_nop 1')
    for f in st2(3): f()
    a(f'''s_mov_b32 s23, {4*73728}
    v_mul_lo_u32 v12, v2, s23
    v_lshl_add_u32 v12, v1, 2, v12
    s_lshl_b32 s23, s19, 6
    s_add_u32 s23, s23, s17
    s_lshl_b32 s23, s23, 7
    s_add_u32 s23, s23, {WS_Z1}
    s_nop 7''')
    for r in range(16):
        j, i = r >> 2, r & 3
        a(f'v_cvt_pk_bf16_f32 v{XB+r}, v{O+r}, v{O+16+r}')
        a(f's_add_u32 s24, s23, {(8*j+i)*73728}')
        a.vmem(f'buffer_store_dword v{XB+r}, v12, s[12:15], s24 offen', 'st')
    stamp(a, 4, diag)
    if diag: diag_end(a, 's[12:15]', 5, XV, WS_DBG + 0x10000)
    a(f'L_{name}_end:\ns_endpgm')
    return a.text(), kernel_desc(name, NV, 96), f'; @launch kernel={name} grid=(192,1,1) block=(192,1,1) lds=1536'

def gen_k2(name='k2_kernel', diag=False):
    a = Asm()
    a.raw(kernel_header(name))
    a(f's_cmp_ge_u32 s2, 288\ns_cbranch_scc1 L_{name}_end')
    stamp(a, 0, diag)
    if diag: a('s_memrealtime s[80:81]')
    Z = 16; WR = 32; WI = 48; XR = 64; XI = 80; Y = 96; AT = 112
    NV = 240
    def areg(mt, v, sg): return AT + ((mt*2 + v)*4 + sg)*4
    a(f'''s_load_dwordx4 s[4:7], s[0:1], 8
    s_load_dwordx2 s[20:21], s[0:1], 72
    v_lshrrev_b32 v8, 6, v0
    v_and_b32 v9, 63, v0
    v_readfirstlane_b32 s16, v8
    s_and_b32 s23, s2, 7
    s_lshr_b32 s24, s2, 3
    s_mul_i32 s17, s24, 57
    s_lshr_b32 s17, s17, 9
    s_mul_i32 s18, s17, 9
    s_sub_u32 s18, s24, s18
    s_lshl_b32 s23, s23, 2
    s_add_u32 s17, s17, s23
    v_and_b32 v1, 15, v9
    v_lshrrev_b32 v2, 4, v9
    v_lshlrev_b32 v3, 9, v2
    v_lshl_add_u32 v3, v1, 2, v3
    s_mul_i32 s22, s17, 9
    s_add_u32 s22, s22, s18
    s_lshl_b32 s22, s22, 13
    s_lshl_b32 s23, s16, 6
    s_add_u32 s22, s22, s23
    s_add_u32 s22, s22, {WS_Z1}
    s_add_u32 s25, s22, 4096
    s_mov_b32 s23, {4*32*578}
    v_mul_lo_u32 v4, v2, s23
    v_lshl_add_u32 v4, v1, 1, v4
    s_mul_i32 s26, s17, 578
    s_lshl_b32 s23, s18, 6
    s_add_u32 s26, s26, s23
    s_lshl_b32 s23, s16, 5
    s_add_u32 s26, s26, s23
    s_add_u32 s26, s26, 2''')
    for i in range(32): a(f'v_mov_b32 v{WR+i}, 0')
    a('s_waitcnt lgkmcnt(0)')
    srd(a, 8, 4, 2048*578); srd(a, 28, 6, 2048*578); srd(a, 12, 20, WS_SIZE)
    for r in range(16):
        a(f's_add_u32 s23, s26, {(16*(r>>2)+(r&3))*32*578}')
        a.vmem(f'buffer_load_short_d16_hi v{WR+r}, v4, s[8:11], s23 offen', ('w', r))
        a.vmem(f'buffer_load_short_d16_hi v{WI+r}, v4, s[28:31], s23 offen', ('w', r))
    for sg in range(4):
        for j in range(4):
            a.vmem(f'buffer_load_dword v{Z+4*sg+j}, v3, s[12:15], s{22 if sg < 2 else 25} offen offset:{(sg&1)*2048+j*128}', ('z', sg))
    a(f'''v_cvt_f32_u32 v5, v1
    v_mul_f32 v5, {hexf(1.0/64)}, v5
    v_cvt_f32_u32 v6, v2
    v_mul_f32 v6, 4.0, v6
    v_mul_f32 v6, v6, v5
    v_mul_f32 v7, {hexf(13.0)}, v5''')
    rot = lambda n, c, s: [(f'v{c}', f'v{s}'), (f'-v{s}', f'v{c}'), (f'-v{c}', f'-v{s}'), (f'v{s}', f'-v{c}')][n % 4]
    for sg in range(4):
        for j in range(4):
            c = 10 + 2*(j & 1)
            a(f'v_cos_f32 v{c}, v6\nv_sin_f32 v{c+1}, v6')
            a(f'v_add_f32 v6, v6, v{5 if j < 3 else 7}')
            for mt in range(4):
                for v in range(2):
                    p = rot(j*mt + v, c, c+1)
                    a(f'v_cvt_pk_bf16_f32 v{areg(mt,v,sg)+j}, {p[0]}, {p[1]}')
    stamp(a, 1, diag)
    a('s_nop 1')
    def fwd(mt):
        mf = []
        for v in range(2):
            d = vr((XR, XI)[v] + 4*mt)
            for sg in range(4):
                def f(v=v, sg=sg, d=d):
                    a.wait(vm=[('z', sg)])
                    a(f'v_mfma_f32_16x16x32_bf16 {d}, {vr(areg(mt,v,sg))}, {vr(Z+4*sg)}, {"0" if sg == 0 else d}')
                mf.append(f)
        return mf
    def filt(mt):
        ops = []
        def emit(s): ops.append(lambda s=s: a(s))
        for i in range(4):
            r = 4*mt + i
            emit(f'v_mul_f32 v{10+i}, v{XR+r}, v{WR+r}')
        for i in range(4):
            r = 4*mt + i
            emit(f'v_mul_f32 v{XR+r}, v{XR+r}, v{WI+r}')
        for i in range(4):
            r = 4*mt + i
            emit(f'v_fma_f32 v{10+i}, -v{XI+r}, v{WI+r}, v{10+i}')
        for i in range(4):
            r = 4*mt + i
            emit(f'v_fmac_f32 v{XR+r}, v{XI+r}, v{WR+r}')
        for i in range(4):
            r = 4*mt + i
            emit(f'v_cvt_pk_bf16_f32 v{Y+r}, v{10+i}, -v{XR+r}')
        return ops
    for f in fwd(0): f()
    for f in fwd(1): f()
    stamp(a, 2, diag)
    spread(a, fwd(2), filt(0))
    spread(a, fwd(3), filt(1))
    TR, TI = Z, NV
    def inv(sg):
        mf = []
        for mt in range(4):
            for v in range(2):
                d = vr((TR, TI)[v] + 4*mt)
                mf.append(lambda v=v, mt=mt, d=d: a(f'v_mfma_f32_16x16x32_bf16 {d}, {vr(areg(mt,v,sg))}, {vr(Y+4*sg)}, {"0" if sg == 0 else d}'))
        return mf
    spread(a, inv(0), filt(2))
    spread(a, inv(1), filt(3))
    a('s_nop 1')
    for f in inv(2): f()
    for f in inv(3): f()
    stamp(a, 3, diag)
    a(f'''s_mov_b32 s23, {4*36864}
    v_mul_lo_u32 v4, v2, s23
    v_lshl_add_u32 v4, v1, 2, v4
    s_lshl_b32 s22, s18, 5
    s_add_u32 s22, s22, s17
    s_lshl_b32 s22, s22, 7
    s_lshl_b32 s23, s16, 6
    s_add_u32 s22, s22, s23
    s_add_u32 s22, s22, {WS_T}''')
    for r in range(16):
        a(f'v_cvt_pk_bf16_f32 v{Y+r}, v{TR+r}, -v{TI+r}')
        a(f's_add_u32 s23, s22, {(16*(r>>2)+(r&3))*36864}')
        a.vmem(f'buffer_store_dword v{Y+r}, v4, s[12:15], s23 offen', 'st')
    stamp(a, 4, diag)
    if diag: diag_end(a, 's[12:15]', 5, WR, WS_DBG + 0x20000)
    a(f'L_{name}_end:\ns_endpgm')
    return a.text(), kernel_desc(name, NV+16, 0), f'; @launch kernel={name} grid=(288,1,1) block=(128,1,1) lds=0'

def gen_k3(name='k3_kernel', diag=False):
    a = Asm()
    a.raw(kernel_header(name))
    a(f's_cmp_ge_u32 s2, 192\ns_cbranch_scc1 L_{name}_end')
    stamp(a, 0, diag)
    if diag: a('s_memrealtime s[80:81]')
    TT = 16
    BR = 64; BI = 80
    ACC = [96, 128]
    PK = 160
    XX = 176
    ZB = 192
    NV = 240
    a(f'''s_load_dwordx2 s[4:5], s[0:1], 0
    s_load_dwordx2 s[6:7], s[0:1], 72
    v_lshrrev_b32 v8, 6, v0
    v_and_b32 v9, 63, v0
    v_readfirstlane_b32 s16, v8
    s_and_b32 s23, s2, 7
    s_lshr_b32 s24, s2, 3''')
    div3(a, 17, 18, 24)
    a(f'''s_lshl_b32 s23, s23, 3
    s_add_u32 s17, s17, s23
    s_mul_i32 s19, s18, 3
    s_add_u32 s19, s19, s16
    v_and_b32 v1, 31, v9
    v_lshrrev_b32 v2, 5, v9
    v_lshlrev_b32 v3, 4, v9
    v_and_b32 v4, 7, v1
    v_lshlrev_b32 v4, 1, v4
    v_bfe_u32 v5, v1, 3, 1
    v_add_u32 v4, v4, v5
    v_and_b32 v5, 16, v1
    v_add_u32 v4, v4, v5
    v_lshlrev_b32 v4, 2, v4
    v_lshl_add_u32 v4, v2, 9, v4
    s_mul_i32 s20, s17, 9
    s_mul_i32 s23, s16, 3
    s_add_u32 s20, s20, s23
    s_lshl_b32 s20, s20, 12
    s_add_u32 s20, s20, {WS_T}
    s_mul_i32 s21, s19, 36864
    s_add_u32 s21, s21, {WS_GT}
    s_mov_b32 s23, 73728
    v_mul_lo_u32 v5, v1, s23
    v_lshl_add_u32 v5, v2, 5, v5
    s_mul_i32 s22, s17, 1152
    s_lshl_b32 s23, s19, 6
    s_add_u32 s22, s22, s23
    v_lshlrev_b32 v6, 2, v1
    s_lshl_b32 s25, s17, 7
    s_add_u32 s25, s25, {WS_MU}
    s_waitcnt lgkmcnt(0)''')
    srd(a, 8, 4, NB); srd(a, 12, 6, WS_SIZE)
    for kt in range(3):
        if kt: a(f's_add_u32 s20, s20, 4096')
        for tau in range(4):
            for j in range(4):
                a.vmem(f'buffer_load_dword v{TT+16*kt+4*tau+j}, v4, s[12:15], s20 offen offset:{tau*1024+j*128}', ('t', kt))
    SC = 1.0/(2048*576)
    a(f'''v_lshl_add_u32 v10, v1, 6, s17
    v_cvt_f32_u32 v10, v10
    v_mul_f32 v10, {hexf(1.0/2048)}, v10
    v_cvt_f32_u32 v11, v2
    v_mul_f32 v11, 4.0, v11
    v_mul_f32 v11, v11, v10
    v_mul_f32 v12, {hexf(5.0)}, v10''')
    gl = 0
    def gload():
        nonlocal gl
        if gl >= 36: return
        if gl and gl % 4 == 0: a('s_add_u32 s21, s21, 4096')
        a.vmem(f'buffer_load_dwordx4 {vr(4*gl,4,"a")}, v3, s[12:15], s21 offen offset:{(gl%4)*1024}', ('g', gl)); gl += 1
    for n in range(16):
        a(f'''v_cos_f32 v13, v11
        v_sin_f32 v14, v11
        v_add_f32 v11, v11, v{10 if (n & 3) < 3 else 12}
        v_mul_f32 v13, {hexf(SC)}, v13
        v_mul_f32 v14, {hexf(SC)}, v14
        v_cvt_pk_bf16_f32 v{BR+n}, v13, -v14
        v_cvt_pk_bf16_f32 v{BI+n}, v14, v13''')
    for i in range(12): gload()
    stamp(a, 1, diag)
    def s1_mf(kt):
        acc = ACC[kt & 1]; mf = []
        for tau in range(4):
            for v in range(2):
                d = vr(acc+16*v, 16)
                def f(tau=tau, v=v, d=d):
                    a.wait(vm=[('t', kt)])
                    a(f'v_mfma_f32_32x32x16_bf16 {d}, {vr(TT+16*kt+4*tau)}, {vr((BR,BI)[v]+4*tau)}, {"0" if tau == 0 else d}')
                    gload()
                mf.append(f)
        return mf
    a(f's_mul_i32 s23, s16, 12288\nv_add_u32 v7, s23, v3')
    def s1_out(kt):
        acc = ACC[kt & 1]; ops = []
        for j in range(4):
            for i in range(4):
                ops.append(lambda j=j, i=i: a(f'v_cvt_pk_bf16_f32 v{PK+4*j+i}, v{acc+4*j+i}, v{acc+16+4*j+i}'))
            ops.append(lambda j=j: a.lds(f'ds_write_b128 v7, {vr(PK+4*j)} offset:{(4*kt+j)*1024}', 'zw'))
        return ops
    for f in s1_mf(0): f()
    m = s1_mf(1)
    for f in m[:4]: f()
    a('s_nop 3')
    spread(a, m[4:], s1_out(0))
    m = s1_mf(2)
    a.wait(lg='zw')
    for f in m[:4]: f()
    a('s_nop 3')
    spread(a, m[4:], s1_out(1))
    for q in range(4):
        a.vmem(f'buffer_load_dwordx4 {vr(XX+4*q)}, v5, s[8:11], s22 offen offset:{(q>>1)*576+(q&1)*16}', 'x')
    a.vmem(f'buffer_load_dword v15, v6, s[12:15], s25 offen', 'x')
    a.wait(lg='zw')
    a('s_nop 7')
    for f in s1_out(2): f()
    a.wait(lg='zw')
    a('s_barrier')
    stamp(a, 2, diag)
    AO, AE = ACC[1], ACC[1]+16
    zl = 0
    def zload():
        nonlocal zl
        if zl >= 36: return
        a.lds(f'ds_read_b128 {vr(ZB+4*(zl%12))}, v3 offset:{zl*1024}', ('z', zl)); zl += 1
    for i in range(11): zload()
    for ks in range(36):
        d = vr(AO if ks % 2 == 0 else AE, 16)
        a.wait(vm=[('g', ks)], lg=[('z', ks)])
        a(f'v_mfma_f32_32x32x16_bf16 {d}, {vr(4*ks,4,"a")}, {vr(ZB+4*(ks%12))}, {"0" if ks < 2 else d}')
        zload()
    stamp(a, 3, diag)
    a.wait(vm='x')
    LO = ACC[0]; HI = ACC[0]+16
    for r in range(16):
        x0 = XX + r//2; x1 = XX + 8 + r//2
        if r % 2 == 0:
            a(f'v_lshlrev_b32 v{LO+r}, 16, v{x0}\nv_lshlrev_b32 v{HI+r}, 16, v{x1}')
        else:
            a(f'v_and_b32 v{LO+r}, 0xffff0000, v{x0}\nv_and_b32 v{HI+r}, 0xffff0000, v{x1}')
    for r in range(16): a(f'v_sub_f32 v{AE+r}, v{AE+r}, v15')
    for r in range(16): a(f'v_add_f32 v{LO+r}, v{LO+r}, v{AO+r}\nv_sub_f32 v{HI+r}, v{HI+r}, v{AO+r}')
    for r in range(16): a(f'v_add_f32 v{LO+r}, v{LO+r}, v{AE+r}\nv_add_f32 v{HI+r}, v{HI+r}, v{AE+r}')
    a(f'''v_lshlrev_b32 v10, 11, v2
    v_lshl_add_u32 v10, v1, 4, v10
    s_lshr_b32 s23, s17, 1
    s_mul_i32 s24, s23, 73728
    s_and_b32 s26, s17, 1
    s_lshl_b32 s27, s26, 9
    s_add_u32 s24, s24, s27
    s_lshl_b32 s27, s19, 12
    s_add_u32 s24, s24, s27
    s_add_u32 s24, s24, {WS_HC}
    s_add_u32 s27, s24, 36864''')
    for q in range(4):
        src = (LO, HI)[q >> 1] + 8*(q & 1)
        for i in range(4): a(f'v_cvt_pk_bf16_f32 v{PK+4*q+i}, v{src+2*i}, v{src+2*i+1}')
        a.vmem(f'buffer_store_dwordx4 {vr(PK+4*q)}, v10, s[12:15], s{24 if q < 2 else 27} offen offset:{(q&1)*1024}', 'st')
    a(f'v_mul_f32 v11, v{LO}, v{LO}\nv_mul_f32 v12, v{HI}, v{HI}')
    for r in range(1, 16): a(f'v_fmac_f32 v11, v{LO+r}, v{LO+r}\nv_fmac_f32 v12, v{HI+r}, v{HI+r}')
    a(f'''v_add_f32 v11, v11, v12
    v_mov_b32 v12, v11
    s_mul_i32 s23, s23, {NSSQ}
    s_add_u32 s23, s23, s19
    v_permlane32_swap_b32 v11, v12
    s_lshl_b32 s23, s23, 8
    s_lshl_b32 s26, s26, 7
    s_add_u32 s23, s23, s26
    s_add_u32 s23, s23, {WS_SSQ}
    v_add_f32 v11, v11, v12''')
    a.vmem(f'buffer_store_dword v11, v6, s[12:15], s23 offen', 'st')
    stamp(a, 4, diag)
    if diag: diag_end(a, 's[12:15]', 5, TT, WS_DBG + 0x30000)
    a(f'L_{name}_end:\ns_endpgm')
    return a.text(), kernel_desc(name, NV, 144), f'; @launch kernel={name} grid=(192,1,1) block=(192,1,1) lds=36864'
```

```python
from asmlib import *
from layout import *
import math

def stamp(a, idx, on):
    if on: a(f's_memtime s[{60+2*idx}:{61+2*idx}]')

def diag_end(a, srd, nst, vt, dbgoff):
    a.waitall()
    stamp(a, nst, True)
    a('s_memrealtime s[82:83]\ns_waitcnt lgkmcnt(0)')
    for i in range(1, 7):
        if i <= nst: a(f's_sub_u32 s{60+2*i}, s{60+2*i}, s60\nv_mov_b32 v{vt+i}, s{60+2*i}')
        else: a(f'v_mov_b32 v{vt+i}, 0')
    a(f'v_mov_b32 v{vt}, s80\nv_mov_b32 v{vt+7}, s82')
    a(f'''s_lshl_b32 s23, s2, 2
    s_add_u32 s23, s23, s16
    s_lshl_b32 s23, s23, 5
    s_add_u32 s23, s23, {dbgoff}
    v_mov_b32 v{vt+8}, 0
    s_mov_b64 exec, 1
    buffer_store_dwordx4 {vr(vt)}, v{vt+8}, {srd}, s23 offen
    buffer_store_dwordx4 {vr(vt+4)}, v{vt+8}, {srd}, s23 offen offset:16''')

def gen_k4(name='ffn_kernel', variant='B', diag=False, R=18, FPX=2, stflags='', NG=3):
    a = Asm()
    is32 = variant == 'B'
    L1 = None if is32 else variant[1]
    NMT = 2 if is32 else 4
    ACT = 73728
    V_L16, V_B1, V_B1b, V_ACTW, V_B2, V_B2b, V_PST = 1, 2, 3, 4, 5, 6, 7
    V_C0, V_C1, V_IR = 10, 14, 18
    V_T = 24
    ACC = [48, 80]
    RING = 112
    BX = RING + 4*R
    NV = BX + 32
    def breg(bi): return vr(4*bi, 4, 'a') if bi < 64 else vr(BX + 4*(bi-64))
    a.raw(kernel_header(name))
    a(f'''s_cmp_ge_u32 s2, 256
    s_cbranch_scc1 L_{name}_end''')
    stamp(a, 0, diag)
    if diag: a('s_memrealtime s[80:81]')
    CPG = 72//NG
    CPW = CPG//4
    a(f'''s_load_dwordx2 s[4:5], s[0:1], 72
    v_lshrrev_b32 v8, 6, v0
    v_and_b32 v9, 63, v0
    v_readfirstlane_b32 s16, v8
    v_lshlrev_b32 v{V_L16}, 4, v9
    s_and_b32 s23, s2, 7
    s_lshr_b32 s24, s2, 3
    s_and_b32 s17, s23, {8//FPX-1}
    s_mul_i32 s17, s17, {FPX}
    s_and_b32 s25, s24, {FPX-1}
    s_add_u32 s17, s17, s25
    s_lshr_b32 s18, s23, {(8//FPX).bit_length()-1}
    s_mul_i32 s18, s18, {32//FPX}
    s_lshr_b32 s25, s24, {FPX.bit_length()-1}
    s_add_u32 s18, s18, s25
    s_lshl_b32 s20, s17, 2
    s_add_u32 s20, s20, s16
    s_mul_i32 s20, s20, {WSTREAM}
    s_add_u32 s20, s20, {WS_W}
    s_mul_i32 s30, s18, 73728
    s_mul_i32 s22, s16, {CPW*1024}
    s_add_u32 s21, s30, s22
    s_add_u32 s21, s21, {WS_HC}
    s_mov_b32 s10, {WSTREAM}
    s_mov_b32 s11, 0x20000
    s_mov_b32 s14, {WS_SIZE}
    s_mov_b32 s15, 0x20000
    s_mov_b32 s19, 0
    s_waitcnt lgkmcnt(0)
    s_add_u32 s8, s4, s20
    s_addc_u32 s9, s5, 0
    s_mov_b32 s12, s4
    s_mov_b32 s13, s5''')
    st = {'n': 0, 'base': 0}
    NFR = 486
    def issue_frag():
        n = st['n']
        if n >= NFR: return
        if n - st['base'] >= 4:
            a(f's_add_u32 s19, s19, {(n-st["base"])*1024}'); st['base'] = n
        off = (n - st['base'])*1024
        a.vmem(f'buffer_load_dwordx4 {vr(RING+4*(n%R))}, v{V_L16}, s[8:11], s19 offen offset:{off}', ('w', n))
        st['n'] += 1
    for g in range(NG):
        for j in range(CPW):
            if j % 4 == 0:
                o = (g*CPG + j)*1024
                a(f's_add_u32 s23, s22, {o}\ns_mov_b32 m0, s23\ns_add_u32 s24, s21, {o}')
            a.vmem(f'buffer_load_dwordx4 v{V_L16}, s[12:15], s24 offen offset:{(j%4)*1024} lds', ('dma', g))
        for j in range(R//NG): issue_frag()
    while st['n'] < R: issue_frag()
    a(f'''v_lshlrev_b32 v8, 2, v9
    s_mul_i32 s23, s18, {NSSQ*256}
    s_add_u32 s23, s23, {WS_SSQ}''')
    for j in range(NSSQ):
        a.vmem(f'buffer_load_dword v{V_T+j}, v8, s[12:15], s23 offen offset:{j*256}', 'ssq')
    a(f'''v_and_b32 v22, 15, v9
    v_lshrrev_b32 v23, 4, v9
    v_lshlrev_b32 v{V_PST}, 10, v23
    v_lshl_add_u32 v{V_PST}, v22, 4, v{V_PST}
    s_lshl_b32 s23, s16, 11
    s_add_u32 s23, s23, {ACT}''')
    if is32:
        a(f'''v_and_b32 v{V_B1b}, 31, v9
        v_lshrrev_b32 v{V_B1}, 5, v9
        v_lshlrev_b32 v{V_B1}, 10, v{V_B1}
        v_lshl_add_u32 v{V_B1}, v{V_B1b}, 4, v{V_B1}
        v_add_u32 v{V_ACTW}, s23, v{V_B1}''')
    else:
        a(f'''v_mov_b32 v{V_B1}, v{V_PST}
        v_lshrrev_b32 v{V_ACTW}, 1, v23
        v_lshlrev_b32 v{V_ACTW}, 10, v{V_ACTW}
        v_lshl_add_u32 v{V_ACTW}, v22, 4, v{V_ACTW}
        v_and_b32 v{V_B1b}, 1, v23
        v_lshl_add_u32 v{V_ACTW}, v{V_B1b}, 3, v{V_ACTW}
        v_add_u32 v{V_ACTW}, s23, v{V_ACTW}''')
    a(f'''v_add_u32 v{V_B1b}, 36864, v{V_B1}
    v_add_u32 v{V_B2}, {ACT}, v{V_PST}
    v_add_u32 v{V_B2b}, 36864, v{V_B2}''')
    a(f'''s_mul_i32 s26, s17, {NB}
    s_add_u32 s26, s26, s30
    s_add_u32 s26, s26, {WS_P}
    s_lshr_b32 s23, s16, 1
    s_mul_i32 s23, s23, {9*4096}
    s_add_u32 s26, s26, s23
    s_and_b32 s24, s16, 1
    s_lshl_b32 s25, s24, 3
    s_add_u32 s28, s26, s25
    s_add_u32 s28, s28, {4*4096}
    s_mul_i32 s24, s24, {5*4096}
    s_add_u32 s26, s26, s24''')
    msk = 31 if is32 else 15
    K0 = -2.0*math.log2(math.e)*math.sqrt(2.0/math.pi)
    def ln_ops():
        ops = []
        def emit(s): ops.append(lambda s=s: a(s))
        ops.append(lambda: a.wait(vm='ssq'))
        for j in range(1, NSSQ): emit(f'v_add_f32 v{V_T}, v{V_T}, v{V_T+j}')
        emit(f'v_mov_b32 v{V_T+1}, {hexf(1e-5)}')
        emit(f'v_fmac_f32 v{V_T+1}, {hexf(1.0/576)}, v{V_T}')
        emit(f'v_and_b32 v{V_T+2}, {msk}, v9')
        emit(f'v_lshlrev_b32 v{V_T+2}, 2, v{V_T+2}')
        for mt in range(NMT):
            ops.append(lambda mt=mt: a.lds(f'ds_bpermute_b32 v{V_IR+mt}, v{V_T+2}, v{V_T+1} offset:{mt*(msk+1)*4}', 'bp'))
        emit('s_nop 0'); emit('s_nop 0')
        ops.append(lambda: a.wait(lg='bp'))
        for mt in range(NMT): emit(f'v_rsq_f32 v{V_T+4+mt}, v{V_IR+mt}')
        emit('s_nop 0')
        for mt in range(NMT): emit(f'v_mul_f32 v{V_C0+mt}, {hexf(K0)}, v{V_T+4+mt}')
        for mt in range(NMT): emit(f'v_mul_f32 v{V_T+8+mt}, v{V_T+4+mt}, v{V_T+4+mt}')
        for mt in range(NMT): emit(f'v_mul_f32 v{V_C1+mt}, {hexf(0.044715)}, v{V_C0+mt}')
        for mt in range(NMT): emit(f'v_mul_f32 v{V_C1+mt}, v{V_C1+mt}, v{V_T+8+mt}')
        return ops

    def bread(bi, g1):
        if g1 and is32: off = (bi >> 1)*2048 + (bi & 1)*512
        else: off = (bi >> 2)*4096 + (bi & 3)*256
        base = (V_B1, V_B1b) if g1 else (V_B2, V_B2b)
        reg = base[0] if off < 36864 else base[1]
        if off >= 36864: off -= 36864
        return lambda: a.lds(f'ds_read_b128 {breg(bi)}, v{reg} offset:{off}', ('b', bi))

    def gelu_ops(acc, t):
        ops = []
        def emit(s): ops.append(lambda s=s: a(s))
        toff = t*8192
        if t == 8:
            emit(f'v_add_u32 v{V_ACTW}, 0x10000, v{V_ACTW}'); toff = 0
        for grp in range(4):
            if is32:
                mt = grp >> 1
                g = [acc + 16*mt + 4*(grp & 1) + i for i in range(4)]
                u = [x + 8 for x in g]
                o = V_T + 16 + 4*mt + 2*(grp & 1)
            else:
                mt = grp
                g = [acc + 4*mt + i for i in range(4)]
                u = [x + 16 for x in g]
                o = V_T + 16 + 2*grp
            T = [V_T + 8*(grp & 1) + i for i in range(4)]
            Q = [x + 4 for x in T]
            for i in range(4): emit(f'v_mul_f32 v{T[i]}, v{g[i]}, v{g[i]}')
            for i in range(4): emit(f'v_fma_f32 v{T[i]}, v{T[i]}, v{V_C1+mt}, v{V_C0+mt}')
            for i in range(4): emit(f'v_mul_f32 v{T[i]}, v{T[i]}, v{g[i]}')
            for i in range(4):
                emit(f'v_exp_f32 v{T[i]}, v{T[i]}')
                emit(f'v_mul_f32 v{Q[i]}, v{g[i]}, v{u[i]}')
            for i in range(4): emit(f'v_fma_f32 v{T[i]}, v{T[i]}, v{V_IR+mt}, v{V_IR+mt}')
            for i in range(4): emit(f'v_rcp_f32 v{T[i]}, v{T[i]}')
            for i in range(4): emit(f'v_mul_f32 v{Q[i]}, v{Q[i]}, v{T[i]}')
            emit(f'v_cvt_pk_bf16_f32 v{o}, v{Q[0]}, v{Q[1]}')
            emit(f'v_cvt_pk_bf16_f32 v{o+1}, v{Q[2]}, v{Q[3]}')
            if is32:
                if grp & 1:
                    ops.append(lambda mt=mt: a.lds(f'ds_write_b128 v{V_ACTW}, {vr(V_T+16+4*mt)} offset:{toff+mt*512}', 'aw'))
            else:
                ops.append(lambda mt=mt, o=o: a.lds(f'ds_write_b64 v{V_ACTW}, {vr(o,2)} offset:{toff+mt*256}', 'aw'))
        return ops
    def barrier_ops():
        return [lambda: (a.wait(lg='aw'), a('s_barrier'))]

    def run(mf, fillers, lo=0, hi=None):
        n = len(mf)
        if hi is None: hi = n
        span = hi - lo
        done = 0
        for i, (pre, txt, post, bi) in enumerate(mf):
            if pre: pre()
            a(txt)
            if post: post()
            if i >= lo:
                want = min(len(fillers), -(-len(fillers)*(i-lo+1)//span))
                while done < want:
                    fillers[done](); done += 1
        while done < len(fillers):
            fillers[done](); done += 1

    fr = {'n': 0}
    def mk(n, bi, txt, last):
        return ((lambda: a.wait(vm=[('w', n)], lg=[('b', bi)])), txt, issue_frag if last else None, bi)
    def g1_tile(acc):
        mf = []
        if is32:
            for s in range(36):
                n = fr['n']; fr['n'] += 1
                for mt in range(2):
                    c = '0' if s == 0 else vr(acc+16*mt, 16)
                    mf.append(mk(n, 2*s+mt, f'v_mfma_f32_32x32x16_bf16 {vr(acc+16*mt,16)}, {vr(RING+4*(n%R))}, {breg(2*s+mt)}, {c}', mt == 1))
        else:
            for s0 in range(0, 18, L1):
                for mat in range(2):
                    n0 = fr['n']; fr['n'] += L1
                    for mt in range(4):
                        for j in range(L1):
                            s = s0 + j; n = n0 + j; d = acc + 16*mat + 4*mt
                            c = '0' if s == 0 else vr(d)
                            mf.append(mk(n, 4*s+mt, f'v_mfma_f32_16x16x32_bf16 {vr(d)}, {vr(RING+4*(n%R))}, {breg(4*s+mt)}, {c}', mt == 3))
        return mf
    def g2_part(d0, groups):
        mf = []
        for (s0, L) in groups:
            n0 = fr['n']; fr['n'] += L
            for mt in range(4):
                for j in range(L):
                    s = s0 + j; n = n0 + j; d = d0 + 8*mt
                    c = '0' if s == 0 else vr(d)
                    mf.append(mk(n, 4*s+mt, f'v_mfma_f32_16x16x32_bf16 {vr(d)}, {vr(RING+4*(n%R))}, {breg(4*s+mt)}, {c}', mt == 3))
        return mf
    def first_use(mf):
        o = []
        for m in mf:
            if m[3] not in o: o.append(m[3])
        return o

    mf = g1_tile(ACC[0])
    per = len(mf)//NG
    for g in range(NG):
        part = mf[g*per:(g+1)*per]
        a.wait(vm=[('dma', g)])
        a('s_barrier')
        if g == 0: stamp(a, 1, diag)
        reads = [bread(bi, True) for bi in first_use(part)]
        assert len(reads) == CPG
        for f in reads[:8]: f()
        extra = ln_ops() if g == NG-1 else []
        h = per//2
        run(part[:h], reads[8:], 0, h)
        run(part[h:], extra)
    stamp(a, 2, diag)
    dly = 4 if is32 else 10
    for t in range(1, 8):
        mf = g1_tile(ACC[t & 1])
        run(mf, gelu_ops(ACC[(t-1) & 1], t-1), dly, len(mf)-2)
    mf = g1_tile(ACC[0])
    cut = (len(mf)*5)//9 if is32 else (len(mf)*2)//3
    run(mf[:cut], gelu_ops(ACC[1], 7) + barrier_ops(), dly)
    G16 = [(0,4),(4,4),(8,4),(12,4)]; G2 = [(16,2)]
    order = []
    for (s0, L) in G16:
        for mt in range(4):
            for j in range(L): order.append(4*(s0+j)+mt)
    lastuse = {}
    for i, m in enumerate(mf): lastuse[m[3]] = i
    pend = list(order)
    rate = 2 if is32 else 1
    for i in range(cut, len(mf)):
        run([mf[i]], [])
        k = 0
        while k < rate and pend and lastuse[pend[0]] <= i:
            bread(pend.pop(0), False)(); k += 1
    stamp(a, 3, diag)
    def out_ops(acc, blk, half):
        ops = []
        for mt in range(4):
            o = V_T + 4*mt
            d = acc + 8*mt
            for i in range(2 if half else 4):
                ops.append(lambda o=o, d=d, i=i: a(f'v_cvt_pk_bf16_f32 v{o+i}, v{d+2*i}, v{d+2*i+1}'))
            if half:
                ops.append(lambda o=o, mt=mt: a.vmem(f'buffer_store_dwordx2 {vr(o,2)}, v{V_PST}, s[12:15], s28 offen offset:{mt*256} {stflags}', 'st'))
            else:
                ops.append(lambda o=o, mt=mt: a.vmem(f'buffer_store_dwordx4 {vr(o)}, v{V_PST}, s[12:15], s26 offen offset:{mt*256} {stflags}', 'st'))
        if not half: ops.append(lambda: a('s_add_u32 s26, s26, 4096'))
        return ops
    mf = g2_part(ACC[1], G16) + g2_part(ACC[1]+4, G16)
    npend = len(pend)
    run(mf[:max(npend,10)], [bread(bi, False) for bi in pend])
    late = [bread(4*s+mt, False) for mt in range(4) for s in (16, 17)]
    run(mf[max(npend,10):], gelu_ops(ACC[0], 8) + barrier_ops() + late, 0, len(mf)-max(npend,10)-6)
    stamp(a, 4, diag)
    run(g2_part(ACC[1], G2) + g2_part(ACC[1]+4, G2), [])
    G6 = [(0,6),(6,6),(12,6)]
    for b in range(1, 4):
        mf = g2_part(ACC[(b+1) & 1], G6) + g2_part(ACC[(b+1) & 1]+4, G6)
        run(mf, out_ops(ACC[b & 1], b-1, False), 10, 80)
    run(g2_part(ACC[1], G6), out_ops(ACC[0], 3, False), 10, 50)
    a('s_nop 7')
    for f in out_ops(ACC[1], 0, True): f()
    stamp(a, 5, diag)
    if diag: diag_end(a, 's[12:15]', 6, V_T, WS_DBG)
    a(f'L_{name}_end:\ns_endpgm')
    return a.text(), kernel_desc(name, NV, 256), f'; @launch kernel={name} grid=(256,1,1) block=(256,1,1) lds=147456'
```

```python
import numpy as np
S, D, F = 2048, 576, 4608
NB = S*D*2
WS_Z1  = 0x0000000
WS_T   = 0x0240000
WS_HC  = 0x0480000
WS_H   = 0x06C0000
WS_MU  = 0x0900000
WS_SSQ = 0x0910000
WS_FL  = 0x0930000
WS_GT  = 0x0940000
WS_W   = 0x0A00000
WSTREAM = 486*1024
WS_P   = 0x1A00000
WS_DBG = 0x3000000
WS_SIZE = 0x10000000
NSSQ = 9

def tobf(x):
    u = np.ascontiguousarray(x, dtype=np.float32).view(np.uint32)
    r = ((u + 0x7FFF + ((u >> 16) & 1)) >> 16).astype(np.uint16)
    return r
def frombf(u): return (u.astype(np.uint32) << 16).view(np.float32)

def row_of(rb, m): return 64*(m & 31) + 2*rb + (m >> 5)

BASEB = [0, 5, 9, 14]; HALFB = [4, 4, 13, 13]
def g2_tiles(w):
    t = []
    for b in range(4):
        t += [(BASEB[w]+b, 0), (BASEB[w]+b, 1)]
    t.append((HALFB[w], w & 1))
    return t

def shuffle_weights(wg, wu, wd, variant):
    out = np.zeros((8, 4, 486, 64, 8), np.uint16)
    l = np.arange(64); e = np.arange(8)
    for fc in range(8):
        for w in range(4):
            n = 0
            for t in range(9):
                f0 = fc*576 + 16*(4*t + w)
                if variant == 'B':
                    r = l & 31; h = l >> 5; rr = r & 15
                    f = f0 + 8*((rr >> 2) & 1) + 4*(rr >> 3) + (rr & 3)
                    for s in range(36):
                        k = 16*s + 8*h[:, None] + e[None, :]
                        out[fc, w, n] = np.where((r < 16)[:, None], wg[k, f[:, None]], wu[k, f[:, None]]); n += 1
                else:
                    r = l & 15; q = l >> 4
                    L = variant[1]
                    for s0 in range(0, 18, L):
                        for mat in (wg, wu):
                            for s in range(s0, s0+L):
                                k = 32*s + 8*q[:, None] + e[None, :]
                                out[fc, w, n] = mat[k, (f0 + r)[:, None]]; n += 1
            r = l & 15; q = l >> 4
            seq = [(0, s) for s in range(16)] + [(1, s) for s in range(16)] + [(0,16),(0,17),(1,16),(1,17)]
            for t in range(2, 9): seq += [(t, s) for s in range(18)]
            for (t, s) in seq:
                G = 8 if t == 0 else (fc + t) & 7
                nn = 64*G + 16*w + r
                k = fc*576 + 32*s + 8*q[:, None] + e[None, :]
                out[fc, w, n] = wd[k, nn[:, None]]; n += 1
            assert n == 486
    return out

def pack_hc(hc):
    out = np.zeros((32, 72, 64, 8), np.uint16)
    m = np.arange(64)
    for rb in range(32):
        rows = hc[row_of(rb, m)]
        out[rb] = rows.reshape(64, 72, 8).transpose(1, 0, 2)
    return out

def unpack_hc(p):
    out = np.zeros((2048, 576), p.dtype)
    m = np.arange(64)
    for rb in range(32):
        out[row_of(rb, m)] = p[rb].transpose(1, 0, 2).reshape(64, 576)
    return out
```

```python
def assemble_file(kernels):
    out = [k[2] for k in kernels]
    out.append('.amdgcn_target "amdgcn-amd-amdhsa--gfx950"\n.text')
    seen = []
    for k in kernels:
        if k[0] in seen: continue
        seen.append(k[0]); out.append(k[0])
    out.append('.section .rodata,"a"')
    seen = []
    for k in kernels:
        if k[1] in seen: continue
        seen.append(k[1]); out.append(k[1])
    return '\n'.join(out) + '\n'
```

```python
import sys
from mk import assemble_file
from k4 import gen_k4
from k123 import gen_k1, gen_k2, gen_k3
from k05 import gen_k0, gen_k5
def build_all(diag=False):
    return assemble_file([gen_k0(diag=diag), gen_k1(diag=diag), gen_k2(diag=diag), gen_k3(diag=diag), gen_k4(variant=('A',3), diag=diag), gen_k5(diag=diag)])
if __name__ == '__main__':
    out = sys.argv[1] if len(sys.argv) > 1 else 'sequential_preLN__spectral_gfnet__geglu_ffn__prompt.s'
    open(out, 'w').write(build_all(False))
```

```python
from asmlib import *
from layout import *
import math

def emit_ffn(a, P):
    import mega
    diag, R, FPX, UP, RATE0, WSC = P['diag'], P['R'], P['FPX'], P['UP'], P['RATE0'], P['WSC']
    chk_issue, chk_verify, flag_store0 = P['chk_issue'], P['chk_verify'], P['flag_store']
    V_L8, V_CK, stamp, rstamp, Ops = P['V_L8'], P['V_CK'], P['stamp'], P['rstamp'], P['Ops']
    L1 = 3; NG = 6
    ACT = 73728
    V_L16, V_B1, V_B1b, V_ACTW, V_B2, V_B2b = 1, 2, 3, 4, 5, 6
    V_C0, V_C1, V_IR = 10, 14, 18
    V_T = 24
    ACC = [48, 80]
    RING = 112
    BX = RING + 4*R
    NV = BX + 32
    assert NV <= 248
    def breg(bi): return vr(4*bi, 4, 'a') if bi < 64 else vr(BX + 4*(bi-64))
    a(f"""L_ffn:
    s_load_dwordx2 s[32:33], s[0:1], 56
    v_lshlrev_b32 v{V_L16}, 4, v9
    s_and_b32 s23, s2, 7
    s_lshr_b32 s24, s2, 3
    s_and_b32 s17, s23, {8//FPX-1}
    s_mul_i32 s17, s17, {FPX}
    s_and_b32 s25, s24, {FPX-1}
    s_add_u32 s17, s17, s25
    s_lshr_b32 s18, s23, {(8//FPX).bit_length()-1}
    s_mul_i32 s18, s18, {32//FPX}
    s_lshr_b32 s25, s24, {FPX.bit_length()-1}
    s_add_u32 s18, s18, s25
    s_lshl_b32 s40, s17, 12
    s_add_u32 s40, s40, {mega.FLW}
    s_add_u32 s41, s40, {8*4096}
    s_add_u32 s42, s40, {16*4096}
    s_lshl_b32 s43, s18, 11
    s_add_u32 s43, s43, {mega.FL3}
    s_bfm_b64 s[44:45], 54, 0
    s_bfm_b64 s[46:47], 18, 0""")
    chk_issue(40, 24, 'cw0', 44); chk_issue(41, 26, 'cw1', 44)
    a(f"""s_lshl_b32 s31, s17, 2
    s_add_u32 s31, s31, s16
    s_mul_i32 s20, s31, {WSTREAM}
    s_add_u32 s20, s20, {WS_W}
    s_mul_i32 s30, s18, 73728
    s_mul_i32 s22, s16, 3072
    s_add_u32 s21, s30, s22
    s_add_u32 s21, s21, {WS_HC}
    s_add_u32 s8, s12, s20
    s_addc_u32 s9, s13, 0
    s_mov_b32 s10, {WSTREAM}
    s_mov_b32 s11, 0x20000
    s_mov_b32 s19, 0
    s_mov_b32 m0, s22
    v_lshlrev_b32 v8, 2, v9
    s_mul_i32 s27, s18, {NSSQ*256}
    s_add_u32 s27, s27, {WS_SSQ}
    v_and_b32 v22, 15, v9
    v_lshrrev_b32 v23, 4, v9
    v_lshlrev_b32 v{V_B1}, 10, v23
    v_lshl_add_u32 v{V_B1}, v22, 4, v{V_B1}
    s_lshl_b32 s23, s16, 11
    s_add_u32 s23, s23, {ACT}
    v_lshrrev_b32 v{V_ACTW}, 1, v23
    v_lshlrev_b32 v{V_ACTW}, 10, v{V_ACTW}
    v_lshl_add_u32 v{V_ACTW}, v22, 4, v{V_ACTW}
    v_and_b32 v{V_B1b}, 1, v23
    v_lshl_add_u32 v{V_ACTW}, v{V_B1b}, 3, v{V_ACTW}
    v_add_u32 v{V_ACTW}, s23, v{V_ACTW}
    v_add_u32 v{V_B1b}, 36864, v{V_B1}
    v_add_u32 v{V_B2}, {ACT}, v{V_B1}
    v_add_u32 v{V_B2b}, 36864, v{V_B2}
    s_mul_i32 s26, s18, {9*65536}
    s_lshl_b32 s23, s31, 11
    s_add_u32 s26, s26, s23
    s_add_u32 s26, s26, {WS_P}
    s_mul_i32 s29, s18, {9*2048}
    s_lshl_b32 s23, s16, 9
    s_add_u32 s29, s29, s23
    s_add_u32 s29, s29, {mega.FL4}
    s_lshl_b32 s23, s17, 6
    s_add_u32 s28, s29, s23
    s_waitcnt lgkmcnt(0)
    s_mov_b32 s34, {NB}
    s_mov_b32 s35, 0x20000""")
    st = {'base': 0, 'cons': 0, 'wd_ok': False}
    NFR = 486
    def w_item(n):
        def f():
            assert n < 324 or st['wd_ok']
            if n - st['base'] >= 4:
                a(f's_add_u32 s19, s19, {(n-st["base"])*1024}'); st['base'] = n
            a.vmem(f'buffer_load_dwordx4 {vr(RING+4*(n%R))}, v{V_L16}, s[8:11], s19 offen offset:{(n-st["base"])*1024} {WSC}', ('w', n))
        return (n, f)
    nd = {'n': 0}
    def d_item(g, j):
        def f():
            if j == 0 and g > 0:
                a(f's_add_u32 s22, s22, 12288\ns_mov_b32 m0, s22\ns_add_u32 s21, s21, 12288')
            a.vmem(f'buffer_load_dwordx4 v{V_L16}, s[12:15], s21 offen offset:{j*1024} sc1 lds', ('dma', g)); nd['n'] += 1
        return (-1, f)
    def s_item(j):
        return (-1, lambda: a.vmem(f'buffer_load_dword v{V_T+j}, v8, s[12:15], s27 offen offset:{j*256} sc1', 'ssq'))
    a.wait(vm='pre'); flag_store0(58, None, 255)
    chk_verify(40, 24, 'cw0', 44, 32); chk_verify(41, 26, 'cw1', 44, 32)
    PRE = P['PRE']
    for n in range(PRE): w_item(n)[1]()
    Q = []
    nw = PRE
    for g in range(NG):
        Q += [d_item(g, j) for j in range(3)]
        while nw < 6*(g+1): Q.append(w_item(nw)); nw += 1
    Q += [s_item(j) for j in range(NSSQ)]
    Q += [w_item(n) for n in range(nw, NFR)]
    def pump(k):
        while k > 0 and Q and Q[0][0] - R < st['cons']:
            Q.pop(0)[1](); k -= 1
    stamp(a, 8, diag)
    a('s_cmp_lg_u32 s16, 0\ns_cbranch_scc1 L_c3skip')
    vm0 = list(a.vm)
    chk_issue(43, V_CK, 'c3', 46); chk_verify(43, V_CK, 'c3', 46, 4)
    a.vm = vm0
    a('L_c3skip:\ns_barrier')
    stamp(a, 9, diag)
    pump(UP)
    K0 = -2.0*math.log2(math.e)*math.sqrt(2.0/math.pi)
    def ln_ops():
        o = Ops(a)
        o.f(lambda: a.wait(vm='ssq'))
        for j in range(1, NSSQ): o.e(f'v_add_f32 v{V_T}, v{V_T}, v{V_T+j}')
        o.e(f'v_mov_b32 v{V_T+1}, {hexf(1e-5)}\nv_fmac_f32 v{V_T+1}, {hexf(1.0/576)}, v{V_T}\nv_lshlrev_b32 v{V_T+2}, 2, v22')
        for mt in range(4):
            o.f(lambda mt=mt: a.lds(f'ds_bpermute_b32 v{V_IR+mt}, v{V_T+2}, v{V_T+1} offset:{mt*64}', 'bp'))
        o.e('s_nop 0\ns_nop 0')
        o.f(lambda: a.wait(lg='bp'))
        for mt in range(4): o.e(f'v_rsq_f32 v{V_T+4+mt}, v{V_IR+mt}')
        o.e('s_nop 0')
        for mt in range(4): o.e(f'v_mul_f32 v{V_C0+mt}, {hexf(K0)}, v{V_T+4+mt}')
        for mt in range(4): o.e(f'v_mul_f32 v{V_T+8+mt}, v{V_T+4+mt}, v{V_T+4+mt}')
        for mt in range(4): o.e(f'v_mul_f32 v{V_C1+mt}, {hexf(0.044715)}, v{V_C0+mt}')
        for mt in range(4): o.e(f'v_mul_f32 v{V_C1+mt}, v{V_C1+mt}, v{V_T+8+mt}')
        return o
    def bread(bi, g1):
        off = (bi >> 2)*4096 + (bi & 3)*256
        base = (V_B1, V_B1b) if g1 else (V_B2, V_B2b)
        reg = base[0] if off < 36864 else base[1]
        if off >= 36864: off -= 36864
        return lambda: a.lds(f'ds_read_b128 {breg(bi)}, v{reg} offset:{off}', ('b', bi))
    def gelu_ops(acc, t):
        o = Ops(a)
        toff = t*8192
        if t == 8:
            o.e(f'v_add_u32 v{V_ACTW}, 0x10000, v{V_ACTW}'); toff = 0
        for mt in range(4):
            g = [acc + 4*mt + i for i in range(4)]
            u = [x + 16 for x in g]
            oo = V_T + 16 + 2*mt
            T = [V_T + 8*(mt & 1) + i for i in range(4)]
            Qr = [x + 4 for x in T]
            for i in range(4): o.e(f'v_mul_f32 v{T[i]}, v{g[i]}, v{g[i]}')
            for i in range(4): o.e(f'v_fma_f32 v{T[i]}, v{T[i]}, v{V_C1+mt}, v{V_C0+mt}')
            for i in range(4): o.e(f'v_mul_f32 v{T[i]}, v{T[i]}, v{g[i]}')
            for i in range(4): o.e(f'v_exp_f32 v{T[i]}, v{T[i]}\nv_mul_f32 v{Qr[i]}, v{g[i]}, v{u[i]}')
            for i in range(4): o.e(f'v_fma_f32 v{T[i]}, v{T[i]}, v{V_IR+mt}, v{V_IR+mt}')
            for i in range(4): o.e(f'v_rcp_f32 v{T[i]}, v{T[i]}')
            for i in range(4): o.e(f'v_mul_f32 v{Qr[i]}, v{Qr[i]}, v{T[i]}')
            o.e(f'v_cvt_pk_bf16_f32 v{oo}, v{Qr[0]}, v{Qr[1]}\nv_cvt_pk_bf16_f32 v{oo+1}, v{Qr[2]}, v{Qr[3]}')
            o.f(lambda mt=mt, oo=oo: a.lds(f'ds_write_b64 v{V_ACTW}, {vr(oo,2)} offset:{toff+mt*256}', 'aw'))
        return o
    def barrier_ops():
        return [lambda: (a.wait(lg='aw'), a('s_barrier'))]
    pend_flags = []
    def flag_store(sig):
        if sig == 0: a(f's_add_u32 s25, s28, {8*2048}')
        else: a(f's_add_u32 s25, s17, {sig}\ns_and_b32 s25, s25, 7\ns_lshl_b32 s25, s25, 11\ns_add_u32 s25, s25, s28')
        flag_store0(25)
    def flush_flags():
        while pend_flags:
            s = pend_flags.pop(0); a.wait(vm=[('st', s)]); flag_store(s)
    cnt = {'i': 0}
    def run(mf, fillers, lo=0, hi=None, rate=2):
        n = len(mf)
        if hi is None: hi = n
        span = max(hi - lo, 1)
        done = 0
        for i, (nfr, bi, txt, last) in enumerate(mf):
            while any(q[0] == nfr for q in Q[:40]): pump(1)
            a.wait(vm=[('w', nfr)], lg=[('b', bi)])
            a(txt)
            if last: st['cons'] = nfr + 1
            cnt['i'] += 1
            if cnt['i'] % rate == 0: pump(1)
            if pend_flags and a.done(('st', pend_flags[0])): flag_store(pend_flags.pop(0))
            if i >= lo:
                want = min(len(fillers), -(-len(fillers)*(i-lo+1)//span))
                while done < want:
                    fillers[done](); done += 1
        while done < len(fillers):
            fillers[done](); done += 1
    fr = {'n': 0}
    def g1_tile(acc):
        mf = []
        for s0 in range(0, 18, L1):
            for mat in range(2):
                n0 = fr['n']; fr['n'] += L1
                for mt in range(4):
                    for j in range(L1):
                        s = s0 + j; n = n0 + j; d = acc + 16*mat + 4*mt
                        c = '0' if s == 0 else vr(d)
                        mf.append((n, 4*s+mt, f'v_mfma_f32_16x16x32_bf16 {vr(d)}, {vr(RING+4*(n%R))}, {breg(4*s+mt)}, {c}', mt == 3))
        return mf
    def g2_part(d0, groups):
        mf = []
        for (s0, L) in groups:
            n0 = fr['n']; fr['n'] += L
            for mt in range(4):
                for j in range(L):
                    s = s0 + j; n = n0 + j; d = d0 + 4*mt
                    c = '0' if s == 0 else vr(d)
                    mf.append((n, 4*s+mt, f'v_mfma_f32_16x16x32_bf16 {vr(d)}, {vr(RING+4*(n%R))}, {breg(4*s+mt)}, {c}', mt == 3))
        return mf
    def first_use(mf):
        o = []
        for m in mf:
            if m[1] not in o: o.append(m[1])
        return o
    mf = g1_tile(ACC[0])
    per = len(mf)//NG
    def grp_ready(g):
        def f():
            assert nd['n'] >= 3*(g+1)
            a.wait(vm=[('dma', g)])
            a('s_barrier')
        return f
    grp_ready(0)()
    for f in [bread(bi, True) for bi in first_use(mf[:per])]: f()
    for g in range(NG):
        part = mf[g*per:(g+1)*per]
        if g < NG-1:
            nxt = [grp_ready(g+1)] + [bread(bi, True) for bi in first_use(mf[(g+1)*per:(g+2)*per])]
            run(part, nxt, per//2, per-2, rate=RATE0)
        else:
            run(part, [], rate=RATE0)
    stamp(a, 10, diag and not P['FE'])
    dly = 10
    def wd_ok():
        chk_verify(42, V_CK, 'cwd', 44); st['wd_ok'] = True
    for t in range(1, 8):
        mf = g1_tile(ACC[t & 1])
        extra = []
        if t == 5: extra = [lambda: chk_issue(42, V_CK, 'cwd', 44)]
        if t == 6: extra = [wd_ok]
        run(mf, (ln_ops() if t == 1 else []) + gelu_ops(ACC[(t-1) & 1], t-1) + extra, dly if t > 1 else 0, len(mf)-2)
    mf = g1_tile(ACC[0])
    cut = (len(mf)*2)//3
    run(mf[:cut], gelu_ops(ACC[1], 7) + barrier_ops(), dly)
    G16 = [(0,4),(4,4),(8,4),(12,4)]; G2 = [(16,2)]
    order = []
    for (s0, L) in G16:
        for mt in range(4):
            for j in range(L): order.append(4*(s0+j)+mt)
    lastuse = {}
    for i, m in enumerate(mf): lastuse[m[1]] = i
    pend = list(order)
    for i in range(cut, len(mf)):
        run([mf[i]], [])
        if pend and lastuse[pend[0]] <= i: bread(pend.pop(0), False)()
    stamp(a, 11, diag and not P['FE'])
    def out_ops(acc, sig):
        o = Ops(a)
        oo = V_T + 8*(sig & 1)
        if sig == 0: o.f(lambda: a(f's_add_u32 s24, s26, {8*65536}'))
        else: o.f(lambda: a(f's_add_u32 s24, s17, {sig}\ns_and_b32 s24, s24, 7\ns_lshl_b32 s24, s24, 16\ns_add_u32 s24, s24, s26'))
        for hf in range(2):
            for i in range(4): o.e(f'v_cvt_pk_bf16_f32 v{oo+4*hf+i}, v{acc+8*hf+2*i}, v{acc+8*hf+2*i+1}')
            o.f(lambda hf=hf: a.vmem(f'buffer_store_dwordx4 {vr(oo+4*hf)}, v{V_L16}, s[12:15], s24 offen offset:{hf*1024} sc1', ('st', sig)))
        o.f(lambda: pend_flags.append(sig))
        return o
    A4 = [ACC[1], ACC[1]+16, ACC[0], ACC[0]+16]
    mf = g2_part(A4[0], G16) + g2_part(A4[1], G16)
    k = max(len(pend), 10)
    run(mf[:k], [bread(bi, False) for bi in pend])
    late = [bread(4*s+mt, False) for mt in range(4) for s in (16, 17)]
    run(mf[k:], gelu_ops(ACC[0], 8) + barrier_ops() + late, 0, len(mf)-k-6)
    run(g2_part(A4[0], G2) + g2_part(A4[1], G2), [])
    G6 = [(0,6),(6,6),(12,6)]
    RES = V_T + 16
    MU = V_C1
    CS = V_IR
    CR = V_C0
    V_OUT, V_OUTC, V_CL = V_B2, V_B2b, V_B1b
    def res_ops():
        o = Ops(a)
        o.e(f's_lshl_b32 s23, s17, 13\ns_sub_u32 s23, s23, {ACT+65536}\nv_add_u32 v{V_B1}, s23, v{V_ACTW}')
        for mt in range(4): o.f(lambda mt=mt: a.lds(f'ds_read_b64 {vr(RES+2*mt,2)}, v{V_B1} offset:{mt*256}', 'res'))
        o.e(f's_lshr_b32 s38, s17, 1\ns_lshl_b32 s23, s38, 8\ns_sub_u32 s23, s23, {ACT}\nv_add_u32 v{V_B1}, s23, v{V_ACTW}')
        o.f(lambda: a.lds(f'ds_read_b64 {vr(CR,2)}, v{V_B1}', 'res'))
        o.e(f'v_lshlrev_b32 v8, 2, v22\ns_lshl_b32 s23, s18, 8\ns_add_u32 s23, s23, {WS_MU}')
        for mt in range(4): o.f(lambda mt=mt: a.vmem(f'buffer_load_dword v{MU+mt}, v8, s[12:15], s23 offen offset:{mt*64} sc1', 'mu'))
        o.e(f's_lshl_b32 s39, s38, 6\ns_add_u32 s23, s23, s39')
        o.f(lambda: a.vmem(f'buffer_load_dword v{CR+2}, v8, s[12:15], s23 offen sc1', 'mu'))
        o.e(f'''s_mov_b32 s23, 73728
        v_mul_lo_u32 v{V_OUT}, v22, s23
        v_lshl_add_u32 v{V_OUT}, v23, 3, v{V_OUT}
        v_lshrrev_b32 v{V_CL}, 3, v9
        v_xor_b32 v{V_CL}, s17, v{V_CL}
        v_lshlrev_b32 v{V_CL}, 31, v{V_CL}
        v_or_b32 v{V_OUTC}, v{V_CL}, v{V_OUT}
        v_or_b32 v{V_CL}, v{V_CL}, v{V_L16}
        s_mul_i32 s36, s18, 2304
        s_lshl_b32 s23, s16, 5
        s_add_u32 s36, s36, s23
        s_lshl_b32 s23, s17, 13
        s_sub_u32 s37, s26, s23
        s_lshr_b32 s23, s38, 1
        s_lshl_b32 s48, s23, 10
        s_mul_i32 s49, s23, 1152
        s_and_b32 s23, s38, 1
        s_mul_i32 s50, s23, {16*73728}
        s_add_u32 s49, s49, s50
        s_add_u32 s49, s49, s36
        s_lshl_b32 s23, s23, 3
        s_add_u32 s48, s48, s23
        s_add_u32 s48, s48, s37
        s_add_u32 s48, s48, {8*65536}
        s_lshl_b32 s23, s17, 16
        s_add_u32 s37, s37, s23
        s_lshl_b32 s40, s17, 11
        s_add_u32 s40, s40, s29
        s_add_u32 s41, s29, {8*2048}
        s_lshl_b32 s23, 0x0f0f, s17
        s_lshr_b32 s44, s23, 4
        s_and_b32 s44, s44, 0xff
        s_mov_b32 s45, 0
        s_lshl_b32 s23, 0x0e0e, s17
        s_lshr_b32 s46, s23, 8
        s_and_b32 s46, s46, 0xff
        s_mov_b32 s47, 0
        s_mov_b32 s52, 0xff
        s_mov_b32 s53, 0''')
        return o
    def accum(o, dst, src, n, t0):
        for i in range(n):
            o.e(f'v_lshlrev_b32 v{t0}, 16, v{src+i}\nv_and_b32 v{t0+1}, 0xffff0000, v{src+i}\nv_add_f32 v{dst+2*i}, v{dst+2*i}, v{t0}\nv_add_f32 v{dst+2*i+1}, v{dst+2*i+1}, v{t0+1}')
    SUM = A4[1]
    def pload(d, reg):
        a(f's_sub_u32 s23, s17, {d}\ns_and_b32 s23, s23, 7\ns_lshl_b32 s23, s23, 13\ns_add_u32 s23, s23, s37')
        for hf in range(2):
            a.vmem(f'buffer_load_dwordx4 {vr(reg[hf])}, v{V_L16}, s[12:15], s23 offen offset:{hf*1024} sc1', ('p', d))
    for sig in range(2, 8):
        if P.get('G2S'): stamp(a, sig-1, diag)
        f = out_ops(A4[(sig-1) & 3], sig-1)
        if sig == 2: f = out_ops(A4[0], 0) + f
        if sig == 4: f = f + res_ops()
        if sig == 7:
            o = Ops(a)
            o.f(lambda: a.wait(vm='mu', lg='res'))
            for i in range(16): o.e(f'v_mov_b32 v{SUM+i}, v{MU+(i>>2)}')
            accum(o, SUM, RES, 8, 7)
            for i in range(4): o.e(f'v_mov_b32 v{CS+i}, v{CR+2}')
            accum(o, CS, CR, 2, 7)
            o.f(lambda: chk_issue(40, V_CK, 'cA', 44))
            o.f(lambda: chk_issue(41, CR, 'cC', 52))
            f = f + o
            run(g2_part(A4[sig & 3], G6), f, 8, 66)
        else:
            run(g2_part(A4[sig & 3], G6), f, 8, min(70, 8 + 2*len(f)))
    if P.get('G2S'): stamp(a, 7, diag)
    assert not Q
    free = [RING + 4*(n % R) for n in range(NFR-R, NFR-18)]
    assert len(free) >= 8
    CL = A4[2]
    o = out_ops(A4[3], 7)
    def stageA():
        chk_verify(40, V_CK, 'cA', 44)
        for d in range(1, 5): pload(d, free[2*d-2:2*d])
        chk_verify(41, CR, 'cC', 52)
        for p in range(8):
            a.vmem(f'buffer_load_dwordx2 {vr(CL+2*p,2)}, v{V_CL}, s[12:15], s48 offen sc1', 'cl')
            if p < 7: a('s_add_u32 s48, s48, 8192')
    o.f(stageA)
    mf = g2_part(A4[0], G6)
    run(mf[:24], o, 8, 22)
    if P.get('G2S'): stamp(a, 8, diag)
    run(mf[24:48], [])
    if P.get('G2S'): stamp(a, 9, diag)
    o = Ops(a)
    o.f(flush_flags)
    for d in range(1, 5):
        o.f(lambda d=d: a.wait(vm=[('p', d)]))
        for hf in range(2): accum(o, SUM+8*hf, free[2*d-2+hf], 4, 7)
    n1 = 60
    run(mf[48:], o[:n1])
    stamp(a, 12, diag and not P['FE'])
    chk_issue(40, V_CK, 'cB', 46)
    for f in o[n1:]: f()
    o = Ops(a)
    o.f(lambda: a.wait(vm='cl'))
    for p in range(8): accum(o, CS, CL+2*p, 2, 7)
    o.e(f'v_cvt_pk_bf16_f32 v{CR}, v{CS}, v{CS+1}\nv_cvt_pk_bf16_f32 v{CR+1}, v{CS+2}, v{CS+3}')
    for f in o: f()
    a.vmem(f'buffer_store_dwordx2 {vr(CR,2)}, v{V_OUTC}, s[32:35], s49 offen offset:1024', 'out')
    chk_verify(40, V_CK, 'cB', 46)
    stamp(a, 13, diag and not P['FE'])
    for d in range(5, 8): pload(d, [RING+8*(d-5), RING+8*(d-5)+4])
    OWN = A4[0]
    for i in range(16): a(f'v_add_f32 v{SUM+i}, v{SUM+i}, v{OWN+i}')
    a(f's_lshl_b32 s23, s17, 7\ns_add_u32 s23, s23, s36\ns_add_u32 s24, s23, {16*73728}')
    for d in range(5, 8):
        a.wait(vm=[('p', d)])
        o = Ops(a); accum(o, SUM, RING+8*(d-5), 8, 7)
        for f in o: f()
    for mt in range(4):
        a(f'v_cvt_pk_bf16_f32 v{RES+2*mt}, v{SUM+4*mt}, v{SUM+4*mt+1}\nv_cvt_pk_bf16_f32 v{RES+2*mt+1}, v{SUM+4*mt+2}, v{SUM+4*mt+3}')
        a.vmem(f'buffer_store_dwordx2 {vr(RES+2*mt,2)}, v{V_OUT}, s[32:35], s{23+(mt&1)} offen offset:{(mt>>1)*1152}', 'out')
    return NV
```

```python
from asmlib import *
from layout import *
import math

KNAME = 'sequential_preLN__spectral_gfnet__geglu_ffn__prompt_kernel'
FLB = 0x2E00000
FL1 = FLB
FL2 = FL1 + 9*4096
FL3 = FL2 + 9*4096
FLW = FL3 + 32*2048
FLG = FLW + 24*4096
FL4 = FLG + 9*1024
LDS_ST = 147456
LDS_SY = LDS_ST + 1536
LDS_TOTAL = LDS_SY + 64
LDS_W = 36864
WS_JUNK = 0x09C0000
TOK = 56
SPIN = 300000

def stamp(a, idx, on):
    if on: a(f's_memtime s[{60+2*idx}:{61+2*idx}]')
def rstamp(a, idx, on):
    if on: a(f's_memrealtime s[{60+2*idx}:{61+2*idx}]')

def srd(a, d, lo, size):
    a(f's_mov_b32 s{d}, s{lo}\ns_mov_b32 s{d+1}, s{lo+1}\ns_mov_b32 s{d+2}, {size}\ns_mov_b32 s{d+3}, 0x20000')

def spread(a, mf, fillers, lo=0, hi=None):
    n = len(mf)
    if hi is None: hi = n
    span = max(hi - lo, 1); done = 0
    for i, m in enumerate(mf):
        m()
        if i >= lo:
            want = min(len(fillers), -(-len(fillers)*(i-lo+1)//span))
            while done < want:
                fillers[done](); done += 1
    while done < len(fillers):
        fillers[done](); done += 1

class Ops(list):
    def __init__(self, a): super().__init__(); self.a = a
    def e(self, s):
        for line in s.split('\n'):
            if line.strip(): self.append(lambda line=line: self.a(line))
    def f(self, fn): self.append(fn)

def gen_mega(diag=False, R=26, FPX=2, UP=12, RATE0=2, WSC='sc1', NOSHUF=False, SLEEP=0, FE=False, PACE=1, PRE=16, G1=18, G2S=False):
    a = Asm()
    name = KNAME
    lbl = {'n': 0}
    def L(p):
        lbl['n'] += 1; return f'L_{p}{lbl["n"]}'
    V_L8 = 250
    V_F0 = 251
    V_TK = 252
    V_MU = 254
    V_CK = 248

    def chk_ld(soff, vdst, smask):
        ld = f'buffer_load_dwordx2 {vr(vdst,2)}, v{V_L8}, s[12:15], s{soff} offen sc1'
        if smask is None: return ld
        return f's_mov_b64 exec, s[{smask}:{smask+1}]\n{ld}\ns_mov_b64 exec, -1'
    def chk_issue(soff, vdst, tag, smask=None):
        a(chk_ld(soff, vdst, smask)); a.vm.append(tag)
    def chk_verify(soff, vdst, tag, smask, sleep=None):
        a.wait(vm=[tag])
        ok, lp = L('ok'), L('lp')
        test = f'v_cmp_eq_u64 vcc, s[{TOK}:{TOK+1}], {vr(vdst,2)}\ns_nop 1\n'
        test += (f's_orn2_b64 vcc, vcc, s[{smask}:{smask+1}]\n' if smask is not None else '') + 's_cmp_eq_u64 vcc, -1\n'
        a(test + f's_cbranch_scc1 {ok}\ns_mov_b32 s59, {SPIN}\n{lp}:')
        sl = SLEEP if sleep is None else sleep
        if sl: a(f's_sleep {sl}')
        a(chk_ld(soff, vdst, smask) + f'\ns_waitcnt vmcnt(0)\ns_sub_u32 s59, s59, 1\ns_cbranch_scc1 {ok}')
        a(test + f's_cbranch_scc0 {lp}\n{ok}:')
    def flag_store(soff, vt=None, vf=None):
        a.vmem(f'buffer_store_dwordx2 {vr(vt or V_TK,2)}, v{vf or V_F0}, s[12:15], s{soff} offen sc1', 'fl')
    def tok_issue():
        a.vmem(f'buffer_load_dwordx2 {vr(V_TK,2)}, off, s[36:39], 0 sc1', 'tok')
    def tok_verify():
        a.wait(vm='tok')
        ok, lp = L('ok'), L('lp')
        rd = f'v_readfirstlane_b32 s{TOK}, v{V_TK}\nv_readfirstlane_b32 s{TOK+1}, v{V_TK+1}\ns_nop 1\ns_cmp_lg_u32 s{TOK}, 0\n'
        a(rd + f's_cbranch_scc1 {ok}\ns_mov_b32 s59, {SPIN}\n{lp}:')
        a(f's_sleep 4\nbuffer_load_dwordx2 {vr(V_TK,2)}, off, s[36:39], 0 sc1\ns_waitcnt vmcnt(0)\ns_sub_u32 s59, s59, 1\ns_cbranch_scc1 {ok}')
        a(rd + f's_cbranch_scc0 {lp}\n{ok}:')
    def lds_arrive(k, vt):
        a.waitall(vm=False)
        a(f'v_mov_b32 v{vt}, {LDS_SY+4*k}\nv_mov_b32 v{vt+1}, 1')
        a.lds(f'ds_add_u32 v{vt}, v{vt+1}', 'arr')
    def lds_wait(k, vt, n=192):
        lp = L('ls')
        a(f'v_mov_b32 v{vt}, {LDS_SY+4*k}\n{lp}:\nds_read_b32 v{vt+1}, v{vt}\ns_waitcnt lgkmcnt(0)\nv_readfirstlane_b32 s59, v{vt+1}\ns_nop 1\ns_cmp_ge_u32 s59, {n}\ns_cbranch_scc0 {lp}')
        a.lg = []

    a.raw(kernel_header(name))
    a(f'''s_cmp_ge_u32 s2, 256
    s_cbranch_scc1 L_end
    s_getpc_b64 s[44:45]
    L_pc:
    s_load_dwordx2 s[4:5], s[0:1], 0
    s_load_dwordx4 s[36:39], s[0:1], 64''')
    if diag:
        for i in range(1, 16): a(f's_mov_b64 s[{60+2*i}:{61+2*i}], 0')
        a('s_memtime s[60:61]\ns_memrealtime s[92:93]')
    a(f'''v_lshrrev_b32 v8, 6, v0
    v_and_b32 v9, 63, v0
    v_readfirstlane_b32 s16, v8
    v_lshlrev_b32 v{V_L8}, 6, v9
    v_min_u32 v{V_F0}, 1, v9
    v_lshlrev_b32 v{V_F0}, 31, v{V_F0}
    s_cmp_lg_u32 s16, 3
    s_cbranch_scc1 L_nopf
    s_mov_b32 s46, L_codeend - L_pc
    s_mov_b32 s47, 0x20000
    v_lshlrev_b32 v11, 7, v9''')
    for i in range(7):
        a(f'buffer_load_dword v16, v11, s[44:47], 0 offen')
        if i < 6: a('v_add_u32 v11, 8192, v11')
    a(f'''s_branch L_side
    L_nopf:
    s_cmp_ge_u32 s2, 192
    s_cbranch_scc1 L_side''')
    def ws_srd():
        a(f'''s_waitcnt lgkmcnt(0)
        s_mov_b32 s12, s38
        s_mov_b32 s13, s39
        s_mov_b32 s14, {WS_SIZE}
        s_mov_b32 s15, 0x20000
        s_mov_b32 s38, 256
        s_mov_b32 s39, 0x20000''')

    XV = 16; TB = 64; ACC = [136, 168]; XB = 200; TW = 216; ST = 222; TMP = 230
    def xreg(t, s): return vr(XV + 12*t + 4*s) if s < 3 else vr(24*t + 4*(s-3), 4, 'a')
    a(f'''s_and_b32 s33, s2, 7
    s_lshr_b32 s34, s2, 3
    s_mul_i32 s17, s34, 43
    s_lshr_b32 s17, s17, 7
    s_mul_i32 s18, s17, 3
    s_sub_u32 s18, s34, s18
    s_lshl_b32 s23, s33, 3
    s_add_u32 s17, s17, s23
    s_mul_i32 s19, s18, 3
    s_add_u32 s19, s19, s16
    v_and_b32 v1, 31, v9
    v_lshrrev_b32 v2, 5, v9
    v_lshrrev_b32 v3, 2, v1
    s_mov_b32 s23, 73728
    v_mul_lo_u32 v4, v3, s23
    v_and_b32 v5, 3, v9
    v_lshl_add_u32 v4, v5, 4, v4
    v_lshl_add_u32 v4, v2, 6, v4
    s_mul_i32 s20, s17, 1152''')
    for g in range(3):
        a(f'''s_add_u32 s23, s16, {g}
        s_cmp_ge_u32 s23, 3
        s_cselect_b32 s24, 3, 0
        s_sub_u32 s{28+g}, s23, s24
        s_mul_i32 s23, s{28+g}, 384
        s_add_u32 s{25+g}, s20, s23''')
    def xload(t, s):
        if s % 3 == 0: a(f's_add_u32 s23, s{25+s//3}, {t*8*73728}')
        a.vmem(f'buffer_load_dwordx4 {xreg(t,s)}, v4, s[8:11], s23 offen offset:{128*(s%3)}', ('x', t, s))
    rest = [(t, g) for t in range(4) for g in (1, 2)]
    a(f'''s_lshl_b32 s23, s19, 5
    s_add_u32 s23, s23, 1
    v_add_u32 v6, s23, v1
    v_cvt_f32_u32 v6, v6
    v_mul_f32 v7, {hexf(1.0/576)}, v6
    v_mul_f32 v10, {hexf(1.0/18)}, v6
    v_cvt_f32_u32 v11, v2''')
    for s in range(9):
        if s == 1:
            ws_srd(); srd(a, 8, 4, NB)
            for t in range(4):
                for q in range(3): xload(t, q)
        a(f'''s_mul_i32 s23, s{28+s//3}, 6
        s_add_u32 s23, s23, {2*(s%3)}
        v_cvt_f32_u32 v12, s23
        v_add_f32 v12, v12, v11
        v_mul_f32 v12, v12, v10
        v_fract_f32 v12, v12''')
        for e in range(0, 8, 2):
            c = TMP + 4*((e//2) & 1)
            a(f'''v_add_f32 v13, v12, v7
            v_cos_f32 v{c}, v12
            v_sin_f32 v{c+2}, v12
            v_cos_f32 v{c+1}, v13
            v_sin_f32 v{c+3}, v13
            v_add_f32 v12, v13, v7
            v_cvt_pk_bf16_f32 v{TB+8*s+e//2}, v{c}, v{c+1}
            v_cvt_pk_bf16_f32 v{TB+8*s+4+e//2}, -v{c+2}, -v{c+3}''')
        if s >= 7:
            for (t, g) in rest[2*(s-7):2*(s-7)+2]:
                for q in range(3): xload(t, 3*g+q)
    a(f'v_mul_f32 v12, {hexf(1.0/72)}, v6\nv_add_f32 v13, v12, v12\nv_add_f32 v14, v13, v12')
    for c in range(3):
        a(f'v_cos_f32 v{TW+2*c}, v{12+c}\nv_sin_f32 v{TW+2*c+1}, -v{12+c}')
    stamp(a, 1, diag)
    a(f'v_mov_b32 v15, 0x3f803f80')
    for i in range(8): a(f'v_mov_b32 v{ST+i}, 0')
    for t in range(4):
        a.wait(vm=[('x', t, 2)])
        for i in range(12):
            x = XV + 12*t + i
            a(f'v_dot2c_f32_bf16 v{ST+2*t}, v{x}, v15\nv_dot2c_f32_bf16 v{ST+2*t+1}, v{x}, v{x}')
        tt, g = rest[4+t]
        for q in range(3): xload(tt, 3*g+q)
    tok_issue()
    a('s_nop 2')
    for perm in ('[1,0,3,2]', '[2,3,0,1]'):
        for i in range(8): a(f'v_add_f32_dpp v{ST+i}, v{ST+i}, v{ST+i} quad_perm:{perm} row_mask:0xf bank_mask:0xf')
    a(f'''s_lshl_b32 s23, s16, 9
    s_add_u32 s23, s23, {LDS_ST}
    v_lshlrev_b32 v12, 8, v2
    v_lshl_add_u32 v12, v3, 3, v12
    v_add_u32 v12, s23, v12''')
    for t in range(4): a.lds(f'ds_write_b64 v12, {vr(ST+2*t,2)} offset:{64*t}', 'sw')
    a('s_barrier')
    lds_arrive(0, 12)

    def tile_mf(t):
        acc = ACC[t & 1]; mf = []
        for s in range(9):
            for cs in range(2):
                d = vr(acc+16*cs, 16)
                def f(s=s, cs=cs, d=d):
                    a.wait(vm=[('x', t, s)])
                    a(f'v_mfma_f32_32x32x16_bf16 {d}, {xreg(t,s)}, {vr(TB+8*s+4*cs)}, {"0" if s == 0 else d}')
                mf.append(f)
        return mf
    def combine(t):
        acc = ACC[t & 1]; o = Ops(a)
        for c in range(1, 4):
            tr, ti = TW+2*(c-1), TW+2*(c-1)+1
            for j in range(4):
                o.e(f'v_fmac_f32 v{acc+4*j}, v{tr}, v{acc+4*j+c}\nv_fmac_f32 v{acc+16+4*j}, v{tr}, v{acc+16+4*j+c}')
            for j in range(4):
                o.e(f'v_fma_f32 v{acc+4*j}, -v{ti}, v{acc+16+4*j+c}, v{acc+4*j}\nv_fmac_f32 v{acc+16+4*j}, v{ti}, v{acc+4*j+c}')
        for j in range(4): o.e(f'v_cvt_pk_bf16_f32 v{XB+4*t+j}, v{acc+4*j}, v{acc+16+4*j}')
        return o
    def stat_ops():
        o = Ops(a)
        o.f(lambda: lds_wait(0, 12))
        o.e(f'v_mul_u32_u24 v12, 768, v2\nv_lshl_add_u32 v12, v1, 3, v12\nv_add_u32 v12, {LDS_ST}, v12')
        for p in range(3): o.f(lambda p=p: a.lds(f'ds_read_b64 {vr(ST+2*p,2)}, v12 offset:{256*p}', 'sr'))
        o.e('s_nop 0\ns_nop 0')
        o.f(lambda: a.wait(lg='sr'))
        o.e(f'''v_add_f32 v{ST}, v{ST}, v{ST+2}
        v_add_f32 v{ST+1}, v{ST+1}, v{ST+3}
        v_add_f32 v{ST}, v{ST}, v{ST+4}
        v_add_f32 v{ST+1}, v{ST+1}, v{ST+5}
        v_mov_b32 v{ST+2}, v{ST}
        v_mov_b32 v{ST+3}, v{ST+1}
        s_nop 1
        v_permlane32_swap_b32 v{ST}, v{ST+2}
        v_permlane32_swap_b32 v{ST+1}, v{ST+3}
        s_nop 1
        v_add_f32 v{ST}, v{ST}, v{ST+2}
        v_add_f32 v{ST+1}, v{ST+1}, v{ST+3}
        v_mul_f32 v{V_MU}, {hexf(1.0/576)}, v{ST}
        v_mov_b32 v{ST+2}, {hexf(1e-5)}
        v_fmac_f32 v{ST+2}, {hexf(1.0/576)}, v{ST+1}
        v_fma_f32 v{ST+2}, -v{V_MU}, v{V_MU}, v{ST+2}
        v_max_f32 v{ST+2}, {hexf(1e-5)}, v{ST+2}
        v_rsq_f32 v{ST+2}, v{ST+2}
        v_lshlrev_b32 v12, 2, v2
        v_lshlrev_b32 v13, 2, v1''')
        for n in range(16): o.f(lambda n=n: a.lds(f'ds_bpermute_b32 v{TMP+n}, v12, v{ST+2} offset:{8*n}', 'bp'))
        o.e(f's_lshl_b32 s23, s17, 7\ns_add_u32 s23, s23, {WS_MU}\ns_cmp_eq_u32 s19, 0\ns_cselect_b32 s24, 0, 0x80000000\nv_or_b32 v13, s24, v13')
        o.f(lambda: a.vmem(f'buffer_store_dword v{V_MU}, v13, s[12:15], s23 offen sc1', 'st1'))
        return o
    A1R = XV
    def a1_ops(lo, hi):
        o = Ops(a)
        if lo == 0:
            o.f(lambda: a.wait(lg='bp'))
            o.e(f'''v_lshl_add_u32 v12, v2, 6, s17
            v_mul_u32_u24 v12, v12, v1
            v_cvt_f32_u32 v12, v12
            v_mul_f32 v12, {hexf(1.0/2048)}, v12
            v_cvt_f32_u32 v13, v1
            v_mul_f32 v13, {hexf(1.0/16)}, v13''')
        for n in range(lo, hi):
            o.e(f'''v_cos_f32 v14, v12
            v_sin_f32 v15, v12
            v_add_f32 v12, v12, v13
            v_mul_f32 v14, v14, v{TMP+n}
            v_mul_f32 v15, v15, v{TMP+n}
            v_cvt_pk_bf16_f32 v{A1R+n}, v14, v15
            v_cvt_pk_bf16_f32 v{TMP+n}, -v15, v14''')
        return o
    spread(a, tile_mf(0), stat_ops(), 4)
    spread(a, tile_mf(1), a1_ops(0, 4) + combine(0), 0)
    spread(a, tile_mf(2), a1_ops(4, 10) + combine(1), 0)
    o3 = Ops(a)
    o3.e(f'''s_mov_b32 s23, 73728
    v_mul_lo_u32 v5, v1, s23
    v_lshl_add_u32 v5, v2, 5, v5
    s_lshl_b32 s23, s19, 6
    s_add_u32 s24, s20, s23''')
    for q in range(4):
        o3.f(lambda q=q: a.vmem(f'buffer_load_dwordx4 {vr(240+4*q,4,"a")}, v5, s[8:11], s24 offen offset:{(q>>1)*576+(q&1)*16}', 'x3'))
    spread(a, tile_mf(3), o3 + a1_ops(10, 16) + combine(2), 0)
    O = ACC[0]
    def st2(t):
        return [lambda: a(f'v_mfma_f32_32x32x16_bf16 {vr(O,16)}, {vr(A1R+4*t)}, {vr(XB+4*t)}, {"0" if t == 0 else vr(O,16)}'),
                lambda: a(f'v_mfma_f32_32x32x16_bf16 {vr(O+16,16)}, {vr(TMP+4*t)}, {vr(XB+4*t)}, {"0" if t == 0 else vr(O+16,16)}')]
    a('s_nop 1')
    m = st2(0) + st2(1) + st2(2)
    m[0](); m[1](); a('s_nop 7')
    spread(a, m[2:], combine(3), 0)
    a('s_nop 1')
    for f in st2(3): f()
    a(f'''s_mov_b32 s23, 294912
    v_mul_lo_u32 v12, v2, s23
    v_lshl_add_u32 v12, v1, 4, v12
    s_lshl_b32 s22, s19, 6
    s_add_u32 s22, s22, s17
    s_lshl_b32 s23, s22, 9
    s_add_u32 s23, s23, {WS_Z1}
    s_lshl_b32 s22, s22, 6
    s_add_u32 s22, s22, {FL1}
    s_nop 4''')
    for j in range(4):
        for i in range(4): a(f'v_cvt_pk_bf16_f32 v{XB+4*j+i}, v{O+4*j+i}, v{O+16+4*j+i}')
        a.vmem(f'buffer_store_dwordx4 {vr(XB+4*j)}, v12, s[12:15], s23 offen sc1', 'st1')
        if j < 3: a(f's_add_u32 s23, s23, {2*294912}')
    stamp(a, 2, diag)
    tok_verify()

    Z = 16; WR = 32; WI = 48; XR = 64; XI = 80; Y = 96; AT = 112; TI = 32
    def areg(mt, v, sg): return AT + ((mt*2 + v)*4 + sg)*4
    a(f'''s_mul_i32 s24, s34, 3
    s_add_u32 s24, s24, s16
    s_lshr_b32 s20, s24, 3
    s_and_b32 s21, s24, 7
    v_and_b32 v3, 15, v9
    v_lshrrev_b32 v4, 4, v9
    s_lshl_b32 s27, s19, 10
    s_add_u32 s27, s27, {FLG}
    s_bfm_b64 s[30:31], 9, 0''')
    chk_issue(27, V_CK, 'cg', 30)
    for i in range(32): a(f'v_mov_b32 v{WR+i}, 0')
    a.wait(vm='st1'); stamp(a, 3, diag); flag_store(22)
    a(f'''v_cvt_f32_u32 v5, v3
    v_mul_f32 v5, {hexf(1.0/64)}, v5
    v_cvt_f32_u32 v6, v4
    v_mul_f32 v6, 4.0, v6
    v_mul_f32 v6, v6, v5
    v_mul_f32 v7, {hexf(13.0)}, v5''')
    rot = lambda n, c, s: [(f'v{c}', f'v{s}'), (f'-v{s}', f'v{c}'), (f'-v{c}', f'-v{s}'), (f'v{s}', f'-v{c}')][n % 4]
    gl = {'n': 0}
    def gload():
        n = gl['n']
        if n >= 36: return
        if n and n % 4 == 0: a('s_add_u32 s28, s28, 4096')
        a.vmem(f'buffer_load_dwordx4 {vr(96+4*n,4,"a")}, v14, s[12:15], s28 offen offset:{(n%4)*1024} sc1', ('g', n)); gl['n'] += 1
    for sg in range(4):
        if sg == 0:
            chk_verify(27, V_CK, 'cg', 30)
            a(f's_mul_i32 s28, s19, 36864\ns_add_u32 s28, s28, {WS_GT}\nv_lshlrev_b32 v14, 4, v9')
        for j in range(4):
            c = 10 + 2*(j & 1)
            a(f'v_cos_f32 v{c}, v6\nv_sin_f32 v{c+1}, v6')
            a(f'v_add_f32 v6, v6, v{5 if j < 3 else 7}')
            for mt in range(4):
                for v in range(2):
                    p = rot(j*mt + v, c, c+1)
                    a(f'v_cvt_pk_bf16_f32 v{areg(mt,v,sg)+j}, {p[0]}, {p[1]}')
            while gl['n'] < min(G1, (4*sg+j+1)*2): gload()
    lds_wait(2, 10, 64)
    a(f'''v_lshlrev_b32 v5, 9, v4
    v_and_b32 v6, 3, v9
    v_lshl_add_u32 v5, v6, 5, v5
    v_and_b32 v6, 1, v9
    v_lshlrev_b32 v6, 1, v6
    v_sub_u32 v5, v5, v6
    v_bfe_u32 v6, v9, 2, 2
    v_lshl_add_u32 v5, v6, 1, v5
    s_lshl_b32 s23, s16, 3
    s_add_u32 s23, s23, {LDS_W + 2}
    v_add_u32 v5, s23, v5''')
    for r in range(16):
        for arr in range(2):
            a.lds(f'ds_read_u16_d16_hi v{(WR,WI)[arr]+r}, v5 offset:{arr*8192+(r>>2)*2048+(r&3)*128}', 'w')
    a(f'''s_lshl_b32 s27, s20, 12
    s_add_u32 s27, s27, {FL1}
    v_lshlrev_b32 v5, 11, v4
    v_lshl_add_u32 v5, v3, 2, v5
    s_mul_i32 s22, s33, 9
    s_add_u32 s22, s22, s20
    s_lshl_b32 s22, s22, 15
    s_lshl_b32 s23, s21, 6
    s_add_u32 s22, s22, s23
    s_add_u32 s22, s22, {WS_Z1}''')
    stamp(a, 11, diag and FE)
    chk_issue(27, V_CK, 'c1')
    chk_verify(27, V_CK, 'c1', None)
    stamp(a, 4, diag)
    for sg in range(4):
        for j in range(4):
            a.vmem(f'buffer_load_dword v{Z+4*sg+j}, v5, s[12:15], s22 offen offset:{j*512} sc1', ('z', sg))
        if sg < 3: a('s_add_u32 s22, s22, 8192')
    a(f'''s_mov_b32 s23, 36864
    v_lshrrev_b32 v6, 2, v9
    v_mul_lo_u32 v6, v6, s23
    v_and_b32 v7, 3, v9
    v_lshl_add_u32 v6, v7, 4, v6
    s_lshl_b32 s23, s16, 12
    s_add_u32 s23, s23, 57344
    v_lshlrev_b32 v7, 6, v3
    v_lshl_add_u32 v7, v4, 4, v7
    v_add_u32 v7, s23, v7
    v_add_u32 v15, s23, v14
    s_lshl_b32 s22, s20, 12
    s_lshl_b32 s23, s33, 9
    s_add_u32 s22, s22, s23
    s_lshl_b32 s23, s21, 6
    s_add_u32 s22, s22, s23
    s_add_u32 s27, s22, {FL2}
    s_add_u32 s22, s22, {WS_T}''')
    def fwd(mt):
        mf = []
        for v in range(2):
            d = vr((XR, XI)[v] + 4*mt)
            for sg in range(4):
                def f(v=v, sg=sg, d=d):
                    a.wait(vm=[('z', sg)])
                    a(f'v_mfma_f32_16x16x32_bf16 {d}, {vr(areg(mt,v,sg))}, {vr(Z+4*sg)}, {"0" if sg == 0 else d}')
                mf.append(f)
        return mf
    def filt(mt):
        o = Ops(a)
        for i in range(4): o.e(f'v_mul_f32 v{10+i}, v{XR+4*mt+i}, v{WR+4*mt+i}')
        for i in range(4): o.e(f'v_mul_f32 v{XR+4*mt+i}, v{XR+4*mt+i}, v{WI+4*mt+i}')
        for i in range(4): o.e(f'v_fma_f32 v{10+i}, -v{XI+4*mt+i}, v{WI+4*mt+i}, v{10+i}')
        for i in range(4): o.e(f'v_fmac_f32 v{XR+4*mt+i}, v{XI+4*mt+i}, v{WR+4*mt+i}')
        for i in range(4): o.e(f'v_cvt_pk_bf16_f32 v{Y+4*mt+i}, v{10+i}, -v{XR+4*mt+i}')
        return o
    a.wait(lg='w')
    for f in fwd(0): f()
    for f in fwd(1): f()
    spread(a, fwd(2), filt(0))
    spread(a, fwd(3), filt(1))
    TRr = lambda mt: Z + 4*mt
    TIr = lambda mt: (XR, XR+4, XI, XI+4)[mt]
    def inv(sg):
        mf = []
        for mt in range(4):
            for v in range(2):
                d = vr(TRr(mt) if v == 0 else TIr(mt))
                mf.append(lambda v=v, mt=mt, d=d: a(f'v_mfma_f32_16x16x32_bf16 {d}, {vr(Y+4*sg)}, {vr(areg(mt,v,sg))}, {"0" if sg == 0 else d}'))
        return mf
    spread(a, inv(0), filt(2))
    spread(a, inv(1), filt(3))
    a('s_nop 1')
    for f in inv(2): f()
    for f in inv(3): f()
    a('s_nop 1')
    for mt in range(4):
        if mt == 3: a('s_nop 0')
        for i in range(4): a(f'v_cvt_pk_bf16_f32 v{WR+4*mt+i}, v{TRr(mt)+i}, -v{TIr(mt)+i}')
        a.lds(f'ds_write_b128 v7, {vr(WR+4*mt)} offset:{1024*mt}', 'tw')
        a.lds(f'ds_read_b128 {vr(WI+4*mt)}, v15 offset:{1024*mt}', ('tr', mt))
    for mt in range(4):
        a.wait(lg=[('tr', mt)])
        a.vmem(f'buffer_store_dwordx4 {vr(WI+4*mt)}, v6, s[12:15], s22 offen sc1', 'st2')
        if mt < 3: a(f's_add_u32 s22, s22, {16*36864}')
    stamp(a, 5, diag)

    TT = 48; BR = 96; BI = 112; AC3 = [128, 160]; PK = 192; XX = 208; ZB = 16
    SC = 1.0/(2048*576)
    a(f'''v_lshl_add_u32 v10, v1, 6, s17
    v_cvt_f32_u32 v10, v10
    v_mul_f32 v10, {hexf(1.0/2048)}, v10
    v_cvt_f32_u32 v11, v2
    v_mul_f32 v11, 4.0, v11
    v_mul_f32 v11, v11, v10
    v_mul_f32 v12, {hexf(5.0)}, v10''')
    for n in range(16):
        a(f'''v_cos_f32 v13, v11
        v_sin_f32 v15, v11
        v_add_f32 v11, v11, v{10 if (n & 3) < 3 else 12}
        v_mul_f32 v13, {hexf(SC)}, v13
        v_mul_f32 v15, {hexf(SC)}, v15
        v_cvt_pk_bf16_f32 v{BR+n}, v13, -v15
        v_cvt_pk_bf16_f32 v{BI+n}, v15, v13''')
    a.wait(vm='st2'); stamp(a, 12, diag and FE); flag_store(27)
    while gl['n'] < 36: gload()
    a(f'''v_and_b32 v4, 7, v1
    v_lshlrev_b32 v4, 1, v4
    v_bfe_u32 v5, v1, 3, 1
    v_add_u32 v4, v4, v5
    v_and_b32 v5, 16, v1
    v_add_u32 v4, v4, v5
    v_lshlrev_b32 v4, 4, v4
    v_lshl_add_u32 v4, v2, 9, v4
    s_mul_i32 s20, s17, 9
    s_mul_i32 s23, s16, 3
    s_add_u32 s20, s20, s23
    s_lshl_b32 s20, s20, 12
    s_add_u32 s20, s20, {WS_T}
    s_mul_i32 s25, s16, 12288
    s_add_u32 s25, s25, {FL2}
    s_add_u32 s21, s25, 4096
    s_add_u32 s22, s25, 8192
    s_mul_i32 s23, s16, 12288
    v_add_u32 v7, s23, v14''')
    stamp(a, 13, diag and FE)
    lp, ok = L('lp'), L('ok')
    a(f's_mov_b32 s59, {SPIN}\n{lp}:')
    for kt in range(3): a(f'buffer_load_dwordx2 {vr(16+2*kt,2)}, v{V_L8}, s[12:15], s{(25,21,22)[kt]} offen sc1')
    a(f'''s_waitcnt vmcnt(0)
    v_cmp_eq_u64 vcc, s[{TOK}:{TOK+1}], v[16:17]
    v_cmp_eq_u64 s[26:27], s[{TOK}:{TOK+1}], v[18:19]
    v_cmp_eq_u64 s[30:31], s[{TOK}:{TOK+1}], v[20:21]
    s_sub_u32 s59, s59, 1
    s_cbranch_scc1 {ok}
    s_and_b64 vcc, vcc, s[26:27]
    s_and_b64 vcc, vcc, s[30:31]
    s_cmp_eq_u64 vcc, -1
    s_cbranch_scc0 {lp}
    {ok}:''')
    a.vm = []
    for kt in range(3):
        for tau in range(4):
            a.vmem(f'buffer_load_dwordx4 {vr(TT+16*kt+4*tau)}, v4, s[12:15], s20 offen offset:{tau*1024} sc1', ('t', kt, tau))
        if kt < 2: a('s_add_u32 s20, s20, 4096')
    for i in range(16): a(f'v_accvgpr_read_b32 v{XX+i}, a{240+i}')
    stamp(a, 6, diag)
    def s1_mf(kt):
        acc = AC3[kt & 1]; mf = []
        for tau in range(4):
            for v in range(2):
                d = vr(acc+16*v, 16)
                def f(tau=tau, v=v, d=d):
                    a.wait(vm=[('t', kt, tau)])
                    a(f'v_mfma_f32_32x32x16_bf16 {d}, {vr(TT+16*kt+4*tau)}, {vr((BR,BI)[v]+4*tau)}, {"0" if tau == 0 else d}')
                mf.append(f)
        return mf
    def s1_out(kt):
        acc = AC3[kt & 1]; o = Ops(a)
        for j in range(4):
            for i in range(4): o.e(f'v_cvt_pk_bf16_f32 v{PK+4*j+i}, v{acc+4*j+i}, v{acc+16+4*j+i}')
            o.f(lambda j=j: a.lds(f'ds_write_b128 v7, {vr(PK+4*j)} offset:{(4*kt+j)*1024}', 'zw'))
        return o
    for f in s1_mf(0): f()
    m = s1_mf(1)
    for f in m[:3]: f()
    a('s_nop 7')
    spread(a, m[3:], s1_out(0))
    m = s1_mf(2)
    a.wait(lg='zw')
    for f in m[:3]: f()
    a('s_nop 7')
    spread(a, m[3:], s1_out(1))
    a.wait(lg='zw')
    a('s_nop 7\ns_nop 1')
    for f in s1_out(2): f()
    lds_arrive(1, 10)
    lds_wait(1, 10)
    AO, AE = AC3[1], AC3[1]+16
    LO = AC3[0]; HI = AC3[0]+16
    zl = {'n': 0}
    def zload():
        n = zl['n']
        if n >= 36: return
        a.lds(f'ds_read_b128 {vr(ZB+4*(n%12))}, v14 offset:{n*1024}', ('zf', n)); zl['n'] += 1
    for i in range(11): zload()
    mm = []
    for ks in range(36):
        def f(ks=ks):
            d = vr(AO if ks % 2 == 0 else AE, 16)
            a.wait(vm=[('g', ks)], lg=[('zf', ks)])
            a(f'v_mfma_f32_32x32x16_bf16 {d}, {vr(96+4*ks,4,"a")}, {vr(ZB+4*(ks%12))}, {"0" if ks < 2 else d}')
            zload()
        mm.append(f)
    o = Ops(a)
    for r in range(16):
        x0 = XX + r//2; x1 = XX + 8 + r//2
        if r % 2 == 0: o.e(f'v_lshlrev_b32 v{LO+r}, 16, v{x0}\nv_lshlrev_b32 v{HI+r}, 16, v{x1}')
        else: o.e(f'v_and_b32 v{LO+r}, 0xffff0000, v{x0}\nv_and_b32 v{HI+r}, 0xffff0000, v{x1}')
    for r in range(32): o.e(f'v_sub_f32 v{LO+r}, v{LO+r}, v{V_MU}')
    o.e(f'''v_lshlrev_b32 v10, 11, v2
    v_lshl_add_u32 v10, v1, 4, v10
    s_lshr_b32 s23, s17, 1
    s_mul_i32 s24, s23, 73728
    s_and_b32 s26, s17, 1
    s_lshl_b32 s27, s26, 9
    s_add_u32 s24, s24, s27
    s_lshl_b32 s27, s19, 12
    s_add_u32 s24, s24, s27
    s_add_u32 s24, s24, {WS_HC}
    s_add_u32 s27, s24, 36864
    s_mul_i32 s25, s26, 9
    s_add_u32 s25, s25, s19
    s_lshl_b32 s25, s25, 6
    s_lshl_b32 s22, s23, 11
    s_add_u32 s25, s25, s22
    s_add_u32 s58, s25, {FL3}
    s_mul_i32 s23, s23, {NSSQ}
    s_add_u32 s23, s23, s19
    s_lshl_b32 s23, s23, 8
    s_lshl_b32 s26, s26, 7
    s_add_u32 s23, s23, s26
    s_add_u32 s23, s23, {WS_SSQ}
    v_lshlrev_b32 v6, 2, v1
    v_mov_b32 v255, v{V_F0}''')
    spread(a, mm, o, 2, 34)
    a('s_nop 7\ns_nop 3')
    for r in range(16): a(f'v_add_f32 v{LO+r}, v{LO+r}, v{AO+r}\nv_sub_f32 v{HI+r}, v{HI+r}, v{AO+r}')
    for q in range(4):
        src = (LO, HI)[q >> 1] + 8*(q & 1)
        for r in range(8): a(f'v_add_f32 v{src+r}, v{src+r}, v{AE+8*(q&1)+r}')
        for i in range(4): a(f'v_cvt_pk_bf16_f32 v{PK+4*q+i}, v{src+2*i}, v{src+2*i+1}')
        a.vmem(f'buffer_store_dwordx4 {vr(PK+4*q)}, v10, s[12:15], s{24 if q < 2 else 27} offen offset:{(q&1)*1024} sc1', 'st3')
    a(f'v_mul_f32 v11, v{LO}, v{LO}\nv_mul_f32 v12, v{HI}, v{HI}')
    for r in range(1, 16): a(f'v_fmac_f32 v11, v{LO+r}, v{LO+r}\nv_fmac_f32 v12, v{HI+r}, v{HI+r}')
    a(f'''v_add_f32 v11, v11, v12
    v_mov_b32 v12, v11
    s_nop 1
    v_permlane32_swap_b32 v11, v12
    s_nop 1
    v_add_f32 v11, v11, v12''')
    a.vmem(f'buffer_store_dword v11, v6, s[12:15], s23 offen sc1', 'st3')
    stamp(a, 7, diag)
    a('s_branch L_ffn')

    a.vm = [None]*9; a.lg = []
    a(f'''L_side:
    v_mov_b32 v10, {LDS_SY}
    v_mov_b32 v12, 0
    v_mov_b32 v13, 0
    v_mov_b32 v14, 0
    v_mov_b32 v15, 0
    ds_write_b128 v10, v[12:15]
    s_mov_b32 s58, 0
    v_bfrev_b32 v255, 1''')
    ws_srd()
    a(f'''s_cmp_lg_u32 s2, 0
    s_cbranch_scc1 L_notok
    s_memrealtime s[40:41]
    s_waitcnt lgkmcnt(0)
    s_or_b32 s40, s40, 1
    v_mov_b32 v{V_TK}, s40
    v_mov_b32 v{V_TK+1}, s41
    buffer_store_dwordx2 {vr(V_TK,2)}, v{V_F0}, s[36:39], 0 offen sc1
    L_notok:
    s_cmp_ge_u32 s2, 192
    s_cbranch_scc1 L_now
    s_load_dwordx4 s[4:7], s[0:1], 8
    v_lshrrev_b32 v4, 3, v9
    v_lshlrev_b32 v4, 5, v4
    v_bfe_u32 v5, v9, 1, 2
    v_add_u32 v4, v4, v5
    v_mul_u32_u24 v4, 578, v4
    v_and_b32 v5, 2, v9
    v_add_u32 v4, v4, v5
    v_and_b32 v5, 1, v9
    v_lshl_add_u32 v4, v5, 4, v4
    s_and_b32 s23, s2, 7
    s_mul_i32 s22, s23, {4*578}
    s_lshr_b32 s23, s2, 3
    s_mul_i32 s23, s23, 24
    s_add_u32 s22, s22, s23
    s_waitcnt lgkmcnt(0)
    s_mov_b32 s40, s4
    s_mov_b32 s41, s5
    s_mov_b32 s42, {2048*578}
    s_mov_b32 s43, 0x20000
    s_mov_b32 s4, s6
    s_mov_b32 s5, s7
    s_mov_b32 s6, {2048*578}
    s_mov_b32 s7, 0x20000''')
    a('s_barrier')
    for i in range(8):
        for arr in range(2):
            a(f's_mov_b32 m0, {LDS_W+arr*8192+i*1024}\ns_add_u32 s23, s22, {i*8*32*578}')
            a(f'buffer_load_dwordx4 v4, s[{(40,4)[arr]}:{(43,7)[arr]}], s23 offen lds')
    a('s_waitcnt vmcnt(0)')
    lds_arrive(2, 10)
    a(f'''L_now:
    s_lshl_b32 s17, s2, 2
    s_add_u32 s17, s17, s16
    s_sub_u32 s17, s17, 576
    s_cmp_lt_u32 s2, 192
    s_cselect_b32 s17, s2, s17
    s_mul_i32 s30, s16, 36864
    s_cmp_ge_u32 s17, 432
    s_cbranch_scc1 L_gtab
    s_load_dwordx4 s[4:7], s[0:1], 32
    s_load_dwordx2 s[8:9], s[0:1], 48
    s_mul_i32 s45, s17, 911
    s_lshr_b32 s45, s45, 16
    s_mul_i32 s44, s45, 72
    s_sub_u32 s44, s17, s44
    s_mul_i32 s46, s45, {96*9216}
    s_lshl_b32 s47, s44, 7
    s_add_u32 s46, s46, s47
    v_lshrrev_b32 v4, 3, v9
    v_mul_u32_u24 v6, 1152, v4
    v_mul_u32_u24 v4, 9216, v4
    v_and_b32 v5, 7, v9
    v_lshl_add_u32 v4, v5, 4, v4
    v_lshl_add_u32 v6, v5, 4, v6
    s_mul_i32 s49, s44, 57
    s_lshr_b32 s49, s49, 9
    s_mul_i32 s47, s49, 9
    s_sub_u32 s47, s44, s47
    s_mul_i32 s20, s45, 9
    s_add_u32 s20, s20, s47
    s_lshl_b32 s20, s20, 6
    s_lshl_b32 s21, s49, 12
    s_add_u32 s20, s20, s21
    s_add_u32 s20, s20, {FLW}
    s_mul_i32 s47, s47, 36
    s_mul_i32 s48, s45, 6
    s_add_u32 s47, s47, s48
    s_lshl_b32 s47, s47, 10
    s_mul_i32 s49, s49, {4*WSTREAM}
    s_add_u32 s21, s47, s49
    s_add_u32 s21, s21, {WS_W}''')
    a(f'''s_mul_i32 s45, s17, 7282
    s_lshr_b32 s45, s45, 16
    s_mul_i32 s44, s45, 9
    s_sub_u32 s44, s17, s44
    s_mul_i32 s22, s45, {96*1152}
    s_lshl_b32 s47, s44, 7
    s_add_u32 s22, s22, s47
    s_mul_i32 s49, s45, 43
    s_lshr_b32 s49, s49, 8
    s_mul_i32 s47, s49, 6
    s_sub_u32 s45, s45, s47
    s_mul_i32 s24, s45, 9
    s_add_u32 s24, s24, s44
    s_lshl_b32 s24, s24, 6
    s_lshl_b32 s47, s49, 12
    s_add_u32 s24, s24, s47
    s_add_u32 s24, s24, {FLW + 16*4096}
    s_sub_u32 s47, s44, s49
    s_sub_u32 s47, s47, 1
    s_and_b32 s47, s47, 7
    s_add_u32 s47, s47, 1
    s_cmp_eq_u32 s44, 8
    s_cselect_b32 s47, 0, s47
    s_mul_i32 s53, s47, 18
    s_lshl_b32 s54, s47, 4
    s_lshl_b32 s55, s47, 1
    s_add_u32 s55, s55, 16
    s_cmp_eq_u32 s45, 5
    s_cselect_b32 s55, s55, s54
    s_cmp_lt_u32 s47, 2
    s_cselect_b32 s54, s54, s53
    s_cselect_b32 s55, s55, s53
    s_mul_i32 s48, s45, 3
    s_add_u32 s48, s48, 324
    s_add_u32 s50, s54, s48
    s_add_u32 s51, s55, s48
    s_add_u32 s51, s51, 1
    s_add_u32 s52, s51, 1
    s_mul_i32 s49, s49, {4*WSTREAM}
    s_add_u32 s49, s49, {WS_W}''')
    for sl in range(3): a(f's_lshl_b32 s{50+sl}, s{50+sl}, 10\ns_add_u32 s{50+sl}, s{50+sl}, s49')
    a(f'''v_lshlrev_b32 v1, 4, v9
    v_lshrrev_b32 v2, 4, v9
    v_bfe_u32 v3, v9, 2, 2
    v_lshl_add_u32 v2, v2, 3, v3
    v_and_b32 v3, 3, v9
    v_lshlrev_b32 v5, 7, v2
    v_lshl_add_u32 v5, v3, 3, v5
    v_add_u32 v5, s30, v5
    s_waitcnt lgkmcnt(0)
    s_mov_b32 s40, s4
    s_mov_b32 s41, s5
    s_mov_b32 s42, {576*9216}
    s_mov_b32 s43, 0x20000
    s_mov_b32 s4, s6
    s_mov_b32 s5, s7
    s_mov_b32 s6, {576*9216}
    s_mov_b32 s7, 0x20000
    s_mov_b32 s10, {576*9216}
    s_mov_b32 s11, 0x20000
''')
    def dma(g):
        if NOSHUF or g > 8: return
        r, sl = g//3, g % 3
        sr = (40, 4, 8)[r]; vo = 4 if r < 2 else 6; so = 46 if r < 2 else 22; pitch = 9216 if r < 2 else 1152
        for i in range(4*sl, 4*sl+4):
            a(f's_add_u32 s47, s30, {r*12288+i*1024}\ns_mov_b32 m0, s47\ns_add_u32 s48, s{so}, {i*8*pitch}')
            a.vmem(f'buffer_load_dwordx4 v{vo}, s[{sr}:{sr+3}], s48 offen lds', ('d', g))
    tok_issue()
    DEP = 2 if PACE else 6
    for g in range(DEP): dma(g)
    fl = [(2, lambda: flag_store(20)), (5, lambda: (a(f's_add_u32 s20, s20, {8*4096}'), flag_store(20))), (8, lambda: flag_store(24))]
    for g in range(9):
        r, sl = g//3, g % 3
        if not NOSHUF:
            a.wait(vm=[('d', g)])
            for w in range(4):
                q = 16 + 16*g + 4*w
                for hf in range(2):
                    a.lds(f'ds_read_b64_tr_b16 {vr(q+2*hf,2)}, v5 offset:{r*12288+sl*4096+hf*512+32*w}', ('r', g, w))
            if PACE >= 2 and g: a.wait(vm=[('ss', g-1)])
            dma(g+DEP)
            for w in range(4):
                q = 16 + 16*g + 4*w
                a.wait(lg=[('r', g, w)])
                if r < 2: a(f's_add_u32 s48, s21, {w*WSTREAM + (3*r+sl)*1024}')
                else: a(f's_add_u32 s48, s{50+sl}, {w*WSTREAM}')
                a.vmem(f'buffer_store_dwordx4 {vr(q)}, v1, s[12:15], s48 offen sc1', ('ss', g))
        if g == 0: tok_verify()
        while fl and fl[0][0] < g and a.done(('ss', fl[0][0])): fl.pop(0)[1]()
    while fl:
        a.wait(vm=[('ss', fl[0][0])]); fl.pop(0)[1]()
    stamp(a, 7, diag)
    a('s_branch L_ffn')
    a.vm = [None]*9; a.lg = []
    a(f'''L_gtab:
    s_sub_u32 s17, s17, 432
    v_lshlrev_b32 v1, 4, v9
    v_and_b32 v2, 3, v9
    v_bfe_u32 v5, v9, 2, 1
    v_lshl_add_u32 v2, v5, 4, v2
    v_bfe_u32 v5, v9, 3, 2
    v_lshl_add_u32 v2, v5, 2, v2
    v_lshrrev_b32 v3, 5, v9
    v_lshlrev_b32 v3, 3, v3
    s_mov_b32 s48, 288''')
    tok_issue(); tok_verify()
    a(f'''L_gloop:
    s_mul_i32 s44, s17, 57
    s_lshr_b32 s44, s44, 9
    s_mul_i32 s45, s44, 9
    s_sub_u32 s45, s17, s45
    s_lshl_b32 s46, s44, 5
    v_add_u32 v4, s46, v2
    s_lshl_b32 s46, s45, 5
    s_add_u32 s46, s46, 1
    v_add_u32 v5, s46, v3
    s_lshl_b32 s47, s17, 12
    s_add_u32 s47, s47, {WS_GT}''')
    for j in range(4):
        for i in range(4):
            a(f'''v_add_u32 v6, {16*(j>>1)+(j&1)+2*i}, v5
            v_mul_u32_u24 v7, v6, v4
            v_cvt_f32_u32 v7, v7
            v_mul_f32 v7, {hexf(1.0/576)}, v7
            v_fract_f32 v7, v7
            v_cos_f32 v10, v7
            v_sin_f32 v11, v7''')
            if j == 3 and i == 3:
                a(f'''v_cmp_eq_u32 vcc, s48, v6
                v_mov_b32 v12, 2.0
                s_nop 0
                v_cndmask_b32 v12, v12, 1.0, vcc
                v_mul_f32 v10, v10, v12
                v_mul_f32 v11, v11, v12''')
            else:
                a('v_add_f32 v10, v10, v10\nv_add_f32 v11, v11, v11')
            a(f'v_cvt_pk_bf16_f32 v{16+4*j+i}, v10, -v11')
        a(f'buffer_store_dwordx4 {vr(16+4*j)}, v1, s[12:15], s47 offen offset:{j*1024} sc1')
    a(f'''s_add_u32 s17, s17, 16
    s_cmp_lt_u32 s17, 81
    s_cbranch_scc1 L_gloop
    s_waitcnt vmcnt(0)
    L_gfl:
    s_sub_u32 s17, s17, 16
    s_cbranch_scc1 L_ffn
    s_mul_i32 s44, s17, 57
    s_lshr_b32 s44, s44, 9
    s_mul_i32 s45, s44, 7
    s_add_u32 s45, s45, s17
    s_lshl_b32 s45, s45, 6
    s_add_u32 s45, s45, {FLG}''')
    flag_store(45)
    a('s_branch L_gfl')

    a.vm = ['pre']; a.lg = []
    from ffn import emit_ffn
    nv = emit_ffn(a, dict(diag=diag, G2S=G2S, FE=FE, PRE=PRE, R=R, FPX=FPX, UP=UP, RATE0=RATE0, WSC=WSC, chk_issue=chk_issue, chk_verify=chk_verify,
                          flag_store=flag_store, V_L8=V_L8, V_F0=V_F0, V_TK=V_TK, V_CK=V_CK, stamp=stamp, rstamp=rstamp, Ops=Ops))
    if diag:
        vt = 24
        a.waitall()
        stamp(a, 14, True)
        a('s_memrealtime s[94:95]\ns_waitcnt lgkmcnt(0)')
        for i in range(1, 15):
            a(f's_cmp_eq_u32 s{60+2*i}, 0\ns_cselect_b32 s23, 0, s60\ns_sub_u32 s{60+2*i}, s{60+2*i}, s23\nv_mov_b32 v{vt+i}, s{60+2*i}')
        a(f'v_mov_b32 v{vt}, s92\nv_mov_b32 v{vt+15}, s94')
        a(f'''s_lshl_b32 s23, s2, 2
        s_add_u32 s23, s23, s16
        s_lshl_b32 s23, s23, 6
        s_add_u32 s23, s23, {WS_DBG}
        v_mov_b32 v{vt+16}, 0
        s_mov_b64 exec, 1''')
        for i in range(4): a(f'buffer_store_dwordx4 {vr(vt+4*i)}, v{vt+16}, s[12:15], s23 offen offset:{16*i}')
    a('L_end:\ns_endpgm\nL_codeend:')
    hdr = f'; @launch grid=(256,1,1) block=(256,1,1) lds={LDS_TOTAL}\n.amdgcn_target "amdgcn-amd-amdhsa--gfx950"\n.text\n'
    return hdr + a.text() + '.section .rodata,"a"\n' + kernel_desc(name, 256, 256)

if __name__ == '__main__':
    import sys
    out = sys.argv[1] if len(sys.argv) > 1 else 'sequential_preLN__spectral_gfnet__geglu_ffn__prompt.s'
    open(out, 'w').write(gen_mega())
```

```python
from asmlib import *
from layout import *
import math

WS_X = WS_W
WS_X = 0x4000000

def emit_ffn2(a, P):
    import mega
    diag = P['diag']
    chk_issue, chk_verify, flag_store0 = P['chk_issue'], P['chk_verify'], P['flag_store']
    V_CK, stamp, Ops = P['V_CK'], P['stamp'], P['Ops']
    SHF, RDF, NFR = P.get('SHF', 0.25), P.get('RDF', 0.72), 8
    FLX = mega.FLX; FL4 = mega.FL4; FL3 = mega.FL3
    RING = 73728
    V_L16, V_B1, V_B2, V_ACTW, V_DG, V_DU, V_DD = 1, 2, 3, 4, 5, 6, 7
    V_C0, V_C1, V_IR = 10, 12, 14
    V_R = 16
    V_T = 24
    ACC = [48, 112]
    FR = 176
    BX = 208
    V_XW = 240
    V_B2g = 241
    def breg(bi): return vr(4*bi, 4, 'a') if bi < 64 else vr(BX + 4*(bi-64))
    a(f"""L_ffn:
    s_load_dwordx2 s[32:33], s[0:1], 56
    s_load_dwordx4 s[4:7], s[0:1], 32
    s_load_dwordx2 s[48:49], s[0:1], 48
    v_lshlrev_b32 v{V_L16}, 4, v9
    s_and_b32 s23, s2, 7
    s_lshr_b32 s24, s2, 3
    s_and_b32 s19, s24, 1
    s_and_b32 s17, s23, 3
    s_lshl_b32 s17, s17, 1
    s_bfe_u32 s25, s24, 0x10001
    s_add_u32 s17, s17, s25
    s_lshr_b32 s18, s23, 2
    s_lshl_b32 s18, s18, 3
    s_lshr_b32 s25, s24, 2
    s_add_u32 s18, s18, s25
    s_lshr_b32 s54, s16, 1
    s_and_b32 s55, s16, 1
    v_lshrrev_b32 v22, 3, v9
    s_lshl_b32 s23, s16, 3
    v_add_u32 v22, s23, v22
    v_and_b32 v23, 7, v9
    v_bfe_u32 v24, v9, 4, 1
    v_lshlrev_b32 v24, 1, v24
    v_xor_b32 v23, v23, v24
    v_mul_u32_u24 v25, 9216, v22
    v_lshl_add_u32 v{V_DG}, v23, 4, v25
    v_xor_b32 v{V_DU}, 64, v{V_DG}
    v_mul_u32_u24 v25, 1152, v22
    v_lshl_add_u32 v{V_DD}, v23, 4, v25
    s_lshl_b32 s23, s55, 6
    v_xor_b32 v{V_DD}, s23, v{V_DD}
    s_lshl_b32 s29, s16, 10
    s_add_u32 s29, s29, {RING}
    s_mul_i32 s20, s17, 1152
    s_add_u32 s21, s20, 512
    s_mul_i32 s23, s19, 640
    s_add_u32 s20, s20, s23
    s_waitcnt lgkmcnt(0)
    s_mov_b32 s40, s4
    s_mov_b32 s41, s5
    s_mov_b32 s42, {576*9216}
    s_mov_b32 s43, 0x20000
    s_mov_b32 s44, s6
    s_mov_b32 s45, s7
    s_mov_b32 s46, {576*9216}
    s_mov_b32 s47, 0x20000
    s_mov_b32 s50, {576*9216}
    s_mov_b32 s51, 0x20000
    s_mov_b32 s34, {NB}
    s_mov_b32 s35, 0x20000""")
    a.wait(vm='pre'); flag_store0(58, None, 255)
    a('s_barrier')
    stages = [('g1', p, sg) for p in range(5) for sg in range(6)]
    for k in range(9): stages.append(('g2', [(g, 2*k+e) for g in ('H', 0, 1) for e in range(2)]))
    for g in (2, 3):
        for k in range(3): stages.append(('g2', [(g, 6*k+e) for e in range(6)]))
    NS = len(stages)
    KS = [('o', i) for i in range(6)] + [('p', i) for i in range(6)] + [('o', 6), ('o', 7), ('o', 8), ('p', 6), ('p', 7), ('p', 8)]
    def dma_ops(S):
        o = Ops(a)
        if S >= NS: return o
        st = stages[S]; slot = (S % 3)*24576
        for n in range(6):
            if st[0] == 'g1':
                p, sg = st[1], st[2]; mat, j = n//3, n % 3
                so = f's_add_u32 s24, s{20 if p < 4 else 21}, {(96*sg+32*j)*9216 + (128*p if p < 4 else 0)}'
                vo, sr = (V_DG, V_DU)[mat], 40+4*mat
            else:
                g, sp = st[1][n]; kind, i = KS[sp]
                rb_ = {('o', False): 4, ('p', False): 5, ('o', True): 6, ('p', True): 7}[(kind, i == 8)]
                cs = 8 if g == 'H' else P['S_COL'] + g
                so = f's_add_u32 s24, s{rb_}, s{cs}' + (f'\ns_add_u32 s24, s24, {32*i*1152}' if 0 < i < 8 else '')
                vo, sr = V_DD, 48
            o.f(lambda n=n, so=so, vo=vo, sr=sr: (a(f's_add_u32 m0, s29, {slot+4096*n}\n{so}'),
                                                  a.vmem(f'buffer_load_dwordx4 v{vo}, s[{sr}:{sr+3}], s24 offen lds', ('u', S))))
        return o
    def hc_ops(g):
        o = Ops(a)
        if g >= 6: return o
        for mh in range(2):
            o.f(lambda mh=mh: a(f's_add_u32 m0, s22, {(g%3)*24576+mh*12288}\ns_add_u32 s24, s30, {12288*g+73728*mh}'))
            for j in range(3):
                o.f(lambda j=j: a.vmem(f'buffer_load_dwordx4 v{V_L16}, s[12:15], s24 offen offset:{j*1024} sc1 lds', ('dma', g)))
        return o
    for S in range(2):
        for f in dma_ops(S): f()
    SC = P['S_COL'] = 36
    a(f"""s_mul_i32 s22, s16, 3072
    s_mul_i32 s30, s18, {2*73728}
    s_add_u32 s30, s30, s22
    s_add_u32 s30, s30, {WS_HC}
    s_lshl_b32 s31, s18, 1
    s_add_u32 s31, s31, s54
    s_mul_i32 s27, s31, {NSSQ*256}
    s_add_u32 s27, s27, {WS_SSQ}
    v_lshlrev_b32 v8, 2, v9
    s_mul_i32 s23, s17, {576*1152}
    s_mul_i32 s24, s19, {320*1152}
    s_add_u32 s4, s23, s24
    s_sub_u32 s5, s23, s24
    s_add_u32 s5, s5, {320*1152}
    s_mul_i32 s24, s19, {32*1152}
    s_add_u32 s6, s23, s24
    s_add_u32 s6, s6, {256*1152}
    s_sub_u32 s7, s23, s24
    s_add_u32 s7, s7, {288*1152}
    s_mov_b32 s8, 512
    s_lshr_b32 s9, s17, 1
    s_mul_i32 s23, s19, 640""")
    for g in range(4):
        a(f's_add_u32 s24, s9, {g+1}\ns_and_b32 s24, s24, 3\ns_lshl_b32 s24, s24, 7\ns_add_u32 s{SC+g}, s24, s23')
    a(f"""v_and_b32 v22, 15, v9
    v_lshrrev_b32 v23, 4, v9
    v_and_b32 v24, 31, v9
    v_lshrrev_b32 v25, 5, v9
    v_lshlrev_b32 v26, 10, v25
    v_lshl_add_u32 v26, v24, 4, v26
    s_mul_i32 s23, s54, 12288
    v_add_u32 v{V_B1}, s23, v26
    s_mul_i32 s23, s54, 36864
    s_lshl_b32 s24, s55, 12
    s_add_u32 s24, s24, s23
    v_add_u32 v{V_ACTW}, s24, v26
    v_lshlrev_b32 v{V_B2g}, 10, v23
    v_lshl_add_u32 v{V_B2g}, v22, 4, v{V_B2g}
    v_add_u32 v{V_B2}, s23, v{V_B2g}
    s_lshl_b32 s24, s18, 3
    s_add_u32 s24, s24, s17
    s_lshl_b32 s24, s24, 1
    s_add_u32 s25, s24, s19
    s_xor_b32 s24, s25, 1
    s_mul_i32 s10, s25, 73728
    s_add_u32 s10, s10, {WS_X}
    s_mul_i32 s11, s24, 73728
    s_add_u32 s11, s11, s23
    s_add_u32 s11, s11, {WS_X}
    s_lshl_b32 s52, s25, 10
    s_lshl_b32 s23, s16, 6
    s_add_u32 s52, s52, s23
    s_add_u32 s52, s52, {FLX}
    s_lshl_b32 s53, s24, 10
    s_lshl_b32 s23, s54, 7
    s_add_u32 s53, s53, s23
    s_add_u32 s53, s53, {FLX}""")
    def tr_addr(g32, dst, squart):
        if g32:
            return f"""v_bfe_u32 v24, v9, 2, 2
            v_lshrrev_b32 v25, 1, v23
            v_lshl_add_u32 v25, v25, 3, v24
            v_lshlrev_b32 v25, 7, v25
            v_and_b32 v26, 1, v23
            v_lshrrev_b32 v24, 1, v24
            v_lshl_or_b32 v24, v26, 1, v24
            v_xor_b32 v24, s{squart}, v24
            v_lshl_add_u32 v25, v24, 5, v25
            v_mul_u32_u24 v26, 12288, v26
            v_add_u32 v25, v25, v26
            v_and_b32 v26, 1, v9
            v_lshl_add_u32 v25, v26, 4, v25
            v_bfe_u32 v26, v9, 1, 1
            v_lshl_add_u32 v25, v26, 3, v25
            v_add_u32 v{dst}, {RING}, v25
            v_add_u32 v{dst+1}, {RING+49152}, v25"""
        return f"""v_bfe_u32 v24, v9, 2, 2
            v_lshl_add_u32 v25, v23, 3, v24
            v_lshlrev_b32 v25, 7, v25
            v_and_b32 v26, 1, v23
            v_lshrrev_b32 v24, 1, v24
            v_lshl_or_b32 v24, v26, 1, v24
            v_xor_b32 v24, s{squart}, v24
            v_lshl_add_u32 v25, v24, 5, v25
            v_and_b32 v26, 3, v9
            v_lshl_add_u32 v25, v26, 3, v25
            v_add_u32 v{dst}, {RING}, v25
            v_add_u32 v{dst+1}, {RING+49152}, v25"""
    a('s_lshl_b32 s23, s55, 1')
    a(tr_addr(True, V_R, 23))
    a(f"""v_xor_b32 v{V_R+2}, 32, v{V_R}
    v_xor_b32 v{V_R+3}, 32, v{V_R+1}
    s_lshl_b32 s24, s19, 1
    s_add_u32 s24, s24, s55
    s_xor_b32 s28, s24, s23
    s_lshl_b32 s28, s28, 5
    v_xor_b32 v{V_R+4}, s28, v{V_R}
    v_xor_b32 v{V_R+5}, s28, v{V_R+1}""")
    V_R2 = 242
    a(tr_addr(False, V_R2, 23))
    a(f"""v_xor_b32 v{V_R2+2}, 32, v{V_R2}
    v_xor_b32 v{V_R2+3}, 32, v{V_R2+1}
    v_xor_b32 v{V_R2+4}, s28, v{V_R2}
    v_xor_b32 v{V_R2+5}, s28, v{V_R2+1}
    s_lshl_b32 s26, s18, 12
    s_add_u32 s26, s26, {FL3}
    s_mov_b32 s28, 0x3ffff
    s_mov_b32 s23, 0x3ffff""")
    a('s_mov_b32 s96, 0x3ffff\ns_mov_b32 s97, 0x3ffff\ns_mov_b64 s[98:99], 3')
    stamp(a, 8, diag)
    a('s_cmp_lg_u32 s16, 0\ns_cbranch_scc1 L_c3skip')
    vm0 = list(a.vm)
    chk_issue(26, V_CK, 'c3', 96); chk_verify(26, V_CK, 'c3', 96, 4)
    a.vm = vm0
    a('L_c3skip:\ns_barrier')
    stamp(a, 9, diag)
    for f in hc_ops(0) + hc_ops(1): f()

    G2ACC = {'H': [ACC[1]], 0: [ACC[1]+16, ACC[1]+32], 1: [ACC[1]+48, ACC[0]+32], 2: [ACC[0], ACC[0]+16], 3: [ACC[1]+16, ACC[1]+32]}
    mfs = []
    frs = []
    fid = {}
    def addfr(S, key, reg, off):
        if key not in fid:
            fid[key] = len(fid); frs[S].append((key, reg, off))
        return key
    srange = []
    def rsel(base, off):
        return (base, off) if off < 49152 else (base+1, off-49152)
    for S, st in enumerate(stages):
        frs.append([]); m0 = len(mfs); slot = (S % 3)*24576
        if st[0] == 'g1':
            p, sg = st[1], st[2]; acc = ACC[p & 1]
            for ks in range(6):
                s = 6*sg + ks
                for tau in range(2 if p < 4 else 1):
                    k = addfr(S, (S, ks, tau), *rsel(V_R + (2*tau if p < 4 else 4), slot + ks*2048))
                    for mt in range(2):
                        d = vr(acc + 32*tau + 16*mt, 16)
                        mfs.append((S, k, 2*s+mt, lambda A, d=d, s=s, mt=mt: f'v_mfma_f32_32x32x16_bf16 {d}, {A}, {breg(2*s+mt)}, {"0" if s == 0 else d}'))
        elif st[1][0][0] != 3:
            grp = []
            for n, (g, sp) in enumerate(st[1]):
                if grp and grp[-1][0] == g and len(grp[-1][1]) < 3: grp[-1][1].append((n, sp))
                else: grp.append((g, [(n, sp)]))
            for g, lst in grp:
                for tau in range(1 if g == 'H' else 2):
                    ks = [addfr(S, (S, n, tau), *rsel(V_R2 + (4 if g == 'H' else 2*tau), slot + n*4096)) for n, sp in lst]
                    for mt in range(4):
                        for k, (n, sp) in zip(ks, lst):
                            d = vr(G2ACC[g][tau] + 4*mt)
                            mfs.append((S, k, 4*sp+mt, lambda A, d=d, sp=sp, mt=mt: f'v_mfma_f32_16x16x32_bf16 {d}, {A}, {breg(4*sp+mt)}, {"0" if sp == 0 else d}'))
        else:
            for half3 in range(2):
                lst = [(n, sp) for n, (g, sp) in enumerate(st[1])][3*half3:3*half3+3]
                ks = [addfr(S, (S, n, 0), *rsel(V_R, slot + n*4096)) for n, sp in lst]
                for mt in range(4):
                    for k, (n, sp) in zip(ks, lst):
                        d = vr(G2ACC[3][0] + 4*mt)
                        mfs.append((S, k, 4*sp+mt, lambda A, d=d, sp=sp, mt=mt: f'v_mfma_f32_16x16x32_bf16 {d}, {A}, {breg(4*sp+mt)}, {"0" if sp == 0 else d}'))
        srange.append((m0, len(mfs)))
    for k3 in range(3):
        S = NS + k3; S0 = NS-3+k3; frs.append([]); m0 = len(mfs); slot = (S0 % 3)*24576
        for half3 in range(2):
            lst = [(n, sp) for n, (g, sp) in enumerate(stages[S0][1])][3*half3:3*half3+3]
            ks = [addfr(S, (S, n, 1), *rsel(V_R+2, slot + n*4096)) for n, sp in lst]
            for mt in range(4):
                for k, (n, sp) in zip(ks, lst):
                    d = vr(G2ACC[3][1] + 4*mt)
                    mfs.append((S, k, 4*sp+mt, lambda A, d=d, sp=sp, mt=mt: f'v_mfma_f32_16x16x32_bf16 {d}, {A}, {breg(4*sp+mt)}, {"0" if sp == 0 else d}'))
        srange.append((m0, len(mfs)))
    NM = len(mfs)
    lastuse = {}; firstuse = {}
    for i, m in enumerate(mfs):
        lastuse[m[1]] = i; firstuse.setdefault(m[1], i)
    keys = sorted(fid, key=lambda k: fid[k])
    slots = [[] for _ in range(NM+1)]
    def put(ops, lo, hi):
        n = len(ops)
        for k, f in enumerate(ops):
            slots[max(0, min(NM, int(lo + (hi-lo)*k/n)))].append(f)
    def frac(S, x):
        m0, m1 = srange[S]; return m0 + x*(m1-m0)
    bpos = {}
    xwait = {}
    awn = {p: 0 for p in range(5)}; vis = set(); bl = {}
    def barrier(S):
        def f():
            lg = [('f', k) for k, _, _ in frs[S-1]] if S else []
            if S <= 6: lg += [('b', k) for k in range(72)]
            a.wait(vm=[('u', S)] + xwait.get(S, []), lg=lg)
            for p in range(5):
                if awn[p] == (4 if p < 4 else 2) and ('aw', p) not in a.lg: vis.add(p)
            if not P.get('NOBAR'): a('s_barrier')
        return f
    prev = 0
    for S in range(NS+3):
        m0, m1 = srange[S]
        pl = srange[S-1][1]-srange[S-1][0] if S else 0
        b = max(prev, int(m0 - SHF*min(pl, m1-m0))) if S else 0
        bpos[S] = b
        if S < NS: slots[b].append(barrier(S))
        n = len(frs[S])
        for j, (key, reg, off) in enumerate(frs[S]):
            pos = int(b + RDF*(m1-m0)*j/n)
            i = fid[key]
            if i >= NFR: pos = max(pos, lastuse[keys[i-NFR]] + 1)
            pos = max(pos, prev)
            assert pos <= firstuse[key], (S, j, pos, firstuse[key])
            r = FR + 4*(i % NFR)
            for hf in range(2):
                slots[pos].append(lambda key=key, reg=reg, off=off, hf=hf, r=r: a.lds(f'ds_read_b64_tr_b16 {vr(r+2*hf,2)}, v{reg} offset:{off+512*hf}', ('f', key)))
            prev = pos
    for S in range(NS):
        nb = bpos[S+1]
        mem = dma_ops(S+2)
        if S < 4: mem = hc_ops(S+2) + mem if S else hc_ops(2) + mem
        put(mem, bpos[S] + 1 + P.get('M0', 0.0)*(nb-bpos[S]), bpos[S] + 1 + P.get('M1', 0.6)*(nb-bpos[S]))

    def bread1(bi):
        s, mt = bi >> 1, bi & 1; g = s//6
        off = (g % 3)*24576 + (s % 6)*2048 + mt*512
        def f():
            bl[bi] = 1; a.lds(f'ds_read_b128 {breg(bi)}, v{V_B1} offset:{off}', ('b', bi))
        return f
    def bread2(sp, mt):
        kind, i = KS[sp]; bi = 4*sp+mt
        if kind == 'o':
            def g():
                assert i//2 in vis, (sp, vis)
                bl[bi] = 2; a.lds(f'ds_read_b128 {breg(bi)}, v{V_B2} offset:{i*4096+mt*256}', ('b', bi))
            return g
        def f():
            bl[bi] = 2
            if mt == 0: a(f's_add_u32 s25, s11, {i*4096}')
            a.vmem(f'buffer_load_dwordx4 {breg(bi)}, v{V_B2g}, s[12:15], s25 offen offset:{mt*256} sc1', ('b', bi))
        return f
    for g in range(6):
        xwait[g] = [('dma', g)]
        put([bread1(bi) for bi in range(12*g, 12*g+12)], bpos[g], bpos[g] + (0.5*(srange[g][1]-srange[g][0]) if g else 6))
    K0 = -2.0*math.log2(math.e)*math.sqrt(2.0/math.pi)
    o = Ops(a)
    for j in range(NSSQ): o.f(lambda j=j: a.vmem(f'buffer_load_dword v{V_T+j}, v8, s[12:15], s27 offen offset:{j*256} sc1', 'ssq'))
    put(o, frac(3, 0.5), frac(3, 0.9))
    o = Ops(a)
    o.f(lambda: a.wait(vm='ssq'))
    for j in range(1, NSSQ): o.e(f'v_add_f32 v{V_T}, v{V_T}, v{V_T+j}')
    o.e(f'v_mov_b32 v{V_IR}, {hexf(1e-5)}\nv_fmac_f32 v{V_IR}, {hexf(1.0/576)}, v{V_T}\nv_mov_b32 v{V_IR+1}, v{V_IR}\ns_nop 1\nv_permlane32_swap_b32 v{V_IR}, v{V_IR+1}\ns_nop 1')
    for mt in range(2): o.e(f'v_rsq_f32 v{V_T+4+mt}, v{V_IR+mt}')
    o.e('s_nop 0')
    for mt in range(2): o.e(f'v_mul_f32 v{V_C0+mt}, {hexf(K0)}, v{V_T+4+mt}')
    for mt in range(2): o.e(f'v_mul_f32 v{V_T+8+mt}, v{V_T+4+mt}, v{V_T+4+mt}')
    for mt in range(2): o.e(f'v_mul_f32 v{V_C1+mt}, {hexf(0.044715)}, v{V_C0+mt}')
    for mt in range(2): o.e(f'v_mul_f32 v{V_C1+mt}, v{V_C1+mt}, v{V_T+8+mt}')
    put(o, frac(5, 0.3), frac(5, 0.95))

    def gelu_ops(p):
        o = Ops(a); acc = ACC[p & 1]
        if p == 4: o.e(f's_lshl_b32 s23, s55, 11\nv_subrev_u32 v{V_ACTW}, s23, v{V_ACTW}')
        o.e(f's_add_u32 s31, s10, {8192*p}')
        for tau in range(2 if p < 4 else 1):
            for grp in range(4):
                mt = grp >> 1
                g = [acc + 32*tau + 16*mt + 4*(grp & 1) + i for i in range(4)]
                u = [x + 8 for x in g]
                oo = V_T + 16 + 4*mt + 2*(grp & 1)
                T = [V_T + 8*(grp & 1) + i for i in range(4)]
                Qr = [x + 4 for x in T]
                if P.get('NOGELU'): T = Qr = []; g = []
                for i in range(len(T)): o.e(f'v_mul_f32 v{T[i]}, v{g[i]}, v{g[i]}')
                for i in range(len(T)): o.e(f'v_fma_f32 v{T[i]}, v{T[i]}, v{V_C1+mt}, v{V_C0+mt}')
                for i in range(len(T)): o.e(f'v_mul_f32 v{T[i]}, v{T[i]}, v{g[i]}')
                for i in range(len(T)): o.e(f'v_exp_f32 v{T[i]}, v{T[i]}\nv_mul_f32 v{Qr[i]}, v{g[i]}, v{u[i]}')
                for i in range(len(T)): o.e(f'v_fma_f32 v{T[i]}, v{T[i]}, v{V_IR+mt}, v{V_IR+mt}')
                for i in range(len(T)): o.e(f'v_rcp_f32 v{T[i]}, v{T[i]}')
                for i in range(len(T)): o.e(f'v_mul_f32 v{Qr[i]}, v{Qr[i]}, v{T[i]}')
                if T: o.e(f'v_cvt_pk_bf16_f32 v{oo}, v{Qr[0]}, v{Qr[1]}\nv_cvt_pk_bf16_f32 v{oo+1}, v{Qr[2]}, v{Qr[3]}')
                if grp & 1:
                    off = tau*2048 + mt*512
                    o.f(lambda mt=mt, off=off: (awn.__setitem__(p, awn[p]+1), a.lds(f'ds_write_b128 v{V_ACTW}, {vr(V_T+16+4*mt)} offset:{8192*p+off}', ('aw', p))))
                    if not P.get('NOXS'): o.f(lambda mt=mt, off=off: a.vmem(f'buffer_store_dwordx4 {vr(V_T+16+4*mt)}, v{V_ACTW}, s[12:15], s31 offen offset:{off} {P.get("XF","sc1")}', ('xs', p)))
        return o
    G2 = 30
    for p in range(3): put(gelu_ops(p), frac(6*(p+1), 0.3), frac(6*(p+1)+(5 if p < 2 else 3), 0.95))
    put(gelu_ops(3), frac(24, 0.55), frac(29, 0.98))
    put(gelu_ops(4), frac(G2, 0.3), frac(G2+2, 0.9))
    def xflag(p, ck):
        def f():
            a.wait(vm=[('xs', p)]); a(f's_add_u32 s25, s52, {256*ck}'); flag_store0(25)
        return f
    def xchk_i(ck): return lambda: (a(f's_add_u32 s28, s53, {256*ck}'), chk_issue(28, V_CK, ('cx', ck), 98))
    def xchk_v(ck): return lambda: chk_verify(28, V_CK, ('cx', ck), 98, 1)
    put([xflag(2, 0)], frac(23, 0.9), frac(23, 0.9))
    put([xflag(3, 1)], frac(G2+2, 0.0), frac(G2+2, 0.0))
    put([xflag(4, 2)], frac(G2+4, 0.9), frac(G2+4, 0.9))
    put([bread2(sp, mt) for sp in range(0, 3) for mt in range(4)], frac(25, 0.05), frac(25, 0.9))
    put([bread2(sp, mt) for sp in range(3, 6) for mt in range(4)], frac(26, 0.05), frac(26, 0.9))
    put([xchk_i(0)], frac(28, 0.1), frac(28, 0.1))
    put([xchk_v(0)] + [bread2(sp, mt) for sp in range(6, 12) for mt in range(4)], frac(G2, 0.0), frac(G2+1, 0.95))
    put([bread2(sp, mt) for sp in (12, 13, 14) for mt in range(4)], frac(G2+4, 0.0), frac(G2+4, 0.6))
    put([xchk_i(1)], frac(G2+4, 0.0), frac(G2+4, 0.0))
    put([xchk_v(1)] + [bread2(sp, mt) for sp in (15, 16) for mt in range(4)], frac(G2+5, 0.3), frac(G2+5, 0.8))
    put([xchk_i(2)], frac(G2+6, 0.3), frac(G2+6, 0.3))
    put([xchk_v(2)] + [bread2(17, mt) for mt in range(4)], frac(G2+7, 0.3), frac(G2+7, 0.5))

    o = Ops(a)
    o.e(f"""s_lshl_b32 s23, s18, 1
    s_add_u32 s23, s23, s19
    s_mul_i32 s26, s23, {9*65536}
    s_lshl_b32 s24, s16, 11
    s_add_u32 s26, s26, s24
    s_add_u32 s26, s26, {WS_P}
    s_mul_i32 s27, s23, {9*2048}
    s_lshl_b32 s24, s16, 9
    s_add_u32 s27, s27, s24
    s_add_u32 s27, s27, {FL4}
    s_lshl_b32 s24, s17, 13
    s_add_u32 s20, s26, s24
    s_lshl_b32 s24, s17, 6
    s_add_u32 s21, s27, s24
    s_and_b32 s24, s17, 1
    s_lshl_b32 s24, s24, 5
    v_xor_b32 v{V_R+2}, s24, v{V_R2}
    v_xor_b32 v{V_R+3}, s24, v{V_R2+1}
    v_xor_b32 v{V_R}, 32, v{V_R+2}
    v_xor_b32 v{V_R+1}, 32, v{V_R+3}""")
    ob = [lambda o=o: [f() for f in o]]
    put(ob, frac(G2+3, 0.2), frac(G2+3, 0.2))
    ocnt = {'n': 0}
    def owner(g, tau, dst, sh, base):
        if g == 'H': return f's_add_u32 s{dst}, s{base}, {8 << sh}'
        if g == 3: return f's_xor_b32 s{dst}, s17, 1\ns_lshl_b32 s{dst}, s{dst}, {sh}\ns_add_u32 s{dst}, s{dst}, s{base}'
        return f's_add_u32 s{dst}, s9, {g+1}\ns_and_b32 s{dst}, s{dst}, 3\ns_lshl_b32 s{dst}, s{dst}, {sh+1}\ns_add_u32 s{dst}, s{dst}, s{base}' + (f'\ns_add_u32 s{dst}, s{dst}, {1 << sh}' if tau else '')
    def out_ops(g, tau):
        o = Ops(a); acc = G2ACC[g][tau]
        oo = V_T + 8*(ocnt['n'] % 2); ocnt['n'] += 1
        o.f(lambda: a(owner(g, tau, 31, 16, 20)))
        for hf in range(2):
            for i in range(4): o.e(f'v_cvt_pk_bf16_f32 v{oo+4*hf+i}, v{acc+8*hf+2*i}, v{acc+8*hf+2*i+1}')
            o.f(lambda hf=hf: a.vmem(f'buffer_store_dwordx4 {vr(oo+4*hf)}, v{V_L16}, s[12:15], s31 offen offset:{hf*1024} sc1', ('st', g, tau)))
        return o
    def oflag(lst):
        def f():
            for g, tau in lst:
                a.wait(vm=[('st', g, tau)]); a(owner(g, tau, 25, 11, 21)); flag_store0(25)
        return f
    SCn, SD, SO = G2+9, G2+12, NS
    first5 = [('H', 0), (0, 0), (0, 1), (1, 0), (1, 1)]
    f5 = []
    for g, tau in first5: f5 += out_ops(g, tau)
    put(f5, frac(SCn, 0.2), frac(SCn+1, 0.5))
    put([oflag(first5)], frac(SD, 0.3), frac(SD, 0.3))
    put(out_ops(2, 0) + out_ops(2, 1), frac(SD, 0.4), frac(SD+1, 0.4))
    put(out_ops(3, 0), frac(SO, 0.4), frac(SO, 0.9))
    put([oflag([(2, 0), (2, 1)])], frac(SO, 0.95), frac(SO, 0.95))
    SUM = ACC[0]+48; RES = V_T+16; MU = V_C0; CS = ACC[1]; CR = ACC[1]+4
    V_OUT, V_OUTC, V_CL = V_B1, V_B2, V_ACTW
    o = Ops(a)
    o.e(f"""s_lshl_b32 s23, s18, 1
    s_add_u32 s23, s23, s54
    s_mul_i32 s30, s23, 73728
    s_add_u32 s30, s30, {WS_HC}
    s_lshl_b32 s22, s23, 8
    s_add_u32 s22, s22, {WS_MU}
    s_mul_i32 s10, s23, 2304
    s_and_b32 s24, s17, 1
    s_lshl_b32 s28, s55, 1
    s_add_u32 s24, s24, s28
    s_lshl_b32 s24, s24, 5
    s_add_u32 s52, s24, s{SC+3}
    s_lshl_b32 s24, s19, 1
    s_add_u32 s24, s24, s55
    s_lshl_b32 s24, s24, 5
    s_add_u32 s53, s24, 512
    v_lshrrev_b32 v{V_XW}, 1, v23
    v_lshlrev_b32 v{V_XW}, 10, v{V_XW}
    v_lshl_add_u32 v{V_XW}, v22, 4, v{V_XW}
    v_and_b32 v8, 1, v23
    v_lshl_add_u32 v{V_XW}, v8, 3, v{V_XW}
    v_lshlrev_b32 v8, 2, v22
    s_lshl_b32 s24, s52, 6
    s_add_u32 s24, s24, s30""")
    for mt in range(4): o.f(lambda mt=mt: a.vmem(f'buffer_load_dwordx2 {vr(RES+2*mt,2)}, v{V_XW}, s[12:15], s24 offen offset:{mt*256} sc1', 'res'))
    for mt in range(4): o.f(lambda mt=mt: a.vmem(f'buffer_load_dword v{MU+mt}, v8, s[12:15], s22 offen offset:{mt*64} sc1', 'res'))
    o.e(f"""s_lshl_b32 s24, s53, 6
    s_add_u32 s24, s24, s30
    s_lshl_b32 s28, s9, 8
    s_add_u32 s24, s24, s28""")
    o.f(lambda: a.vmem(f'buffer_load_dwordx2 {vr(CR,2)}, v{V_XW}, s[12:15], s24 offen sc1', 'res'))
    o.e(f's_lshl_b32 s28, s9, 6\ns_add_u32 s22, s22, s28')
    o.f(lambda: a.vmem(f'buffer_load_dword v{CR+2}, v8, s[12:15], s22 offen sc1', 'res'))
    o.e(f"""s_mov_b32 s23, 73728
    v_mul_lo_u32 v{V_OUT}, v22, s23
    v_lshl_add_u32 v{V_OUT}, v23, 3, v{V_OUT}
    v_lshrrev_b32 v{V_CL}, 3, v9
    v_xor_b32 v{V_CL}, s17, v{V_CL}
    v_lshlrev_b32 v{V_CL}, 31, v{V_CL}
    v_or_b32 v{V_OUTC}, v{V_CL}, v{V_OUT}
    v_or_b32 v{V_CL}, v{V_CL}, v{V_L16}
    s_lshr_b32 s23, s9, 1
    s_lshl_b32 s11, s23, 10
    s_mul_i32 s24, s23, 1152
    s_add_u32 s53, s53, s24
    s_and_b32 s23, s9, 1
    s_mul_i32 s24, s23, {16*73728}
    s_add_u32 s53, s53, s24
    s_add_u32 s53, s53, s10
    s_add_u32 s52, s52, s10
    s_lshl_b32 s23, s23, 3
    s_add_u32 s11, s11, s23
    s_add_u32 s11, s11, s26
    s_add_u32 s11, s11, {8*65536}
    s_lshl_b32 s23, s17, 16
    s_add_u32 s26, s26, s23
    s_add_u32 s30, s27, {8*2048}
    s_lshl_b32 s23, s17, 11
    s_add_u32 s27, s27, s23
    s_and_b32 s23, s17, 6
    s_lshl_b32 s24, 0xf0f0, s23
    s_lshr_b32 s96, s24, 8
    s_and_b32 s96, s96, 0xff
    s_mov_b32 s97, 0
    s_lshl_b32 s24, 1, s17
    s_or_b32 s24, s24, s96
    s_xor_b32 s98, s24, 0xff
    s_mov_b32 s99, 0
    s_mov_b64 s[4:5], 0xff""")
    ob = [lambda o=o: [f() for f in o]]
    put(ob, frac(SD+1, 0.5), frac(SD+1, 0.5))
    for i in range(NM):
        for f in slots[i]: f()
        S, key, bi, mk = mfs[i]
        if diag and P.get('ST'):
            for q, SS in enumerate(P['ST']):
                if i == srange[SS][0]: stamp(a, 1+q, True)
        if diag and i == srange[6][0]: stamp(a, 10, True)
        if diag and i == srange[G2][0]: stamp(a, 11, True)
        assert bl.get(bi) == (1 if S < G2 else 2), (i, S, bi)
        a.wait(vm=[('b', bi)], lg=[('f', key), ('b', bi)])
        a(mk(vr(FR + 4*(fid[key] % NFR))))
    for f in slots[NM]: f()
    stamp(a, 12, diag)
    def accum(dst, src, n):
        for i in range(n):
            a(f'v_lshlrev_b32 v{V_T}, 16, v{src+i}\nv_and_b32 v{V_T+1}, 0xffff0000, v{src+i}\nv_add_f32 v{dst+2*i}, v{dst+2*i}, v{V_T}\nv_add_f32 v{dst+2*i+1}, v{dst+2*i+1}, v{V_T+1}')
    chk_issue(27, V_CK, 'cA', 96); chk_issue(30, V_T+2, 'cC', 4)
    oflag([(3, 0)])()
    def pload(x, reg):
        if x == 1: a('s_xor_b32 s23, s17, 1')
        else: a(f's_and_b32 s23, s17, 6\ns_add_u32 s23, s23, {x}\ns_and_b32 s23, s23, 7')
        a('s_lshl_b32 s23, s23, 13\ns_add_u32 s23, s23, s26')
        for hf in range(2):
            a.vmem(f'buffer_load_dwordx4 {vr(reg+4*hf)}, v{V_L16}, s[12:15], s23 offen offset:{hf*1024} sc1', ('p', x))
    chk_verify(27, V_CK, 'cA', 96, 1)
    for n, x in enumerate((4, 5, 6, 7)): pload(x, FR+8*n)
    chk_verify(30, V_T+2, 'cC', 4, 1)
    CL = ACC[0]
    for p in range(8):
        a.vmem(f'buffer_load_dwordx2 {vr(CL+2*p,2)}, v{V_CL}, s[12:15], s11 offen sc1', 'cl')
        if p < 7: a('s_add_u32 s11, s11, 8192')
    chk_issue(27, V_CK, 'cB', 98)
    OWN = G2ACC[3][1]
    for i in range(16): a(f'v_add_f32 v{OWN+i}, v{OWN+i}, v{MU+(i>>2)}')
    accum(OWN, RES, 8)
    for i in range(4): a(f'v_mov_b32 v{CS+i}, v{CR+2}')
    accum(CS, CR, 2)
    for n, x in enumerate((4, 5, 6, 7)):
        a.wait(vm=[('p', x)]); accum(OWN, FR+8*n, 8)
    chk_verify(27, V_CK, 'cB', 98, 0)
    stamp(a, 13, diag)
    for n, x in enumerate((2, 3, 1)): pload(x, FR+8*n)
    for p in range(8): accum(CS, CL+2*p, 2)
    a(f'v_cvt_pk_bf16_f32 v{CR}, v{CS}, v{CS+1}\nv_cvt_pk_bf16_f32 v{CR+1}, v{CS+2}, v{CS+3}')
    a.vmem(f'buffer_store_dwordx2 {vr(CR,2)}, v{V_OUTC}, s[32:35], s53 offen', 'out')
    for n, x in enumerate((2, 3, 1)):
        a.wait(vm=[('p', x)]); accum(OWN, FR+8*n, 8)
    a(f's_add_u32 s53, s52, {16*73728}')
    for mt in range(4):
        a(f'v_cvt_pk_bf16_f32 v{RES+2*mt}, v{OWN+4*mt}, v{OWN+4*mt+1}\nv_cvt_pk_bf16_f32 v{RES+2*mt+1}, v{OWN+4*mt+2}, v{OWN+4*mt+3}')
        a.vmem(f'buffer_store_dwordx2 {vr(RES+2*mt,2)}, v{V_OUT}, s[32:35], s{52+(mt&1)} offen offset:{(mt>>1)*1152}', 'out')
```

```python
from asmlib import *
from layout import *
import math
WS_X = 0x4000000

def cost(line):
    op = line.split()[0]
    if op.startswith(('v_exp', 'v_rcp', 'v_rsq')): return 8
    if op.startswith('buffer_'): return 16
    if op.startswith('v_pk_'): return 6
    if op.startswith('ds_write'): return 10
    if op.startswith(('v_fma_f32', 'v_cvt_pk', 'v_mul_lo', 'v_lshl_add', 'ds_')): return 5
    return 4

class COps(list):
    def __init__(self, a): super().__init__(); self.a = a
    def e(self, s):
        for line in s.split('\n'):
            line = line.strip()
            if line: self.append((cost(line), lambda line=line: self.a(line)))
    def f(self, fn, c=4): self.append((c, fn))
    def blob(self):
        l = list(self); return (sum(c for c, _ in l), lambda: [f() for _, f in l])

def emit_ffn3(a, P):
    import mega
    diag = P['diag']
    chk_issue, chk_verify, flag_store0 = P['chk_issue'], P['chk_verify'], P['flag_store']
    V_CK, stamp = P['V_CK'], P['stamp']
    SH, RDN, NFR = P.get('SH', 6), P.get('RDN', 19), 8
    DMAC = P.get('DMAC', 24)
    FLX = mega.FLX; FL4 = mega.FL4; FL3 = mega.FL3
    RING = 73728
    V_L16, V_B1, V_B2, V_ACTW = 1, 2, 3, 4
    V_DD, V_DH, V_B2g = 5, 6, 7
    V_C0, V_C1, V_IR = 10, 12, 14
    V_R = 16
    V_T = 24
    ACC = [48, 112]
    FR = 176
    BX = 208
    V_DG = 240
    def breg(bi): return vr(4*bi, 4, 'a') if bi < 64 else vr(BX + 4*(bi-64))
    a(f"""L_ffn:
    s_load_dwordx2 s[32:33], s[0:1], 56
    s_load_dwordx4 s[4:7], s[0:1], 32
    s_load_dwordx2 s[48:49], s[0:1], 48
    v_lshlrev_b32 v{V_L16}, 4, v9
    s_and_b32 s23, s35, 7
    s_lshr_b32 s24, s35, 3
    s_and_b32 s19, s24, 1
    s_and_b32 s17, s23, 3
    s_lshl_b32 s17, s17, 1
    s_bfe_u32 s25, s24, 0x10001
    s_add_u32 s17, s17, s25
    s_lshr_b32 s18, s23, 2
    s_lshl_b32 s18, s18, 3
    s_lshr_b32 s25, s24, 2
    s_add_u32 s18, s18, s25
    s_lshr_b32 s54, s16, 1
    s_and_b32 s55, s16, 1
    v_lshrrev_b32 v22, 3, v9
    v_and_b32 v23, 7, v9
    v_bfe_u32 v24, v9, 4, 1
    v_lshlrev_b32 v25, 1, v24
    v_xor_b32 v25, v25, v23
    s_mul_i32 s23, s16, 24
    v_add_u32 v26, s23, v22
    v_mul_u32_u24 v26, 9216, v26
    v_lshl_add_u32 v{V_DG}, v25, 4, v26
    v_add_u32 v{V_DG+1}, {8*9216-1024}, v{V_DG}
    v_add_u32 v{V_DG+2}, {16*9216-2048}, v{V_DG}
    v_xor_b32 v{V_DG+3}, 64, v{V_DG}
    v_xor_b32 v{V_DG+4}, 64, v{V_DG+1}
    v_xor_b32 v{V_DG+5}, 64, v{V_DG+2}
    s_mul_i32 s22, s16, 3072
    s_mul_i32 s20, s17, 1152
    s_lshl_b32 s23, s19, 6
    s_add_u32 s21, s20, s23
    s_add_u32 s21, s21, 512
    s_mul_i32 s23, s19, 640
    s_add_u32 s20, s20, s23
    s_waitcnt lgkmcnt(0)
    s_mov_b32 s40, s4
    s_mov_b32 s41, s5
    s_mov_b32 s42, {576*9216}
    s_mov_b32 s43, 0x20000
    s_mov_b32 s44, s6
    s_mov_b32 s45, s7
    s_mov_b32 s46, {576*9216}
    s_mov_b32 s47, 0x20000
    s_mov_b32 s50, {576*9216}
    s_mov_b32 s51, 0x20000
    s_mov_b32 s34, {NB}
    s_mov_b32 s35, 0x20000""")
    a('s_cmp_lg_u32 s16, 3\ns_cbranch_scc1 L_nopre\ns_cmp_lt_u32 s2, 64\ns_cbranch_scc1 L_pre')
    P['lds_wait'](1, 26)
    a(f"""L_pre:
    s_mov_b32 s25, {RING}
    s_mov_b32 s24, s20
    s_mov_b32 s26, 0""")
    for j in range(6): a(f'v_subrev_u32 v{48+j}, {72*9216}, v{V_DG+j}')
    a(f"""L_prel:
    s_mov_b32 m0, s25
    s_add_u32 s27, s25, 12288""")
    for j in range(3): a(f'buffer_load_dwordx4 v{48+j}, s[40:43], s24 offen offset:{1024*j} lds')
    a('s_mov_b32 m0, s27\ns_add_u32 s26, s26, 1')
    for j in range(3): a(f'buffer_load_dwordx4 v{51+j}, s[44:47], s24 offen offset:{1024*j} lds')
    a(f"""s_add_u32 s24, s24, {24*9216}
    s_add_u32 s25, s25, 3072
    s_and_b32 s27, s26, 3
    s_cmp_eq_u32 s27, 0
    s_cselect_b32 s27, 12288, 0
    s_add_u32 s25, s25, s27
    s_cmp_lt_u32 s26, 12
    s_cbranch_scc1 L_prel""")
    if P.get('HPF', 0):
        a(f"""s_cmp_lt_u32 s2, 64
        s_cbranch_scc1 L_nopre
        s_sub_u32 s24, s2, 64
        s_mul_i32 s24, s24, 27648
        v_lshl_add_u32 v48, v9, 7, s24
        s_bfm_b64 exec, 54, 0""")
        for i in range(4): a(f'buffer_load_dword v254, v48, s[48:51], 0 offen\nv_add_u32 v48, 6912, v48')
        a('s_mov_b64 exec, -1')
    a('L_nopre:')
    PASS = ['F0', 'H', 'F1', 'F2', 'F3']
    PG = [0, None, 1, 2, 3]
    stages = []
    pstart = []
    for p in range(5):
        pstart.append(len(stages))
        stages += [('g1', p, sg) for sg in range(3 if p == 1 else 6)]
    G2 = len(stages)
    KS = [('p',0),('p',1),('p',8), ('p',2),('p',3),('o',0), ('o',1),('o',8),('o',2), ('o',3),('o',4),('o',5), ('p',4),('p',5),('o',6), ('o',7),('p',6),('p',7)]
    sl = {k: i for i, k in enumerate(KS)}
    early = [('o',0),('o',1),('p',0),('p',1),('o',8),('p',8),('o',2),('o',3),('p',2),('p',3),('o',4),('o',5),('p',4),('p',5)]
    blocks = []
    order = early[:12] + [('o',6),('o',7),('p',4),('p',5),('p',6),('p',7)]
    for i in range(0, 18, 2):
        blocks += [('F', 0, sl[order[i]]), ('F', 0, sl[order[i+1]]), ('H', sl[order[i]], sl[order[i+1]])]
    NBE = P.get('NBE', 1)
    bb = [('F', 1, s) for s in range(18)]
    blocks = blocks[:24] + bb[:6*NBE] + blocks[24:] + bb[6*NBE:]
    for g in (2, 3): blocks += [('F', g, s) for s in range(18)]
    cuts = [6]*(4+NBE) + [3] + [6]*(9-NBE)
    i = 0
    for c in cuts: stages.append(('g2', blocks[i:i+c])); i += c
    NS = len(stages)
    SC = 36
    SL = G2+4+NBE; SB, SCn, SD, SO = SL+1, G2+8, G2+11, NS
    FREEA = G2+4
    slotb = {}; rel = {}
    for S in range(NS):
        if S <= G2+5 or S == SL: slotb[S] = RING + (S % 3)*24576; rel[S] = S-2
        elif S <= G2+8: slotb[S] = (S-G2-6)*24576; rel[S] = FREEA
        else: slotb[S] = slotb[S-6]; rel[S] = S-5
    def rowbase(ks):
        kind, i = KS[ks]
        r = {('o', False): 4, ('p', False): 5, ('o', True): 6, ('p', True): 7}[(kind, i == 8)]
        return r, (32*i*1152 if i < 8 else 0)
    dg = {'g': None}
    def dma_ops(S):
        o = COps(a)
        if S >= NS: return o
        st = stages[S]; slot = slotb[S]
        if st[0] == 'g1':
            p, sg = st[1], st[2]
            for mat in range(2):
                for j in range(3):
                    if p != 1:
                        pre = f's_add_u32 m0, s22, {slot+12288*mat}\ns_add_u32 s24, s20, {96*sg*9216+128*PG[p]}\n' if j == 0 else ''
                        ins = f'buffer_load_dwordx4 v{V_DG+3*mat+j}, s[{40+4*mat}:{43+4*mat}], s24 offen offset:{1024*j} lds'
                    else:
                        pre = f's_add_u32 m0, s22, {slot+12288*mat+1024*j}\ns_add_u32 s24, s21, {(192*sg+16*j)*9216}\n'
                        ins = f'buffer_load_dwordx4 v{22+mat}, s[{40+4*mat}:{43+4*mat}], s24 offen lds'
                    o.f(lambda pre=pre, ins=ins: (a(pre), a.vmem(ins, ('u', S))), DMAC + (8 if pre else 0))
        else:
            for n, b in enumerate(st[1]):
                pre = ''
                if b[0] == 'F':
                    if b[1] != dg['g']:
                        back = dg['g'] is not None and b[1] < dg['g']
                        pre = ''.join(f's_{"sub" if back else "add"}_u32 s{r}, s{r}, s{SC+(dg["g"] if back else b[1])}\n' for r in range(4, 8))
                        dg['g'] = b[1]
                    r, c = rowbase(b[2])
                    pre += f's_add_u32 s24, s{r}, {c}\n'
                    vo = V_DD
                else:
                    r, c = rowbase(b[1])
                    if r >= 6: pre = 's_mov_b32 s24, s8\n'
                    else: pre = f's_add_u32 s24, s{(3, 58)[r-4]}, {c}\n'
                    vo = V_DH
                pre = f's_add_u32 m0, s28, {slot+4096*n}\n' + pre
                o.f(lambda pre=pre, vo=vo: (a(pre), a.vmem(f'buffer_load_dwordx4 v{vo}, s[48:51], s24 offen lds', ('u', S))), DMAC + 8)
        return o
    def hc_ops(g):
        o = COps(a)
        if g >= 6: return o
        for mh in range(2):
            for j in range(3):
                pre = f's_add_u32 m0, s22, {(g%3)*24576+mh*12288}\ns_add_u32 s24, s30, {12288*g+73728*mh}\n' if j == 0 else ''
                o.f(lambda j=j, pre=pre: (a(pre), a.vmem(f'buffer_load_dwordx4 v{V_L16}, s[12:15], s24 offen offset:{j*1024} sc1 lds', ('dma', g))), DMAC)
        return o
    a(f"""s_mul_i32 s30, s18, {2*73728}
    s_add_u32 s30, s30, s22
    s_add_u32 s30, s30, {WS_HC}
    s_lshl_b32 s31, s18, 1
    s_add_u32 s31, s31, s54
    s_mul_i32 s27, s31, {NSSQ*256}
    s_add_u32 s27, s27, {WS_SSQ}
    v_lshlrev_b32 v8, 2, v9
    s_lshl_b32 s28, s16, 10
    s_mul_i32 s23, s17, {576*1152}
    s_mul_i32 s24, s19, {320*1152}
    s_add_u32 s4, s23, s24
    s_sub_u32 s5, s23, s24
    s_add_u32 s5, s5, {320*1152}
    s_mul_i32 s24, s19, {32*1152}
    s_add_u32 s6, s23, s24
    s_add_u32 s6, s6, {256*1152}
    s_sub_u32 s7, s23, s24
    s_add_u32 s7, s7, {288*1152}
    s_lshl_b32 s9, s19, 6
    s_add_u32 s9, s9, 512
    s_sub_u32 s23, s7, {32*1152}
    s_cmp_eq_u32 s54, 0
    s_cselect_b32 s8, s6, s23
    s_add_u32 s8, s8, s9
    s_lshr_b32 s3, s17, 1
    s_mul_i32 s23, s19, 640""")
    for g in range(4):
        a(f's_add_u32 s24, s3, {g+1}\ns_and_b32 s24, s24, 3\ns_lshl_b32 s24, s24, 7\ns_add_u32 s{SC+g}, s24, s23')
    a(f's_mov_b32 s29, s{SC+3}')
    for g in (3, 2, 1): a(f's_sub_u32 s{SC+g}, s{SC+g}, s{SC+g-1}')
    a('s_add_u32 s3, s4, s9')
    a(f"""s_lshl_b32 s23, s16, 3
    v_add_u32 v26, s23, v22
    v_mul_u32_u24 v26, 1152, v26
    v_lshlrev_b32 v25, 2, v24
    v_xor_b32 v25, v25, v23
    v_lshl_add_u32 v{V_DD}, v25, 4, v26
    v_lshrrev_b32 v25, 2, v9
    v_and_b32 v27, 3, v9
    s_lshl_b32 s23, s16, 4
    v_add_u32 v26, s23, v25
    v_mul_u32_u24 v26, 1152, v26
    v_lshl_add_u32 v{V_DH}, v27, 4, v26
    s_mul_i32 s23, s16, 48
    v_add_u32 v26, s23, v25
    v_mul_u32_u24 v26, 9216, v26
    v_lshl_add_u32 v22, v27, 4, v26
    v_xor_b32 v23, 32, v22
    v_and_b32 v29, 31, v9
    v_lshrrev_b32 v25, 5, v9
    v_lshlrev_b32 v{V_B2g}, 10, v25
    v_lshl_add_u32 v{V_B2g}, v29, 4, v{V_B2g}
    s_mul_i32 s23, s54, 12288
    v_add_u32 v{V_B1}, s23, v{V_B2g}
    s_mul_i32 s23, s54, 36864
    v_add_u32 v{V_B2}, s23, v{V_B2g}
    s_lshl_b32 s24, s55, 12
    v_add_u32 v{V_ACTW}, s24, v{V_B2}
    s_lshl_b32 s24, s18, 3
    s_add_u32 s24, s24, s17
    s_lshl_b32 s24, s24, 1
    s_add_u32 s25, s24, s19
    s_xor_b32 s24, s25, 1
    s_mul_i32 s10, s25, 73728
    s_add_u32 s10, s10, {WS_X}
    s_mul_i32 s11, s24, 73728
    s_add_u32 s11, s11, s23
    s_add_u32 s11, s11, {WS_X}
    s_lshl_b32 s52, s25, 10
    s_lshl_b32 s23, s16, 6
    s_add_u32 s52, s52, s23
    s_add_u32 s52, s52, {FLX}
    s_lshl_b32 s53, s24, 10
    s_lshl_b32 s23, s54, 7
    s_add_u32 s53, s53, s23
    s_add_u32 s53, s53, {FLX}""")
    a(f"""v_bfe_u32 v24, v9, 2, 2
    v_lshl_add_u32 v25, v25, 3, v24
    v_bfe_u32 v26, v9, 4, 1
    v_mul_u32_u24 v27, 12288, v26
    v_and_b32 v28, 1, v9
    v_lshl_add_u32 v27, v28, 4, v27
    v_bfe_u32 v28, v9, 1, 1
    v_lshl_add_u32 v27, v28, 3, v27
    v_add_u32 v27, {RING}, v27
    v_lshrrev_b32 v24, 1, v24
    v_lshl_or_b32 v24, v26, 1, v24
    s_lshl_b32 s23, s55, 1
    v_xor_b32 v24, s23, v24
    v_lshl_add_u32 v28, v25, 7, v27
    v_lshl_add_u32 v{V_R}, v24, 5, v28
    v_add_u32 v{V_R+1}, 49152, v{V_R}
    v_xor_b32 v{V_R+2}, 32, v{V_R}
    v_xor_b32 v{V_R+3}, 32, v{V_R+1}
    v_xor_b32 v24, s55, v26
    v_lshl_add_u32 v28, v25, 6, v27
    v_lshl_add_u32 v{V_R+4}, v24, 5, v28
    v_add_u32 v{V_R+5}, 49152, v{V_R+4}
    s_lshl_b32 s26, s18, 12
    s_add_u32 s26, s26, {FL3}
    s_mov_b32 s96, 0x3ffff
    s_mov_b32 s97, 0x3ffff
    s_mov_b64 s[98:99], 3
    v_mov_b32 v246, v{V_ACTW}""")
    a.wait(vm='pre'); flag_store0(58, None, 255)
    a('s_add_u32 s58, s5, s9')
    stamp(a, 8, diag)
    a('s_cmp_lg_u32 s16, 3\ns_cbranch_scc1 L_c3skip')
    vm0 = list(a.vm)
    chk_issue(26, V_CK, 'c3', 96); chk_verify(26, V_CK, 'c3', 96, 2)
    a.vm = vm0
    a('L_c3skip:\ns_barrier')
    stamp(a, 9, diag)
    for _, f in hc_ops(0) + hc_ops(1): f()

    Qa = [48, 80, 112, 144]
    PACC = [(Qa[0], Qa[1]), (Qa[2],), (Qa[3], Qa[0]), (Qa[1], Qa[2]), (Qa[3], Qa[0])]
    GACC = {0: Qa[1], 'H': Qa[2], 1: Qa[3], 2: Qa[0], 3: Qa[1]}
    V_R2, V_R2H = 240, V_R+4
    mfs = []; frs = []; fid = {}; srange = []
    started = set()
    def addfr(S, key, base, off, hstep):
        if base != V_R2: off -= RING
        base, off = base + off//49152, off % 49152
        fid[key] = len(fid); frs[S].append((key, base, off, hstep)); return key
    def addmf(S, k, d, B, bi):
        first = d not in started; started.add(d)
        dd = vr(d, 16)
        mfs.append((S, k, bi, lambda A: f'v_mfma_f32_32x32x16_bf16 {dd}, {A}, {B}, {"0" if first else dd}'))
    SEL = {'n': 0}
    for S, st in enumerate(stages):
        frs.append([]); m0 = len(mfs); slot = slotb[S]
        if st[0] == 'g1':
            p, sg = st[1], st[2]
            if sg == 0: started.clear()
            if p != 1:
                for ks in range(6):
                    for tau in range(2):
                        k = addfr(S, (S, ks, tau), V_R+2*tau, slot+ks*2048, 512)
                        for mt in range(2): addmf(S, k, PACC[p][tau]+16*mt, breg(2*(6*sg+ks)+mt), 2*(6*sg+ks)+mt)
            else:
                for ks in range(12):
                    k = addfr(S, (S, ks, 0), V_R+4, slot+ks*1024, 256)
                    for mt in range(2): addmf(S, k, PACC[p][0]+16*mt, breg(2*(12*sg+ks)+mt), 2*(12*sg+ks)+mt)
        else:
            if S == G2 or S == NS-3: started.clear()
            for n, b in enumerate(st[1]):
                if b[0] == 'F':
                    for e in range(2):
                        k = addfr(S, (S, n, e), V_R2, slot+n*4096+e*2048, 512)
                        for mt in range(2 if b[1] != 3 else 1):
                            bi = 4*b[2]+2*e+mt
                            addmf(S, k, GACC[b[1]]+16*mt, breg(bi), bi)
                else:
                    for e in range(4):
                        k = addfr(S, (S, n, e), V_R2H, slot+n*4096+e*1024, 256)
                        bi = 4*b[1+e//2]+2*(e & 1)
                        addmf(S, k, GACC['H'], breg(bi), bi)
        srange.append((m0, len(mfs)))
    for k3 in range(3):
        S = NS+k3; S0 = NS-3+k3; frs.append([]); m0 = len(mfs); slot = slotb[S0]
        for n, b in enumerate(stages[S0][1]):
            for e in range(2):
                k = addfr(S, (S, n, e), V_R2, slot+n*4096+e*2048, 512)
                bi = 4*b[2]+2*e+1
                addmf(S, k, GACC[3]+16, breg(bi), bi)
        srange.append((m0, len(mfs)))
    NM = len(mfs)
    lastuse = {}; firstuse = {}
    for i, m in enumerate(mfs):
        lastuse[m[1]] = i; firstuse.setdefault(m[1], i)
    keys = sorted(fid, key=lambda k: fid[k])
    slots = [[] for _ in range(NM+1)]
    load = [0]*(NM+1)
    def at(i, c, f):
        i = max(0, min(NM, int(i))); slots[i].append(f); load[i] += c
    def put(ops, lo, hi):
        n = len(ops)
        for k, (c, f) in enumerate(ops): at(lo + (hi-lo)*k/n, c, f)
    def fill(ops, lo, hi):
        lo, hi = int(lo), int(hi)
        tot = sum(c for c, _ in ops)
        lv = 0
        while sum(max(0, lv - load[i]) for i in range(lo, hi)) < tot: lv += 1
        i = lo; carry = 0
        room = max(0, lv - load[i])
        for c, f in ops:
            while room < c/2 and i < hi-1:
                i += 1; room += max(0, lv - load[i])
            at(i, c, f); room -= c
    def frac(S, x):
        m0, m1 = srange[S]; return m0 + x*(m1-m0)
    bpos = {}; xwait = {}
    awn = {p: 0 for p in range(5)}; vis = set(); bl = {}
    def barrier(S):
        def f():
            lg = [('f', k[0]) for k in frs[S-1]] if S else []
            if S <= 6 or S == FREEA: lg += [('b', k) for k in range(72)]
            if S == FREEA: assert all(bl[4*k+e] == 2 for k in range(18) if KS[k][0] == 'o' for e in range(4))
            a.wait(vm=[('u', S)] + xwait.get(S, []), lg=lg)
            for p in range(5):
                if awn[p] == (2 if p == 1 else 4) and ('aw', p) not in a.lg: vis.add(p)
            if not P.get('NOBAR'): a('s_barrier')
        return f
    prev = 0
    for S in range(NS+3):
        m0, m1 = srange[S]
        b = max(prev + (3 if S < NS else 0), m0 - SH) if S else 0
        b = min(b, m0)
        bpos[S] = b
        if S < NS: at(b, 10, barrier(S))
        n = len(frs[S])
        for j, (key, reg, off, hstep) in enumerate(frs[S]):
            pos = int(b + (firstuse[key]-m0)*RDN/24.0)
            i = fid[key]
            if i >= NFR: pos = max(pos, lastuse[keys[i-NFR]] + 1)
            pos = max(pos, prev)
            assert pos <= firstuse[key], (S, j, pos, firstuse[key])
            r = FR + 4*(i % NFR)
            for hf in range(2):
                at(pos, 5, lambda key=key, reg=reg, off=off, hf=hf, r=r, hstep=hstep: a.lds(f'ds_read_b64_tr_b16 {vr(r+2*hf,2)}, v{reg} offset:{off+hstep*hf}', ('f', key)))
            load[firstuse[key]] += 4
            prev = pos
    def place_mem(ops, lo, hi):
        n = len(ops)
        for k, (c, f) in enumerate(ops):
            l, h = int(lo + (hi-lo)*k/n), int(lo + (hi-lo)*(k+1)/n)
            cand = range(l, max(h, l+1))
            at(min(cand, key=lambda i: load[i]), c, f)
    nxt = 3; queue = []
    M1 = P.get('M1', 0.65); dmaend = {}
    for S in range(NS):
        mem = list(hc_ops(S+2)) if S < 4 else []
        while nxt < NS and rel[nxt] <= S:
            queue += [(nxt, x) for x in dma_ops(nxt)]; nxt += 1
        w = bpos[S+1]-bpos[S]
        k = max(sum(1 for q in queue if q[0] <= S+2), min(len(queue), int(P.get('RATE', 8)*w/24)))
        mem += [q[1] for q in queue[:k]]; queue = queue[k:]
        hi = bpos[S] + 1 + (M1 if len(mem) <= 6 else 0.9)*w
        place_mem(mem, bpos[S]+1, hi)
        dmaend[S] = int(hi)
    assert not queue

    def bread1(bi):
        s, mt = bi >> 1, bi & 1; g = s//6
        off = (g % 3)*24576 + (s % 6)*2048 + mt*512
        def f():
            bl[bi] = 1; a.lds(f'ds_read_b128 {breg(bi)}, v{V_B1} offset:{off}', ('b', bi))
        return (5, f)
    V_B2x, V_B2gx = 22, 23
    def bread2(ks):
        kind, i = KS[ks]; o = COps(a)
        for e in range(2):
            for mt in range(2):
                bi = 4*ks+2*e+mt
                if kind == 'o':
                    def g(bi=bi, e=e, mt=mt):
                        assert (1 if i == 8 else PG.index(i//2)) in vis, (ks, vis)
                        bl[bi] = 2; a.lds(f'ds_read_b128 {breg(bi)}, v{(V_B2, V_B2x)[mt]} offset:{i*4096+e*2048}', ('b', bi))
                    o.f(g, 5)
                else:
                    def f(bi=bi, e=e, mt=mt):
                        bl[bi] = 2
                        if e == 0 and mt == 0: a(f's_add_u32 s25, s11, {i*4096}')
                        a.vmem(f'buffer_load_dwordx4 {breg(bi)}, v{(V_B2g, V_B2gx)[mt]}, s[12:15], s25 offen offset:{e*2048} sc1', ('b', bi))
                    o.f(f, 20)
        return o
    for g in range(6):
        xwait[g] = [('dma', g)]
        put([bread1(bi) for bi in range(12*g, 12*g+12)], bpos[g], bpos[g] + (12 if g else 6))
    K0 = -2.0*math.log2(math.e)*math.sqrt(2.0/math.pi)
    o = COps(a)
    for j in range(NSSQ): o.f(lambda j=j: a.vmem(f'buffer_load_dword v{V_T+j}, v8, s[12:15], s27 offen offset:{j*256} sc1', 'ssq'), 12)
    place_mem(o, frac(4, 0.0), frac(4, 0.7))
    o = COps(a)
    o.f(lambda: a.wait(vm='ssq'))
    for j in range(1, NSSQ): o.e(f'v_add_f32 v{V_T}, v{V_T}, v{V_T+j}')
    o.e(f'v_mov_b32 v{V_IR}, {hexf(1e-5)}\nv_fmac_f32 v{V_IR}, {hexf(1.0/576)}, v{V_T}\nv_mov_b32 v{V_IR+1}, v{V_IR}\ns_nop 1\nv_permlane32_swap_b32 v{V_IR}, v{V_IR+1}\ns_nop 1')
    for mt in range(2): o.e(f'v_rsq_f32 v{V_T+4+mt}, v{V_IR+mt}')
    o.e('s_nop 0')
    for mt in range(2): o.e(f'v_mul_f32 v{V_C0+mt}, {hexf(K0)}, v{V_T+4+mt}')
    for mt in range(2): o.e(f'v_mul_f32 v{V_T+8+mt}, v{V_T+4+mt}, v{V_T+4+mt}')
    for mt in range(2): o.e(f'v_mul_f32 v{V_C1+mt}, {hexf(0.044715)}, v{V_C0+mt}')
    for mt in range(2): o.e(f'v_mul_f32 v{V_C1+mt}, v{V_C1+mt}, v{V_T+8+mt}')
    fill(o, frac(5, 0.6), frac(6, 0.2))

    deferred = []
    V_XW = 246
    def flushdef(mt=None):
        if mt is None or any(d[0] == mt for d in deferred):
            while deferred: deferred.pop(0)[1]()
    for S in range(NS):
        for i in range(dmaend[S], bpos[S+1]): slots[i].append(flushdef)
    def gelu_ops(p, tau):
        o = COps(a); acc = PACC[p][tau]
        cb = 32768 if p == 1 else 8192*PG[p]
        if p == 1: o.f(lambda: a(f's_lshl_b32 s23, s55, 11\nv_subrev_u32 v{V_ACTW}, s23, v{V_ACTW}\ns_sub_u32 s21, s10, s23'), 12)
        if p == 2 and tau == 0: o.f(lambda: a(f's_lshl_b32 s23, s55, 11\nv_add_u32 v{V_ACTW}, s23, v{V_ACTW}'), 8)
        for grp in range(4):
            mt = grp >> 1
            g = [acc + 16*mt + 4*(grp & 1) + i for i in range(4)]
            u = [x + 8 for x in g]
            oo = V_T + 16 + 4*mt + 2*(grp & 1)
            T = [V_T + 8*(grp & 1) + i for i in range(4)]
            Qr = [x + 4 for x in T]
            if P.get('GPK2'):
                pr = lambda x: f'v[{x}:{x+1}]'
                bc = f'op_sel:[0,{mt},{mt}] op_sel_hi:[1,{mt},{mt}]'
                for i in (0, 2): o.e(f'v_pk_mul_f32 {pr(T[i])}, {pr(g[i])}, {pr(g[i])}')
                for i in (0, 2): o.e(f'v_pk_mul_f32 {pr(Qr[i])}, {pr(g[i])}, {pr(u[i])}')
                for i in (0, 2): o.e(f'v_pk_fma_f32 {pr(T[i])}, {pr(T[i])}, {pr(V_C1)}, {pr(V_C0)} {bc}')
                for i in (0, 2): o.e(f'v_pk_mul_f32 {pr(T[i])}, {pr(T[i])}, {pr(g[i])}')
                for i in range(4): o.e(f'v_exp_f32 v{T[i]}, v{T[i]}')
                for i in (0, 2): o.e(f'v_pk_fma_f32 {pr(T[i])}, {pr(T[i])}, {pr(V_IR)}, {pr(V_IR)} {bc}')
                for i in range(4): o.e(f'v_rcp_f32 v{T[i]}, v{T[i]}')
                for i in (0, 2): o.e(f'v_pk_mul_f32 {pr(Qr[i])}, {pr(Qr[i])}, {pr(T[i])}')
                o.e(f'v_cvt_pk_bf16_f32 v{oo}, v{Qr[0]}, v{Qr[1]}\nv_cvt_pk_bf16_f32 v{oo+1}, v{Qr[2]}, v{Qr[3]}')
            elif not P.get('NOGELU'):
                for i in range(4): o.e(f'v_mul_f32 v{T[i]}, v{g[i]}, v{g[i]}')
                for i in range(4): o.e(f'v_fma_f32 v{T[i]}, v{T[i]}, v{V_C1+mt}, v{V_C0+mt}')
                for i in range(4): o.e(f'v_mul_f32 v{T[i]}, v{T[i]}, v{g[i]}')
                for i in range(4): o.e(f'v_exp_f32 v{T[i]}, v{T[i]}\nv_mul_f32 v{Qr[i]}, v{g[i]}, v{u[i]}')
                for i in range(4): o.e(f'v_fma_f32 v{T[i]}, v{T[i]}, v{V_IR+mt}, v{V_IR+mt}')
                for i in range(4): o.e(f'v_rcp_f32 v{T[i]}, v{T[i]}')
                for i in range(4): o.e(f'v_mul_f32 v{Qr[i]}, v{Qr[i]}, v{T[i]}')
                o.e(f'v_cvt_pk_bf16_f32 v{oo}, v{Qr[0]}, v{Qr[1]}\nv_cvt_pk_bf16_f32 v{oo+1}, v{Qr[2]}, v{Qr[3]}')
            if grp & 1:
                off = tau*2048 + mt*512
                o.f(lambda mt=mt, off=off: (awn.__setitem__(p, awn[p]+1), a.lds(f'ds_write_b128 v{V_ACTW}, {vr(V_T+16+4*mt)} offset:{cb+off}', ('aw', p))), 10)
                st_ = lambda mt=mt, off=off: (a(f's_add_u32 s31, s{10 if p != 1 else 21}, {cb}'), a.vmem(f'buffer_store_dwordx4 {vr(V_T+16+4*mt)}, v{V_XW}, s[12:15], s31 offen offset:{off} sc1', ('xs', p)))
                if p < 4: o.f(lambda st_=st_, mt=mt: deferred.append((mt, st_, p)), 20)
                else: o.f(st_, 20)
            else: o.insert(len(o)-2, (0, lambda mt=mt: flushdef(mt)))
        return o
    pH, p1, p2, p3 = pstart[1:5]
    def xflag(p, ck):
        def f():
            assert awn[p] == (2 if p == 1 else 4) and not any(d[2] <= p for d in deferred)
            a.wait(vm=[('xs', p)]); a(f's_add_u32 s23, s52, {256*ck}'); flag_store0(23)
        return f
    def xchk_i(ck): return lambda: (a(f's_add_u32 s26, s53, {256*ck}'), chk_issue(26, V_CK, ('cx', ck), 98))
    def xchk_v(ck): return lambda: chk_verify(26, V_CK, ('cx', ck), 98, 1)
    o = COps(a)
    o.e(f"""s_and_b32 s23, s17, 1
    s_xor_b32 s27, s23, s55
    s_lshl_b32 s23, s27, 9
    v_add_u32 v{V_B2}, s23, v{V_B2}
    v_add_u32 v{V_B2g}, s23, v{V_B2g}
    v_xor_b32 v{V_B2x}, 512, v{V_B2}
    v_xor_b32 v{V_B2gx}, 512, v{V_B2g}
    v_and_b32 v8, 1, v9
    v_lshlrev_b32 v8, 5, v8
    v_bfe_u32 v2, v9, 4, 1
    v_lshl_add_u32 v8, v2, 4, v8
    v_bfe_u32 v2, v9, 1, 1
    v_lshl_add_u32 v8, v2, 3, v8
    v_lshrrev_b32 v2, 5, v9
    v_lshlrev_b32 v2, 3, v2
    v_bfe_u32 v{V_R2H}, v9, 2, 2
    v_add_u32 v2, v2, v{V_R2H}
    v_lshl_add_u32 v{V_R2H}, v2, 6, v8
    v_add_u32 v{V_R2H}, {RING}, v{V_R2H}
    v_add_u32 v{V_R2H+1}, 49152, v{V_R2H}
    v_lshl_add_u32 v8, v2, 7, v8
    v_bfe_u32 v2, v9, 3, 1
    v_xor_b32 v2, s55, v2
    v_lshl_add_u32 v8, v2, 6, v8""")
    fill(o, frac(p2, 0.0), frac(p2, 0.25))
    at(frac(G2-1, 0.3), 12, lambda: a(f'v_mov_b32 v{V_R2}, v8\nv_add_u32 v{V_R2+1}, 49152, v8\nv_add_u32 v{V_R2+2}, 98304, v8'))
    o = COps(a)
    o.e(f"""v_mov_b32 v20, -1
    v_mov_b32 v21, -1
    v_mov_b32 v22, -1
    v_mov_b32 v23, -1
    s_add_u32 s26, s10, {8192*3}
    s_lshl_b32 s25, s18, 1
    s_add_u32 s25, s25, s19
    s_mul_i32 s25, s25, 9
    s_xor_b32 s27, s17, 1
    s_add_u32 s25, s25, s27
    s_lshl_b32 s25, s25, 3
    s_add_u32 s25, s25, s17
    s_lshl_b32 s25, s25, 2
    s_add_u32 s25, s25, s16
    s_lshl_b32 s25, s25, 11
    s_add_u32 s25, s25, {WS_P}""")
    fill(o, frac(p1, 0.0), frac(p1, 0.3))
    for q, off in enumerate((0, 512, 2048, 2560)):
        at(dmaend[p1+q], 16, lambda off=off: a.vmem(f'buffer_store_dwordx4 v[20:23], v{V_XW}, s[12:15], s26 offen offset:{off} sc1', 'clr'))
    for q, off in enumerate((0, 1024)):
        at(dmaend[p1+4+q], 16, lambda off=off: a.vmem(f'buffer_store_dwordx4 v[20:23], v{V_L16}, s[12:15], s25 offen offset:{off} sc1', 'clr'))
    assert dmaend[p1] >= frac(p1, 0.3) and dmaend[p1+5] < frac(p2, 0.0)
    if P.get('ISP', 0):
        NP = P.get('NP', 16)
        o = COps(a)
        o.e(f"""s_lshl_b32 s23, s2, 2
        s_add_u32 s23, s23, s16
        s_mul_i32 s100, s23, 5184
        s_and_b32 s100, s100, 0xffffff80
        s_lshl_b32 s101, s16, 2
        s_add_u32 s101, s101, s2
        s_and_b32 s101, s101, {NP-1}
        v_lshlrev_b32 v255, 7, v9""")
        at(frac(2, 0.9), *o.blob())
        for k in range(NP):
            def pf(k=k):
                a(f's_cmp_lg_u32 s101, {k}\ns_cbranch_scc1 L_pf{k}\ns_bfm_b64 exec, 41, 0\nbuffer_load_dword v254, v255, s[48:51], s100 offen\ns_mov_b64 exec, -1\nL_pf{k}:')
            at(dmaend[P.get('PF0', 5)+k], 8, pf)
    at(frac(p2+2, 0.5), 24, xflag(1, 0))
    at(frac(p2+5, 0.5), 24, xchk_i(0))
    at(frac(p3, 0.9), 24, xchk_v(0))
    place_mem(bread2(0) + bread2(1) + bread2(2), frac(p3+1, 0.05), frac(p3+4, 0.1))
    at(frac(p3+1, 0.7), 24, xflag(2, 1))
    at(frac(p3+3, 0.3), 24, xchk_i(1))
    at(frac(p3+4, 0.2), 24, xchk_v(1))
    place_mem(bread2(3) + bread2(4), frac(p3+4, 0.25), frac(G2, 0.5))
    put(bread2(5) + bread2(6) + bread2(7) + bread2(8), frac(p3+3, 0.05), frac(p3+4, 0.7))
    put(bread2(9), frac(p3+5, 0.05), frac(p3+5, 0.5))
    put(bread2(10) + bread2(11), frac(G2+1, 0.0), frac(G2+1, 0.6))
    at(frac(G2, 0.8), 24, xflag(3, 2))
    at(frac(G2+1, 0.7), 24, xchk_i(2))
    at(frac(G2+2, 0.3), 24, xchk_v(2))
    place_mem(bread2(12) + bread2(13), frac(G2+2, 0.35), frac(G2+2, 0.75))
    late = bread2(16) + bread2(17)
    place_mem(late, frac(SL, 0) - P.get('LL', 34), frac(SL, 0) - P.get('LL', 34) + 10)
    put(bread2(14) + bread2(15), bpos[G2+3], bpos[G2+3]+4)
    at(frac(SL, 0.0), 80, lambda: P['sentinel'](BX, 32, ('b', 71), lambda: [g() for _, g in late], V_T))
    o = COps(a)
    o.e(f"""s_lshl_b32 s23, s18, 1
    s_add_u32 s23, s23, s19
    s_mul_i32 s20, s23, {9*65536}
    s_add_u32 s20, s20, {WS_P}
    s_mul_i32 s21, s23, {9*2048}
    s_add_u32 s21, s21, {FL4}
    s_lshl_b32 s23, s16, 11
    s_add_u32 s40, s20, s23
    s_lshl_b32 s23, s16, 9
    s_add_u32 s41, s21, s23
    s_lshl_b32 s23, s17, 13
    s_add_u32 s42, s40, s23
    s_add_u32 s20, s20, s23
    s_lshl_b32 s23, s17, 6
    s_add_u32 s44, s41, s23
    s_add_u32 s21, s21, s23
    s_lshl_b32 s23, s54, 1
    s_add_u32 s23, s23, s27
    s_lshl_b32 s45, s23, 11
    s_add_u32 s20, s20, s45
    s_add_u32 s20, s20, {8*65536}
    s_lshl_b32 s45, s23, 9
    s_add_u32 s21, s21, s45
    s_add_u32 s21, s21, {8*2048}""")
    fill(o, frac(G2+2, 0.8), frac(G2+3, 0.5))
    ocnt = {'n': 0}
    def owner(g, pos, dst, sh, base, hreg):
        if g == 'H': return f's_mov_b32 s{dst}, s{hreg}'
        t = (f's_xor_b32 s{dst}, s17, 1\n' if pos == 0 else f's_mov_b32 s{dst}, s17\n')
        if g != 3: t += f's_add_u32 s{dst}, s{dst}, {2*(g+1)}\ns_and_b32 s{dst}, s{dst}, 7\n'
        return t + f's_lshl_b32 s{dst}, s{dst}, {sh}\ns_add_u32 s{dst}, s{dst}, s{base}'
    def out_ops(g, pos):
        o = COps(a); acc = GACC[g] + 16*pos
        oo = V_T + 8*(ocnt['n'] % 2); ocnt['n'] += 1
        o.f(lambda: a(owner(g, pos, 31, 16, 42, 20)), 20)
        for hf in range(2):
            for i in range(4): o.e(f'v_cvt_pk_bf16_f32 v{oo+4*hf+i}, v{acc+8*hf+2*i}, v{acc+8*hf+2*i+1}')
            o.f(lambda hf=hf: a.vmem(f'buffer_store_dwordx4 {vr(oo+4*hf)}, v{V_L16}, s[12:15], s31 offen offset:{hf*1024} sc1', ('st', g, pos)), 16)
        return o
    def oflag(g, pos):
        def f():
            a.wait(vm=[('st', g, pos)]); a(owner(g, pos, 23, 11, 44, 21)); flag_store0(23)
        return (36, f)
    fill(gelu_ops(0, 0), frac(pH, 0.25), frac(p1, 0.0))
    fill(gelu_ops(0, 1) + gelu_ops(1, 0), frac(p1, 0.0), frac(p2, 0.0))
    fill(gelu_ops(2, 0) + gelu_ops(2, 1), frac(p2, 0.25), frac(p2+5, 0.75))
    fill(gelu_ops(3, 0) + gelu_ops(3, 1), frac(p3, 0.25), frac(p3+5, P.get('GE3', 0.75)))
    fill(gelu_ops(4, 0) + gelu_ops(4, 1), frac(G2, 0.2), frac(G2+P.get('GE4', 2), P.get('GE4f', 0.3)))
    fill(out_ops(0, 0) + out_ops(0, 1) + out_ops('H', 0), frac(SB, 0.2), frac(SB, 0.95))
    put([oflag(0, 0), oflag(0, 1), oflag('H', 0)], frac(SCn+1, 0.0), frac(SCn+1, 0.28))
    fill(out_ops(1, 0) + out_ops(1, 1), frac(SCn, 0.25), frac(SCn, 0.9))
    put([oflag(1, 0), oflag(1, 1)], frac(SD, 0.1), frac(SD, 0.4))
    fill(out_ops(2, 0) + out_ops(2, 1), frac(SD, 0.5), frac(SD+1, 0.5))
    fill(out_ops(3, 0), frac(SO, 0.4), frac(SO, 0.9))
    put([oflag(2, 0), oflag(2, 1)], frac(SO+1, 0.1), frac(SO+1, 0.3))
    RES = V_T+16; MU = V_C0; CS = V_C1; CR = V_IR
    V_OUT = V_B1
    o = COps(a)
    o.e(f"""s_lshl_b32 s23, s18, 1
    s_add_u32 s23, s23, s54
    s_mul_i32 s30, s23, 73728
    s_add_u32 s30, s30, {WS_HC}
    s_lshl_b32 s22, s23, 8
    s_add_u32 s22, s22, {WS_MU}
    s_mul_i32 s10, s23, 2304
    s_xor_b32 s27, s27, 1
    s_lshl_b32 s23, s55, 6
    s_add_u32 s52, s23, s29
    v_and_b32 v247, 31, v9
    v_lshrrev_b32 v{V_B2}, 5, v9
    v_lshlrev_b32 v{V_B2x}, 11, v{V_B2}
    v_lshl_add_u32 v{V_B2x}, v247, 4, v{V_B2x}
    v_lshlrev_b32 v8, 2, v247
    s_lshl_b32 s23, s52, 6
    s_add_u32 s23, s23, s30
    s_lshl_b32 s25, s27, 9
    s_add_u32 s23, s23, s25""")
    for hf in range(2): o.f(lambda hf=hf: a.vmem(f'buffer_load_dwordx4 {vr(RES+4*hf)}, v{V_B2x}, s[12:15], s23 offen offset:{hf*1024} sc1', 'res'), 16)
    o.e(f's_lshl_b32 s25, s27, 7\ns_add_u32 s23, s22, s25')
    o.f(lambda: a.vmem(f'buffer_load_dword v{MU}, v8, s[12:15], s23 offen sc1', 'res'), 16)
    o.e(f's_lshl_b32 s25, s55, 7\ns_add_u32 s23, s22, s25')
    o.f(lambda: a.vmem(f'buffer_load_dword v{MU+1}, v8, s[12:15], s23 offen sc1', 'res'), 16)
    o.e(f"""s_lshr_b32 s25, s17, 2
    s_lshl_b32 s25, s25, 10
    s_and_b32 s23, s17, 3
    s_lshl_b32 s23, s23, 2
    s_add_u32 s25, s25, s23
    s_add_u32 s11, s40, s25
    s_add_u32 s11, s11, {8*65536}
    s_lshl_b32 s23, s9, 6
    s_add_u32 s23, s23, s30
    s_add_u32 s23, s23, s25
    s_lshl_b32 s25, s55, 9
    s_add_u32 s23, s23, s25""")
    o.f(lambda: a.vmem(f'buffer_load_dword v{CR}, v{V_B2x}, s[12:15], s23 offen sc1', 'res'), 16)
    o.e(f"""s_mov_b32 s23, 73728
    v_mul_lo_u32 v{V_OUT}, v247, s23
    v_lshl_add_u32 v{V_OUT}, v{V_B2}, 5, v{V_OUT}
    s_mul_i32 s23, s27, 1152
    s_add_u32 s52, s52, s23
    s_add_u32 s52, s52, s10
    s_mul_i32 s23, s55, 1152
    s_add_u32 s53, s23, s10
    s_add_u32 s53, s53, s9
    s_lshl_b32 s23, s17, 2
    s_add_u32 s53, s53, s23
    s_add_u32 s30, s41, {8*2048}
    s_lshl_b32 s23, s17, 16
    s_add_u32 s40, s40, s23
    s_lshl_b32 s23, s17, 11
    s_add_u32 s41, s41, s23
    s_and_b32 s23, s17, 6
    s_lshl_b32 s25, 0x0303, s23
    s_lshr_b32 s96, s25, 2
    s_and_b32 s96, s96, 0xff
    s_mov_b32 s97, 0
    s_lshr_b32 s98, s25, 4
    s_and_b32 s98, s98, 0xff
    s_or_b32 s96, s96, s98
    s_lshr_b32 s98, s25, 6
    s_and_b32 s98, s98, 0xff
    s_mov_b32 s99, 0
    s_mov_b32 s100, 0x3f80
    s_mov_b32 s101, 0x3f800000
    s_mov_b64 s[46:47], 0xff""")
    fill(o, frac(SCn+1, 0.3), frac(SCn+2, 0.75))
    def accum(o, dst, src, n, plain=False):
        for i in range(n):
            if plain:
                o.e(f'v_lshlrev_b32 v{V_B2}, 16, v{src+i}\nv_and_b32 v{V_ACTW}, 0xffff0000, v{src+i}\nv_add_f32 v{dst+2*i}, v{V_B2}, v{plain}\nv_add_f32 v{dst+2*i+1}, v{V_ACTW}, v{plain}')
                continue
            o.e(f'v_dot2c_f32_bf16 v{dst+2*i}, s100, v{src+i}\nv_dot2c_f32_bf16 v{dst+2*i+1}, s101, v{src+i}')
    def pload(x, reg):
        if x == 1: a('s_xor_b32 s23, s17, 1')
        else: a(f's_and_b32 s23, s17, 6\ns_add_u32 s23, s23, {x}\ns_and_b32 s23, s23, 7')
        a('s_lshl_b32 s23, s23, 13\ns_add_u32 s23, s23, s40')
        for hf in range(2):
            a.vmem(f'buffer_load_dwordx4 {vr(reg+4*hf)}, v{V_L16}, s[12:15], s23 offen offset:{hf*1024} sc1', ('p', x))
    SUM = Qa[2]+16; CL = Qa[2]; PL = Qa[3]
    o = COps(a)
    o.f(lambda: a.wait(vm='res'))
    accum(o, SUM, RES, 8, MU)
    accum(o, CS, CR, 1, MU+1)
    fill(o, frac(SD+1, 0.55), frac(SO, 0.3))
    at(frac(SD+2, 0.3), 40, lambda: (chk_issue(41, V_CK, 'cA', 96), chk_issue(30, 244, 'cC', 46)))
    o = COps(a)
    o.f(lambda: chk_verify(41, V_CK, 'cA', 96, 1), 24)
    for n, x in enumerate((6, 7, 4, 5)): o.f(lambda n=n, x=x: pload(x, PL+8*n), 50)
    o.f(lambda: chk_issue(41, V_CK, 'cD', 98), 20)
    o.f(lambda: chk_verify(30, 244, 'cC', 46, 1), 24)
    for p in range(8):
        o.f(lambda p=p: (a.vmem(f'buffer_load_dword v{CL+p}, v{V_L16}, s[12:15], s11 offen sc1', 'cl'), a('s_add_u32 s11, s11, 8192')), 20)
    put(o, frac(SO+1, 0.35), frac(SO+2, 0.7))
    if P.get('SHOW'): print('load', load)
    for i in range(NM):
        for f in slots[i]: f()
        S, key, bi, mk = mfs[i]
        if diag and P.get('ST'):
            for q, SS in enumerate(P['ST']):
                if i == srange[SS][0]: stamp(a, 1+q, True)
        if diag and i == srange[6][0]: stamp(a, 10, True)
        if diag and i == srange[G2][0]: stamp(a, 11, True)
        assert bl.get(bi) == (1 if S < G2 else 2), (i, S, bi)
        a.wait(vm=[('b', bi)], lg=[('f', key), ('b', bi)])
        a(mk(vr(FR + 4*(fid[key] % NFR))))
    for f in slots[NM]: f()
    stamp(a, 12, diag)
    PD = Qa[0]
    pload(1, PD)
    chk_verify(41, V_CK, 'cD', 98, 0)
    stamp(a, 13, diag)
    pload(2, PD+8); pload(3, PD+16)
    o = COps(a)
    OWN = GACC[3]+16
    for i in range(16): o.e(f'v_add_f32 v{SUM+i}, v{SUM+i}, v{OWN+i}')
    for n, x in enumerate((6, 7, 4, 5)):
        o.f(lambda x=x: a.wait(vm=[('p', x)])); accum(o, SUM, PL+8*n, 8)
    o.f(lambda: a.wait(vm='cl'))
    for p in range(8): accum(o, CS, CL+p, 1)
    o.e(f's_nop 2\nv_cvt_pk_bf16_f32 v{CR}, v{CS}, v{CS+1}')
    for _, g in o: g()
    a.vmem(f'buffer_store_dword v{CR}, v{V_OUT}, s[32:35], s53 offen', 'out')
    P['sentinel'](PD, 8, ('p', 1), lambda: pload(1, PD), V_T)
    o = COps(a)
    accum(o, SUM, PD, 8)
    for n, x in enumerate((2, 3)):
        o.f(lambda x=x: a.wait(vm=[('p', x)])); accum(o, SUM, PD+8+8*n, 8)
    for _, g in o: g()
    for hf in range(2):
        if hf: a('s_nop 0')
        for i in range(4): a(f'v_cvt_pk_bf16_f32 v{RES+4*hf+i}, v{SUM+8*hf+2*i}, v{SUM+8*hf+2*i+1}')
        a.vmem(f'buffer_store_dwordx4 {vr(RES+4*hf)}, v{V_OUT}, s[32:35], s52 offen offset:{16*hf}', 'out')
```

```python
from asmlib import *
from layout import *
import math

KNAME = 'sequential_preLN__spectral_gfnet__geglu_ffn__prompt_kernel'
FLB = 0x2E00000
FL1 = FLB
FL2 = FL1 + 9*4096
FL3 = FL2 + 9*4096
FLW = FL3 + 32*2048
FLC = FLW
FLC2 = FLW + 16384
FLCx = FLW + 24*4096
FL4 = FLCx + 4096
TKC = 0x2F80000
FLX = 0x2F00000
WS_WP = WS_H
LDS_G = 36864
LDS_HS = 147456
LDS_ST = 159744
LDS_SY = LDS_ST + 1536
LDS_ID = LDS_SY + 16
LDS_TOTAL = LDS_SY + 64
LDS_W = 131072
LDS_BN = 16384
WS_JUNK = 0x09C0000
TOK = 56
SPIN = 50000

def stamp(a, idx, on):
    if on: a(f's_memtime s[{60+2*idx}:{61+2*idx}]')
def rstamp(a, idx, on):
    if on: a(f's_memrealtime s[{60+2*idx}:{61+2*idx}]')

def srd(a, d, lo, size):
    a(f's_mov_b32 s{d}, s{lo}\ns_mov_b32 s{d+1}, s{lo+1}\ns_mov_b32 s{d+2}, {size}\ns_mov_b32 s{d+3}, 0x20000')

def spread(a, mf, fillers, lo=0, hi=None):
    n = len(mf)
    if hi is None: hi = n
    span = max(hi - lo, 1); done = 0
    for i, m in enumerate(mf):
        m()
        if i >= lo:
            want = min(len(fillers), -(-len(fillers)*(i-lo+1)//span))
            while done < want:
                fillers[done](); done += 1
    while done < len(fillers):
        fillers[done](); done += 1

class Ops(list):
    def __init__(self, a): super().__init__(); self.a = a
    def e(self, s):
        for line in s.split('\n'):
            if line.strip(): self.append(lambda line=line: self.a(line))
    def f(self, fn): self.append(fn)

def gen_mega(diag=False, R=26, FPX=2, UP=12, RATE0=2, WSC='sc1', NOSHUF=False, SLEEP=0, FE=False, PACE=1, PRE=16, G1=18, G2S=False, NT='nt', G0=2, GPK=True, NTX='nt', NTW='', G1W=2, NTX2='', P128=3, PF=True, **kw):
    a = Asm()
    name = KNAME
    MK = kw.get('MK')
    _stamp = globals()['stamp']
    def stamp(a_, idx, on):
        if MK is None or idx == 14: _stamp(a_, idx, on)
    def mark(nm):
        if diag and MK and nm in MK: _stamp(a, 1 + MK.index(nm), True)
    lbl = {'n': 0}
    def L(p):
        lbl['n'] += 1; return f'L_{p}{lbl["n"]}'
    V_L8 = 250
    V_F0 = 251
    V_TK = 252
    V_MU = 254
    V_CK = 248

    def chk_ld(soff, vdst, smask):
        ld = f'buffer_load_dwordx2 {vr(vdst,2)}, v{V_L8}, s[12:15], s{soff} offen sc1'
        if smask is None: return ld
        return f's_mov_b64 exec, s[{smask}:{smask+1}]\n{ld}\ns_mov_b64 exec, -1'
    def chk_issue(soff, vdst, tag, smask=None):
        a(chk_ld(soff, vdst, smask)); a.vm.append(tag)
    def chk_verify(soff, vdst, tag, smask, sleep=None):
        a.wait(vm=[tag])
        ok, lp = L('ok'), L('lp')
        test = f'v_cmp_eq_u64 vcc, s[{TOK}:{TOK+1}], {vr(vdst,2)}\ns_nop 1\n'
        test += (f's_orn2_b64 vcc, vcc, s[{smask}:{smask+1}]\n' if smask is not None else '') + 's_cmp_eq_u64 vcc, -1\n'
        a(test + f's_cbranch_scc1 {ok}\ns_mov_b32 s59, {SPIN}\n{lp}:')
        sl = SLEEP if sleep is None else sleep
        if sl: a(f's_sleep {sl}')
        a(chk_ld(soff, vdst, smask) + f'\ns_waitcnt vmcnt(0)\ns_sub_u32 s59, s59, 1\ns_cbranch_scc1 {ok}')
        a(test + f's_cbranch_scc0 {lp}\n{ok}:')
    def flag_store(soff, vt=None, vf=None):
        a.vmem(f'buffer_store_dwordx2 {vr(vt or V_TK,2)}, v{vf or V_F0}, s[12:15], s{soff} offen sc1', 'fl')
    def tok_issue(off=0):
        a.vmem(f'buffer_load_dwordx2 {vr(V_TK,2)}, off, s[36:39], 0 offset:{off} sc1', 'tok')
    def tok_verify(off=0):
        a.wait(vm='tok')
        ok, lp = L('ok'), L('lp')
        rd = f'v_readfirstlane_b32 s{TOK}, v{V_TK}\nv_readfirstlane_b32 s{TOK+1}, v{V_TK+1}\ns_nop 1\ns_cmp_lg_u32 s{TOK}, 0\n'
        a(rd + f's_cbranch_scc1 {ok}\ns_mov_b32 s59, {SPIN}\n{lp}:')
        a(f's_sleep 4\nbuffer_load_dwordx2 {vr(V_TK,2)}, off, s[36:39], 0 offset:{off} sc1\ns_waitcnt vmcnt(0)\ns_sub_u32 s59, s59, 1\ns_cbranch_scc1 {ok}')
        a(rd + f's_cbranch_scc0 {lp}\n{ok}:')
    def lds_arrive(k, vt):
        a.waitall(vm=False)
        a(f'v_mov_b32 v{vt}, {LDS_SY+4*k}\nv_mov_b32 v{vt+1}, 1')
        a.lds(f'ds_add_u32 v{vt}, v{vt+1}', 'arr')
    def lds_wait(k, vt, n=192):
        lp = L('ls')
        a(f'v_mov_b32 v{vt}, {LDS_SY+4*k}\n{lp}:\nds_read_b32 v{vt+1}, v{vt}\ns_waitcnt lgkmcnt(0)\nv_readfirstlane_b32 s59, v{vt+1}\ns_nop 1\ns_cmp_ge_u32 s59, {n}\ns_cbranch_scc0 {lp}')
        a.lg = []

    a.raw(kernel_header(name))
    a(f'''s_cmp_ge_u32 s2, 256
    s_cbranch_scc1 L_end
    s_getpc_b64 s[44:45]
    L_pc:
    s_load_dwordx2 s[4:5], s[0:1], 0
    s_load_dwordx4 s[48:51], s[0:1], 8
    s_load_dwordx4 s[36:39], s[0:1], 64''')
    if diag:
        for i in range(1, 16): a(f's_mov_b64 s[{60+2*i}:{61+2*i}], 0')
        a('s_memtime s[60:61]\ns_memrealtime s[92:93]')
    a(f'''v_lshrrev_b32 v8, 6, v0
    v_and_b32 v9, 63, v0
    v_readfirstlane_b32 s16, v8
    v_lshlrev_b32 v{V_L8}, 6, v9
    s_cmp_ge_u32 s2, 64
    s_cbranch_scc1 L_fftwg
    s_mov_b32 s46, L_codeend - L_pc
    s_mov_b32 s47, 0x20000
    s_lshl_b32 s23, s16, 13
    v_lshl_add_u32 v11, v9, 7, s23
    buffer_load_dword v254, v11, s[44:47], 0 offen
    s_branch L_pure
    L_fftwg:
    v_mov_b32 v10, {LDS_SY}
    v_mov_b32 v12, 0
    v_mov_b32 v13, 0
    v_mov_b32 v14, 0
    v_mov_b32 v15, 0
    ds_write_b128 v10, v[12:15]
    s_and_b32 s33, s2, 7
    s_lshr_b32 s34, s2, 3
    s_sub_u32 s34, s34, 8
    s_cmp_eq_u32 s16, 3
    s_cbranch_scc1 L_he''')
    def ws_srd():
        a(f'''s_waitcnt lgkmcnt(0)
        s_mov_b32 s12, s38
        s_mov_b32 s13, s39
        s_mov_b32 s14, {WS_SIZE}
        s_mov_b32 s15, 0x20000
        s_mov_b32 s38, 256
        s_mov_b32 s39, 0x20000
        v_min_u32 v{V_F0}, 1, v9
        v_lshlrev_b32 v{V_F0}, 31, v{V_F0}''')

    def ticket(cap, off, base):
        lp = L('tk')
        a(f'''s_getreg_b32 s30, hwreg(HW_REG_XCC_ID)
        s_mov_b32 s28, 7
        {lp}:
        s_and_b32 s30, s30, 7
        s_lshl_b32 s31, s30, 7
        s_add_u32 s31, s31, {TKC+off}
        s_mov_b32 s35, 1
        s_atomic_add s35, s[12:13], s31 glc
        s_waitcnt lgkmcnt(0)
        s_add_u32 s30, s30, 1
        s_cmp_lt_u32 s35, {cap}
        s_cbranch_scc1 {lp}x
        s_sub_u32 s28, s28, 1
        s_cbranch_scc0 {lp}
        s_lshr_b32 s35, s2, 3
        s_and_b32 s30, s2, 7
        s_add_u32 s30, s30, 1
        {lp}x:
        s_sub_u32 s30, s30, 1
        s_add_u32 s35, s35, {base}
        s_lshl_b32 s35, s35, 3
        s_add_u32 s35, s35, s30
        v_mov_b32 v10, {LDS_ID}
        v_mov_b32 v11, s35
        ds_write_b32 v10, v11
        s_waitcnt lgkmcnt(0)''')
    def get_id(vt, tok=False):
        a(f'v_mov_b32 v{vt}, {LDS_ID}')
        if tok: a(f'ds_read_b64 {vr(V_TK,2)}, v{vt} offset:8')
        a(f'ds_read_b32 v{vt}, v{vt}\ns_waitcnt lgkmcnt(0)\nv_readfirstlane_b32 s35, v{vt}')
        if tok: a(f'v_readfirstlane_b32 s{TOK}, v{V_TK}\nv_readfirstlane_b32 s{TOK+1}, v{V_TK+1}')
        a('s_nop 1')
        a.lg = []
    XV = 16; TB = 64; ACC = [136, 168]; XB = 200; TW = 216; ST = 222; TMP = 230
    def xreg(t, s): return vr(XV + 12*t + 4*s) if s < 3 else vr(24*t + 4*(s-3), 4, 'a')
    a(f'''s_mul_i32 s17, s34, 43
    s_lshr_b32 s17, s17, 7
    s_mul_i32 s18, s17, 3
    s_sub_u32 s18, s34, s18
    s_lshl_b32 s23, s33, 3
    s_add_u32 s17, s17, s23
    v_and_b32 v1, 31, v9
    v_lshrrev_b32 v2, 5, v9
    v_lshrrev_b32 v3, 2, v1
    s_mov_b32 s23, 73728
    v_mul_lo_u32 v4, v3, s23
    v_and_b32 v5, 3, v9
    v_lshl_add_u32 v4, v5, 4, v4
    v_lshl_add_u32 v4, v2, 6, v4
    s_mul_i32 s20, s17, 1152''')
    a('s_mul_i32 s23, s16, 384\ns_add_u32 s25, s20, s23')
    def rot_setup():
        a('s_mul_i32 s19, s18, 3\ns_add_u32 s19, s19, s16')
        for g in range(3):
            a(f'''s_add_u32 s23, s16, {g}
            s_cmp_ge_u32 s23, 3
            s_cselect_b32 s24, 3, 0
            s_sub_u32 s{28+g}, s23, s24''')
    V_L16 = 247
    def xload(t, s):
        a.lds(f'ds_read_b128 {xreg(t,s)}, v{244+s//3} offset:{((s%3)*4+t)*1024}', ('x', t, s))
    a(f's_mov_b32 s10, {NB}\ns_mov_b32 s11, 0x20000\ns_mul_i32 s24, s16, 12288')
    mark('t0'); a('s_waitcnt lgkmcnt(0)\ns_mov_b32 s8, s4\ns_mov_b32 s9, s5'); mark('karg')
    for t in range(4):
        for q in range(3):
            a(f's_add_u32 m0, s24, {(q*4+t)*1024}\ns_add_u32 s23, s25, {t*8*73728+128*q}')
            a.vmem(f'buffer_load_dwordx4 v4, s[8:11], s23 offen {NTX} lds', ('xd', t))
    mark('xiss')
    a(f'''s_barrier
    s_branch L_p1
    L_he:
    s_waitcnt lgkmcnt(0)
    s_barrier
    s_branch L_help
    L_p1:''')
    rot_setup()
    ws_srd()
    a(f'v_lshlrev_b32 v{V_L16}, 4, v9')
    for g in range(3): a(f's_mul_i32 s23, s{28+g}, 12288\nv_add_u32 v{244+g}, s23, v{V_L16}')
    a(f'''s_lshl_b32 s23, s19, 5
    s_add_u32 s23, s23, 1
    v_add_u32 v6, s23, v1
    v_cvt_f32_u32 v6, v6
    v_mul_f32 v7, {hexf(1.0/576)}, v6
    v_mul_f32 v10, {hexf(1.0/18)}, v6
    v_cvt_f32_u32 v11, v2''')
    for s in range(9):
        a(f'''s_mul_i32 s23, s{28+s//3}, 6
        s_add_u32 s23, s23, {2*(s%3)}
        v_cvt_f32_u32 v12, s23
        v_add_f32 v12, v12, v11
        v_mul_f32 v12, v12, v10
        v_fract_f32 v12, v12''')
        for e in range(0, 8, 2):
            c = TMP + 4*((e//2) & 1)
            a(f'''v_add_f32 v13, v12, v7
            v_cos_f32 v{c}, v12
            v_sin_f32 v{c+2}, v12
            v_cos_f32 v{c+1}, v13
            v_sin_f32 v{c+3}, v13
            v_add_f32 v12, v13, v7
            v_cvt_pk_bf16_f32 v{TB+8*s+e//2}, v{c}, v{c+1}
            v_cvt_pk_bf16_f32 v{TB+8*s+4+e//2}, -v{c+2}, -v{c+3}''')
    a(f'v_mul_f32 v12, {hexf(1.0/72)}, v6\nv_add_f32 v13, v12, v12\nv_add_f32 v14, v13, v12')
    for c in range(3):
        a(f'v_cos_f32 v{TW+2*c}, v{12+c}\nv_sin_f32 v{TW+2*c+1}, -v{12+c}')
    stamp(a, 1, diag); mark('tb')
    a(f'v_mov_b32 v15, 0x3f803f80')
    for i in range(8): a(f'v_mov_b32 v{ST+i}, 0')
    for t in range(4):
        a.wait(vm=[('xd', t)])
        for q in range(3): xload(t, q)
    a(f'v_mov_b32 v12, {LDS_SY}\nv_mov_b32 v13, 1')
    a.lds('ds_add_u32 v12, v13', 'arr')
    for t in range(4):
        a.wait(lg=[('x', t, 2)])
        if t == 2:
            lds_wait(0, 12)
            for tt in range(2):
                for q in range(3, 9): xload(tt, q)
        for i in range(12):
            x = XV + 12*t + i
            a(f'v_dot2c_f32_bf16 v{ST+2*t}, v{x}, v15\nv_dot2c_f32_bf16 v{ST+2*t+1}, v{x}, v{x}')
    for tt in range(2, 4):
        for q in range(3, 9): xload(tt, q)
    mark('dot')
    a('s_nop 2')
    for perm in ('[1,0,3,2]', '[2,3,0,1]'):
        for i in range(8): a(f'v_add_f32_dpp v{ST+i}, v{ST+i}, v{ST+i} quad_perm:{perm} row_mask:0xf bank_mask:0xf')
    a(f'''s_lshl_b32 s23, s16, 9
    s_add_u32 s23, s23, {LDS_ST}
    v_lshlrev_b32 v12, 8, v2
    v_lshl_add_u32 v12, v3, 3, v12
    v_add_u32 v12, s23, v12''')
    for t in range(4): a.lds(f'ds_write_b64 v12, {vr(ST+2*t,2)} offset:{64*t}', 'sw')
    lds_arrive(0, 12); mark('bar')

    def tile_mf(t):
        acc = ACC[t & 1]; mf = []
        for s in range(9):
            for cs in range(2):
                d = vr(acc+16*cs, 16)
                def f(s=s, cs=cs, d=d):
                    a.wait(lg=[('x', t, s)])
                    a(f'v_mfma_f32_32x32x16_bf16 {d}, {xreg(t,s)}, {vr(TB+8*s+4*cs)}, {"0" if s == 0 else d}')
                mf.append(f)
        return mf
    def combine(t):
        acc = ACC[t & 1]; o = Ops(a)
        for c in range(1, 4):
            tr, ti = TW+2*(c-1), TW+2*(c-1)+1
            for j in range(4):
                o.e(f'v_fmac_f32 v{acc+4*j}, v{tr}, v{acc+4*j+c}\nv_fmac_f32 v{acc+16+4*j}, v{tr}, v{acc+16+4*j+c}')
            for j in range(4):
                o.e(f'v_fma_f32 v{acc+4*j}, -v{ti}, v{acc+16+4*j+c}, v{acc+4*j}\nv_fmac_f32 v{acc+16+4*j}, v{ti}, v{acc+4*j+c}')
        for j in range(4): o.e(f'v_cvt_pk_bf16_f32 v{XB+4*t+j}, v{acc+4*j}, v{acc+16+4*j}')
        return o
    def stat_ops():
        o = Ops(a)
        o.f(lambda: lds_wait(0, 12, 384))
        o.e(f'v_mul_u32_u24 v12, 768, v2\nv_lshl_add_u32 v12, v1, 3, v12\nv_add_u32 v12, {LDS_ST}, v12')
        for p in range(3): o.f(lambda p=p: a.lds(f'ds_read_b64 {vr(ST+2*p,2)}, v12 offset:{256*p}', 'sr'))
        o.e('s_nop 0\ns_nop 0')
        o.f(lambda: a.wait(lg='sr'))
        o.e(f'''v_add_f32 v{ST}, v{ST}, v{ST+2}
        v_add_f32 v{ST+1}, v{ST+1}, v{ST+3}
        v_add_f32 v{ST}, v{ST}, v{ST+4}
        v_add_f32 v{ST+1}, v{ST+1}, v{ST+5}
        v_mov_b32 v{ST+2}, v{ST}
        v_mov_b32 v{ST+3}, v{ST+1}
        s_nop 1
        v_permlane32_swap_b32 v{ST}, v{ST+2}
        v_permlane32_swap_b32 v{ST+1}, v{ST+3}
        s_nop 1
        v_add_f32 v{ST}, v{ST}, v{ST+2}
        v_add_f32 v{ST+1}, v{ST+1}, v{ST+3}
        v_mul_f32 v{V_MU}, {hexf(1.0/576)}, v{ST}
        v_mov_b32 v{ST+2}, {hexf(1e-5)}
        v_fmac_f32 v{ST+2}, {hexf(1.0/576)}, v{ST+1}
        v_fma_f32 v{ST+2}, -v{V_MU}, v{V_MU}, v{ST+2}
        v_max_f32 v{ST+2}, {hexf(1e-5)}, v{ST+2}
        v_rsq_f32 v{ST+2}, v{ST+2}
        v_lshlrev_b32 v12, 2, v2''')
        for n in range(16): o.f(lambda n=n: a.lds(f'ds_bpermute_b32 v{TMP+n}, v12, v{ST+2} offset:{8*n}', 'bp'))
        return o
    A1R = XV
    def a1_ops(lo, hi):
        o = Ops(a)
        if lo == 0:
            o.f(lambda: a.wait(lg='bp'))
            o.e(f'''v_lshl_add_u32 v12, v2, 6, s17
            v_mul_u32_u24 v12, v12, v1
            v_cvt_f32_u32 v12, v12
            v_mul_f32 v12, {hexf(1.0/2048)}, v12
            v_cvt_f32_u32 v13, v1
            v_mul_f32 v13, {hexf(1.0/16)}, v13''')
        for n in range(lo, hi):
            o.e(f'''v_cos_f32 v14, v12
            v_sin_f32 v15, v12
            v_add_f32 v12, v12, v13
            v_mul_f32 v14, v14, v{TMP+n}
            v_mul_f32 v15, v15, v{TMP+n}
            v_cvt_pk_bf16_f32 v{A1R+n}, v14, v15
            v_cvt_pk_bf16_f32 v{TMP+n}, -v15, v14''')
        return o
    spread(a, tile_mf(0), stat_ops(), 4); mark('m0')
    o1 = Ops(a)
    o1.e(f'''v_lshrrev_b32 v5, 3, v1
    v_lshlrev_b32 v5, 10, v5
    v_and_b32 v4, 7, v1
    v_lshl_add_u32 v5, v4, 6, v5
    v_lshl_add_u32 v5, v2, 5, v5
    s_lshr_b32 s23, s19, 1
    s_lshl_b32 s23, s23, 12
    s_and_b32 s24, s19, 1
    s_lshl_b32 s24, s24, 9
    s_add_u32 s23, s23, s24
    v_add_u32 v4, s23, v5
    s_add_u32 s24, s19, 9
    s_lshr_b32 s23, s24, 1
    s_lshl_b32 s23, s23, 12
    s_and_b32 s24, s24, 1
    s_lshl_b32 s24, s24, 9
    s_add_u32 s23, s23, s24
    v_add_u32 v5, s23, v5''')
    for q in range(4):
        o1.f(lambda q=q: a.lds(f'ds_read_b128 {vr(240+4*q,4,"a")}, v{4+(q>>1)} offset:{(q&1)*16}', 'x3'))
    spread(a, tile_mf(1), o1 + a1_ops(0, 4) + combine(0), 0); mark('m1')
    spread(a, tile_mf(2), a1_ops(4, 10) + combine(1), 0); mark('m2')
    spread(a, tile_mf(3), a1_ops(10, 16) + combine(2), 0); mark('m3')
    O = ACC[0]
    def st2(t):
        return [lambda: a(f'v_mfma_f32_32x32x16_bf16 {vr(O,16)}, {vr(A1R+4*t)}, {vr(XB+4*t)}, {"0" if t == 0 else vr(O,16)}'),
                lambda: a(f'v_mfma_f32_32x32x16_bf16 {vr(O+16,16)}, {vr(TMP+4*t)}, {vr(XB+4*t)}, {"0" if t == 0 else vr(O+16,16)}')]
    a('s_nop 1')
    m = st2(0) + st2(1) + st2(2)
    m[0](); m[1](); a('s_nop 7')
    spread(a, m[2:], combine(3), 0)
    a('s_nop 1')
    for f in st2(3): f()
    a(f'''s_mov_b32 s23, 294912
    v_mul_lo_u32 v12, v2, s23
    v_lshl_add_u32 v12, v1, 4, v12
    s_lshl_b32 s22, s19, 6
    s_add_u32 s22, s22, s17
    s_lshl_b32 s23, s22, 9
    s_add_u32 s23, s23, {WS_Z1}''')
    mark('s2'); lds_wait(2, 13, 64); mark('cc')
    a('s_nop 1')
    for j in range(4):
        for i in range(4): a(f'v_cvt_pk_bf16_f32 v{XB+4*j+i}, v{O+4*j+i}, v{O+16+4*j+i}')
        a.vmem(f'buffer_store_dwordx4 {vr(XB+4*j)}, v12, s[12:15], s23 offen sc1', 'st1')
        if j < 3: a(f's_add_u32 s23, s23, {2*294912}')
    stamp(a, 2, diag); mark('p1')

    Z = 16; WR = 32; WI = 48; XR = 64; XI = 80; Y = 96; AT = 112; TI = 32
    def areg(mt, v, sg): return AT + ((mt*2 + v)*4 + sg)*4
    a(f'''s_mul_i32 s24, s34, 3
    s_add_u32 s24, s24, s16
    s_lshr_b32 s20, s24, 3
    s_and_b32 s21, s24, 7
    v_and_b32 v3, 15, v9
    v_lshrrev_b32 v4, 4, v9
    v_mov_b32 v14, v{V_L16}
    v_lshlrev_b32 v8, 9, v4
    v_and_b32 v6, 3, v9
    v_lshl_add_u32 v8, v6, 5, v8
    v_and_b32 v6, 1, v9
    v_lshlrev_b32 v6, 1, v6
    v_sub_u32 v8, v8, v6
    v_bfe_u32 v6, v9, 2, 2
    v_lshl_add_u32 v8, v6, 1, v8
    s_lshl_b32 s23, s16, 3
    s_add_u32 s23, s23, {LDS_W + 2}
    v_add_u32 v8, s23, v8''')
    for i in range(32): a(f'v_mov_b32 v{WR+i}, 0')
    a(f'''v_cvt_f32_u32 v5, v3
    v_mul_f32 v5, {hexf(1.0/64)}, v5
    v_cvt_f32_u32 v6, v4
    v_mul_f32 v6, 4.0, v6
    v_mul_f32 v6, v6, v5
    v_mul_f32 v7, {hexf(13.0)}, v5''')
    rot = lambda n, c, s: [(f'v{c}', f'v{s}'), (f'-v{s}', f'v{c}'), (f'-v{c}', f'-v{s}'), (f'v{s}', f'-v{c}')][n % 4]
    for sg in range(4):
        for j in range(4):
            c = 10 + 2*(j & 1)
            a(f'v_cos_f32 v{c}, v6\nv_sin_f32 v{c+1}, v6')
            a(f'v_add_f32 v6, v6, v{5 if j < 3 else 7}')
            for mt in range(4):
                for v in range(2):
                    p = rot(j*mt + v, c, c+1)
                    a(f'v_cvt_pk_bf16_f32 v{areg(mt,v,sg)+j}, {p[0]}, {p[1]}')
    a(f'''v_lshlrev_b32 v5, 11, v4
    v_lshl_add_u32 v5, v3, 2, v5
    s_mul_i32 s22, s33, 9
    s_add_u32 s22, s22, s20
    s_lshl_b32 s22, s22, 15
    s_lshl_b32 s23, s21, 6
    s_add_u32 s22, s22, s23
    s_add_u32 s22, s22, {WS_Z1}''')
    a('s_add_u32 s24, s22, 8192\ns_add_u32 s25, s22, 16384\ns_add_u32 s26, s22, 24576\ns_mov_b32 s29, s22')
    mark('p2t')
    stamp(a, 3, diag)
    def zloads():
        for sg in range(4):
            for j in range(4):
                a.vmem(f'buffer_load_dword v{Z+4*sg+j}, v5, s[12:15], s{(29,24,25,26)[sg]} offen offset:{j*512} sc1', 'z')
    def sentinel(base, n, tag, reload, t0):
        a.wait(vm=[tag])
        ok, lp = L('ok'), L('lp')
        t = f'v_max3_u32 v{t0}, v{base}, v{base+1}, v{base+2}\nv_max3_u32 v{t0+1}, v{base+3}, v{base+4}, v{base+5}\n'
        i = 6
        while i < n:
            t += f'v_max3_u32 v{t0+(i//2)%2}, v{t0+(i//2)%2}, v{base+i}, v{base+i+1}\n'; i += 2
        t += f'v_max_u32 v{t0}, v{t0}, v{t0+1}\nv_cmp_eq_u32 vcc, -1, v{t0}\ns_nop 1\ns_cmp_eq_u64 vcc, 0\n'
        a(t + f's_cbranch_scc1 {ok}\ns_mov_b32 s59, {SPIN}\n{lp}:')
        vm0 = list(a.vm)
        reload()
        a.vm = vm0
        a(f's_waitcnt vmcnt(0)\ns_sub_u32 s59, s59, 1\ns_cbranch_scc1 {ok}')
        a(t + f's_cbranch_scc0 {lp}\n{ok}:')
    zloads()
    a(f'''s_mov_b32 s23, 36864
    v_lshrrev_b32 v6, 2, v9
    v_mul_lo_u32 v6, v6, s23
    v_and_b32 v7, 3, v9
    v_lshl_add_u32 v6, v7, 4, v6
    s_lshl_b32 s23, s16, 12
    s_add_u32 s23, s23, {LDS_BN}
    v_lshlrev_b32 v7, 6, v3
    v_lshl_add_u32 v7, v4, 4, v7
    v_add_u32 v7, s23, v7
    v_add_u32 v15, s23, v14
    s_lshl_b32 s22, s20, 12
    s_lshl_b32 s23, s33, 9
    s_add_u32 s22, s22, s23
    s_lshl_b32 s23, s21, 6
    s_add_u32 s22, s22, s23
    s_add_u32 s22, s22, {WS_T}''')
    def fwd(mt):
        mf = []
        for v in range(2):
            d = vr((XR, XI)[v] + 4*mt)
            for sg in range(4):
                def f(v=v, sg=sg, d=d):
                    a(f'v_mfma_f32_16x16x32_bf16 {d}, {vr(areg(mt,v,sg))}, {vr(Z+4*sg)}, {"0" if sg == 0 else d}')
                mf.append(f)
        return mf
    def filt(mt):
        o = Ops(a)
        for i in range(4): o.e(f'v_mul_f32 v{10+i}, v{XR+4*mt+i}, v{WR+4*mt+i}')
        for i in range(4): o.e(f'v_mul_f32 v{XR+4*mt+i}, v{XR+4*mt+i}, v{WI+4*mt+i}')
        for i in range(4): o.e(f'v_fma_f32 v{10+i}, -v{XI+4*mt+i}, v{WI+4*mt+i}, v{10+i}')
        for i in range(4): o.e(f'v_fmac_f32 v{XR+4*mt+i}, v{XI+4*mt+i}, v{WR+4*mt+i}')
        for i in range(4): o.e(f'v_cvt_pk_bf16_f32 v{Y+4*mt+i}, v{10+i}, -v{XR+4*mt+i}')
        return o
    lds_wait(2, 10, 128)
    for r in range(16):
        for arr in range(2):
            a.lds(f'ds_read_u16_d16_hi v{(WR,WI)[arr]+r}, v8 offset:{arr*8192+(r>>2)*2048+(r&3)*128}', 'w')
    lds_arrive(0, 10); mark('p2w')
    sentinel(Z, 16, 'z', zloads, 10)
    stamp(a, 4, diag); mark('z')
    for f in fwd(0) + fwd(1): f()
    spread(a, fwd(2), filt(0))
    spread(a, fwd(3), filt(1))
    TRr = lambda mt: Z + 4*mt
    TIr = lambda mt: (XR, XR+4, XI, XI+4)[mt]
    def inv(sg):
        mf = []
        for mt in range(4):
            for v in range(2):
                d = vr(TRr(mt) if v == 0 else TIr(mt))
                mf.append(lambda v=v, mt=mt, d=d: a(f'v_mfma_f32_16x16x32_bf16 {d}, {vr(Y+4*sg)}, {vr(areg(mt,v,sg))}, {"0" if sg == 0 else d}'))
        return mf
    spread(a, inv(0), filt(2))
    spread(a, inv(1), filt(3))
    a('s_nop 1')
    lds_wait(0, 10, 576)
    for f in inv(2): f()
    for f in inv(3): f()
    a('s_nop 1')
    for mt in range(4):
        if mt == 3: a('s_nop 0')
        for i in range(4): a(f'v_cvt_pk_bf16_f32 v{WR+4*mt+i}, v{TRr(mt)+i}, -v{TIr(mt)+i}')
        a.lds(f'ds_write_b128 v7, {vr(WR+4*mt)} offset:{1024*mt}', 'tw')
        a.lds(f'ds_read_b128 {vr(WI+4*mt)}, v15 offset:{1024*mt}', ('tr', mt))
    for mt in range(4):
        a.wait(lg=[('tr', mt)])
        a.vmem(f'buffer_store_dwordx4 {vr(WI+4*mt)}, v6, s[12:15], s22 offen sc1', 'st2')
        if mt < 3: a(f's_add_u32 s22, s22, {16*36864}')
    stamp(a, 5, diag); mark('p2')
    lds_arrive(3, 10)

    TT = 48; BR = 96; BI = 112; AC3 = [128, 160]; PK = 192; XX = 208; ZB = 16
    SC = 2.0/(2048*576)
    a(f'''v_lshl_add_u32 v10, v1, 6, s17
    v_cvt_f32_u32 v10, v10
    v_mul_f32 v10, {hexf(1.0/2048)}, v10
    v_cvt_f32_u32 v11, v2
    v_mul_f32 v11, 4.0, v11
    v_mul_f32 v11, v11, v10
    v_mul_f32 v12, {hexf(5.0)}, v10''')
    for n in range(16):
        a(f'''v_cos_f32 v13, v11
        v_sin_f32 v15, v11
        v_add_f32 v11, v11, v{10 if (n & 3) < 3 else 12}
        v_mul_f32 v13, {hexf(SC)}, v13
        v_mul_f32 v15, {hexf(SC)}, v15
        v_cvt_pk_bf16_f32 v{BR+n}, v13, -v15
        v_cvt_pk_bf16_f32 v{BI+n}, v15, v13''')
    a(f'''v_and_b32 v4, 7, v1
    v_lshlrev_b32 v4, 1, v4
    v_bfe_u32 v5, v1, 3, 1
    v_add_u32 v4, v4, v5
    v_and_b32 v5, 16, v1
    v_add_u32 v4, v4, v5
    v_lshlrev_b32 v4, 4, v4
    v_lshl_add_u32 v4, v2, 9, v4
    s_mul_i32 s20, s17, 9
    s_mul_i32 s23, s16, 3
    s_add_u32 s20, s20, s23
    s_lshl_b32 s20, s20, 12
    s_add_u32 s20, s20, {WS_T}
    s_add_u32 s21, s20, 4096
    s_add_u32 s22, s20, 8192
    s_mul_i32 s23, s16, 12288
    v_add_u32 v7, s23, v14''')
    stamp(a, 13, diag and FE)
    def tloads(kt):
        for tau in range(4):
            a.vmem(f'buffer_load_dwordx4 {vr(TT+16*kt+4*tau)}, v4, s[12:15], s{(20,21,22)[kt]} offen offset:{tau*1024} sc1', ('t', kt))
    for kt in range(3): tloads(kt)
    mark('tiss'); lds_wait(2, 10, 192); mark('gw')
    a(f's_mul_i32 s23, s16, 36864\ns_add_u32 s23, s23, {LDS_G}\nv_add_u32 v5, s23, v14')
    for n in range(36): a.lds(f'ds_read_b128 {vr(96+4*n,4,"a")}, v5 offset:{1024*n}', 'g')
    lds_wait(3, 10); get_id(10, True); mark('gr')
    for i in range(16): a(f'v_accvgpr_read_b32 v{XX+i}, a{240+i}')
    def s1_mf(kt):
        acc = AC3[kt & 1]; mf = []
        for tau in range(4):
            for v in range(2):
                d = vr(acc+16*v, 16)
                def f(tau=tau, v=v, d=d):
                    if tau == 0 and v == 0: sentinel(TT+16*kt, 16, ('t', kt), lambda: [tloads(q) for q in range(kt, 3)], 10)
                    a(f'v_mfma_f32_32x32x16_bf16 {d}, {vr(TT+16*kt+4*tau)}, {vr((BR,BI)[v]+4*tau)}, {"0" if tau == 0 else d}')
                mf.append(f)
        return mf
    def s1_out(kt):
        acc = AC3[kt & 1]; o = Ops(a)
        for j in range(4):
            for i in range(4): o.e(f'v_cvt_pk_bf16_f32 v{PK+4*j+i}, v{acc+4*j+i}, v{acc+16+4*j+i}')
            o.f(lambda j=j: a.lds(f'ds_write_b128 v7, {vr(PK+4*j)} offset:{(4*kt+j)*1024}', 'zw'))
        return o
    for f in s1_mf(0): f()
    stamp(a, 6, diag); mark('k0')
    m = s1_mf(1)
    for f in m[:3]: f()
    a('s_nop 7')
    spread(a, m[3:], s1_out(0)); mark('k1')
    m = s1_mf(2)
    a.wait(lg='zw')
    for f in m[:3]: f()
    a('s_nop 7')
    spread(a, m[3:], s1_out(1)); mark('k2')
    a.wait(lg='zw')
    a('s_nop 7\ns_nop 1')
    for f in s1_out(2): f()
    lds_arrive(1, 10); mark('za')
    lds_wait(1, 10); mark('zw')
    AO, AE = AC3[1], AC3[1]+16
    LO = AC3[0]; HI = AC3[0]+16
    zl = {'n': 0}
    def zload():
        n = zl['n']
        if n >= 36: return
        a.lds(f'ds_read_b128 {vr(ZB+4*(n%12))}, v14 offset:{n*1024}', ('zf', n)); zl['n'] += 1
    for i in range(11): zload()
    mm = []
    for ks in range(36):
        def f(ks=ks):
            d = vr(AO if ks % 2 == 0 else AE, 16)
            a.wait(lg=[('zf', ks)])
            a(f'v_mfma_f32_32x32x16_bf16 {d}, {vr(96+4*ks,4,"a")}, {vr(ZB+4*(ks%12))}, {"0" if ks < 2 else d}')
            zload()
        mm.append(f)
    o = Ops(a)
    for r in range(16):
        x0 = XX + r//2; x1 = XX + 8 + r//2
        if r % 2 == 0: o.e(f'v_lshlrev_b32 v{LO+r}, 16, v{x0}\nv_lshlrev_b32 v{HI+r}, 16, v{x1}')
        else: o.e(f'v_and_b32 v{LO+r}, 0xffff0000, v{x0}\nv_and_b32 v{HI+r}, 0xffff0000, v{x1}')
    for r in range(32): o.e(f'v_sub_f32 v{LO+r}, v{LO+r}, v{V_MU}')
    o.e(f'''v_lshlrev_b32 v10, 11, v2
    v_lshl_add_u32 v10, v1, 4, v10
    s_lshr_b32 s23, s17, 1
    s_mul_i32 s24, s23, 73728
    s_and_b32 s26, s17, 1
    s_lshl_b32 s27, s26, 9
    s_add_u32 s24, s24, s27
    s_lshl_b32 s27, s19, 12
    s_add_u32 s24, s24, s27
    s_add_u32 s24, s24, {WS_HC}
    s_add_u32 s27, s24, 36864
    s_mul_i32 s25, s26, 9
    s_add_u32 s25, s25, s19
    s_lshl_b32 s25, s25, 6
    s_lshl_b32 s22, s23, 11
    s_add_u32 s25, s25, s22
    s_add_u32 s58, s25, {FL3}
    s_mul_i32 s23, s23, {NSSQ}
    s_add_u32 s23, s23, s19
    s_lshl_b32 s23, s23, 8
    s_lshl_b32 s26, s26, 7
    s_add_u32 s23, s23, s26
    s_add_u32 s23, s23, {WS_SSQ}
    v_lshlrev_b32 v6, 2, v1
    v_mov_b32 v255, v{V_F0}''')
    spread(a, mm, o, 2, 34); mark('mm')
    a('s_nop 7\ns_nop 3')
    for r in range(16): a(f'v_add_f32 v{LO+r}, v{LO+r}, v{AO+r}\nv_sub_f32 v{HI+r}, v{HI+r}, v{AO+r}')
    for q in range(4):
        src = (LO, HI)[q >> 1] + 8*(q & 1)
        for r in range(8): a(f'v_add_f32 v{src+r}, v{src+r}, v{AE+8*(q&1)+r}')
        for i in range(4): a(f'v_cvt_pk_bf16_f32 v{PK+4*q+i}, v{src+2*i}, v{src+2*i+1}')
        a.vmem(f'buffer_store_dwordx4 {vr(PK+4*q)}, v10, s[12:15], s{24 if q < 2 else 27} offen offset:{(q&1)*1024} sc1', 'st3')
    a(f'v_mul_f32 v11, v{LO}, v{LO}\nv_mul_f32 v12, v{HI}, v{HI}')
    for r in range(1, 16): a(f'v_fmac_f32 v11, v{LO+r}, v{LO+r}\nv_fmac_f32 v12, v{HI+r}, v{HI+r}')
    a(f'''v_add_f32 v11, v11, v12
    v_mov_b32 v12, v11
    s_nop 1
    v_permlane32_swap_b32 v11, v12
    s_nop 1
    v_add_f32 v11, v11, v12''')
    a.vmem(f'buffer_store_dword v11, v6, s[12:15], s23 offen sc1', 'st3')
    a(f's_lshl_b32 s23, s17, 7\ns_add_u32 s23, s23, {WS_MU}\ns_cmp_eq_u32 s19, 0\ns_cselect_b32 s24, 0, 0x80000000\nv_or_b32 v6, s24, v6')
    a.vmem(f'buffer_store_dword v{V_MU}, v6, s[12:15], s23 offen sc1', 'st3')
    stamp(a, 7, diag); mark('p3')
    a('s_branch L_ffn')

    gst = {'it': 0}
    def gen_g(cnt):
        while cnt > 0:
            it = gst['it']; kt0 = it % 9
            if kt0 == 0:
                a(f'v_add_u32 v21, {32*(it//9)}, v18\nv_cvt_f32_u32 v21, v21\nv_mul_f32 v21, {hexf(1.0/576)}, v21\nv_cvt_f32_u32 v22, v19\ns_mov_b32 s31, 0')
                for n in range(1, 16):
                    j, i = n >> 2, n & 3
                    a(f'v_mul_f32 v23, {hexf(float(16*(j>>1)+(j&1)+2*i))}, v21\nv_cos_f32 v{180+2*n}, v23\nv_sin_f32 v{181+2*n}, v23')
            m = min(cnt, 9 - kt0)
            lp = L('gg')
            a(f'''{lp}:
            v_mul_f32 v23, v22, v21
            v_cos_f32 v24, v23
            v_sin_f32 v25, v23
            v_add_f32 v22, {hexf(32.0)}, v22
            s_cmp_eq_u32 s31, 8
            s_cselect_b64 vcc, -1, 0
            v_cndmask_b32 v26, 1.0, v17, vcc
            v_sub_f32 v27, 0, v25
            v_cvt_pk_bf16_f32 v212, v24, -v25''')
            for j in range(4):
                ns = [n for n in range(4*j, 4*j+4) if n]
                T = lambda n: 136 + 2*n
                if GPK:
                    for n in ns: a(f'v_pk_mul_f32 v[{T(n)}:{T(n)+1}], v[{180+2*n}:{181+2*n}], v[24:25] op_sel:[0,0] op_sel_hi:[0,1]')
                    for n in ns: a(f'v_pk_fma_f32 v[{T(n)}:{T(n)+1}], v[{180+2*n}:{181+2*n}], v[24:25], v[{T(n)}:{T(n)+1}] op_sel:[1,1,0] op_sel_hi:[1,0,1] neg_lo:[1,0,0]')
                else:
                    for n in ns: a(f'v_mul_f32 v{T(n)}, v{180+2*n}, v24\nv_mul_f32 v{T(n)+1}, v{180+2*n}, v25')
                    for n in ns: a(f'v_fmac_f32 v{T(n)}, v{181+2*n}, v27\nv_fmac_f32 v{T(n)+1}, v{181+2*n}, v24')
                if j == 3: a(f'v_mul_f32 v{T(15)}, v{T(15)}, v26\nv_mul_f32 v{T(15)+1}, v{T(15)+1}, v26')
                for n in ns: a(f'v_cvt_pk_bf16_f32 v{212+n}, v{T(n)}, -v{T(n)+1}')
                a(f'ds_write_b128 v20, {vr(212+4*j)} offset:{1024*j}')
            a(f'''v_add_u32 v20, 4096, v20
            s_add_u32 s31, s31, 1
            s_cmp_lt_u32 s31, {kt0+m}
            s_cbranch_scc1 {lp}''')
            a.lg.append('gw')
            gst['it'] += m; cnt -= m
    a.vm = [None]*9; a.lg = []
    a(f'''L_help:
    s_mov_b32 s58, 0
    v_bfrev_b32 v255, 1''')
    srd(a, 40, 48, 2048*578); srd(a, 44, 50, 2048*578)
    a(f'''v_lshrrev_b32 v4, 3, v9
    v_lshlrev_b32 v4, 5, v4
    v_bfe_u32 v5, v9, 1, 2
    v_add_u32 v4, v4, v5
    v_mul_u32_u24 v4, 578, v4
    v_and_b32 v5, 2, v9
    v_add_u32 v4, v4, v5
    v_and_b32 v5, 1, v9
    v_lshl_add_u32 v4, v5, 4, v4
    s_mul_i32 s22, s33, {4*578}
    s_mul_i32 s23, s34, 24
    s_add_u32 s22, s22, s23''')
    def wdma(lo, hi):
        for i in range(lo, hi):
            for arr in range(2):
                a(f's_mov_b32 m0, {LDS_W+arr*8192+i*1024}\ns_add_u32 s23, s22, {i*8*32*578}')
                a.vmem(f'buffer_load_dwordx4 v4, s[{40+4*arr}:{43+4*arr}], s23 offen {NTW} lds', 'wd')
    ws_srd()
    a(f'''v_and_b32 v18, 3, v9
    v_bfe_u32 v19, v9, 2, 1
    v_lshl_add_u32 v18, v19, 4, v18
    v_bfe_u32 v19, v9, 3, 2
    v_lshl_add_u32 v18, v19, 2, v18
    s_mul_i32 s24, s34, 43
    s_lshr_b32 s24, s24, 7
    s_mul_i32 s24, s24, 3
    s_sub_u32 s23, s34, s24
    s_mul_i32 s23, s23, 96
    v_add_u32 v18, s23, v18
    v_lshrrev_b32 v19, 5, v9
    v_cvt_f32_u32 v17, v19
    v_fma_f32 v17, v17, -0.5, 1.0
    v_lshl_add_u32 v19, v19, 3, 1
    v_lshlrev_b32 v20, 4, v9
    v_add_u32 v20, {LDS_G}, v20
    s_mov_b32 s27, {FLC}''')
    def clr(n, sreg):
        for i in range(n):
            if i and i % 4 == 0: a(f's_add_u32 s{sreg}, s{sreg}, 4096')
            a.vmem(f'buffer_store_dwordx4 v[12:15], v1, s[12:15], s{sreg} offen offset:{(i%4)*1024} sc1', 'clr')
    TKA = kw.get('TKA', 1); GA = kw.get('GA', 5)
    gen_g(GA)
    wdma(0, 4)
    gen_g(kw.get('GB', 3))
    if kw.get('WO'): wdma(4, 8)
    tok_issue(128); chk_issue(27, 30, 'cc')
    if not kw.get('WO'): wdma(4, 8)
    gen_g(G0)
    tok_verify(128); chk_verify(27, 30, 'cc', None, kw.get('HS', 8))
    lds_arrive(2, 10); stamp(a, 4, diag)
    if TKA:
        a(f'''s_waitcnt lgkmcnt(0)
        s_getreg_b32 s30, hwreg(HW_REG_XCC_ID)
        s_and_b32 s30, s30, 7
        s_lshl_b32 s29, s30, 7
        s_add_u32 s29, s29, {TKC}
        s_mov_b32 s35, 1
        s_atomic_add s35, s[12:13], s29 glc''')
    gen_g(G1W)
    a(f's_add_u32 s27, s27, 4096')
    chk_issue(27, 30, 'ct')
    gen_g(2)
    chk_verify(27, 30, 'ct', None, kw.get('HS', 8))
    lds_arrive(2, 10); stamp(a, 5, diag)
    if TKA:
        a(f'''s_waitcnt lgkmcnt(0)
        s_mov_b32 s28, 7
        s_branch L_tkc
        L_tkl:
        s_add_u32 s30, s30, 1
        s_and_b32 s30, s30, 7
        s_lshl_b32 s29, s30, 7
        s_add_u32 s29, s29, {TKC}
        s_mov_b32 s35, 1
        s_atomic_add s35, s[12:13], s29 glc
        s_waitcnt lgkmcnt(0)
        L_tkc:
        s_cmp_lt_u32 s35, 24
        s_cbranch_scc1 L_tkx
        s_sub_u32 s28, s28, 1
        s_cbranch_scc0 L_tkl
        s_mov_b32 s35, s34
        s_mov_b32 s30, s33
        L_tkx:
        s_add_u32 s35, s35, 8
        s_lshl_b32 s35, s35, 3
        s_add_u32 s35, s35, s30''')
    else: a('s_mov_b32 s35, s2')
    a(f'v_mov_b32 v10, {LDS_ID}\nv_mov_b32 v11, s35\nds_write_b32 v10, v11\nds_write_b64 v10, {vr(V_TK,2)} offset:8')
    gen_g(23 - gst['it']); lds_wait(0, 10, 576); gen_g(4); lds_arrive(2, 10); stamp(a, 6, diag)
    a('s_branch L_ffn')
    a.vm = []; a.lg = []
    a(f'''L_pure:
    s_add_u32 s23, s2, s16
    s_cmp_lg_u32 s23, 0
    s_cbranch_scc1 L_notok
    s_memrealtime s[40:41]
    v_lshlrev_b32 v2, 7, v9
    v_add_u32 v2, {TKC}, v2
    v_mov_b32 v3, 0
    s_waitcnt lgkmcnt(0)
    s_or_b32 s40, s40, 1
    v_mov_b32 v4, s40
    v_mov_b32 v5, s41
    s_mov_b64 exec, 1
    global_store_dwordx2 v3, v[4:5], s[36:37] sc1
    s_mov_b64 exec, 0xffff
    global_store_dword v2, v3, s[38:39] sc1
    s_mov_b64 exec, -1
    L_notok:
    s_mov_b32 s58, 0
    v_bfrev_b32 v255, 1''')
    ws_srd()
    a(f'''s_lshl_b32 s17, s2, 2
    s_add_u32 s17, s17, s16
    v_lshlrev_b32 v1, 4, v9
    v_mov_b32 v12, -1
    v_mov_b32 v13, -1
    v_mov_b32 v14, -1
    v_mov_b32 v15, -1
    s_lshl_b32 s27, s2, 6
    s_add_u32 s27, s27, {FLC}
    s_cmp_eq_u32 s16, 0
    s_cselect_b32 s23, 0, 0x80000000
    v_or_b32 v5, s23, v{V_F0}''')
    def wgflag(off, n=0):
        a(f's_waitcnt vmcnt({n})\ns_barrier\ns_add_u32 s23, s27, {off}'); flag_store(23, None, 5)
    if kw.get('WPF', 0):
        srd(a, 40, 48, 2048*578); srd(a, 44, 50, 2048*578)
        a(f's_mul_i32 s23, s17, 4736\nv_lshl_add_u32 v2, v9, 7, s23\ns_bfm_b64 exec, 37, 0')
        for arr in range(2): a(f'buffer_load_dword v254, v2, s[{40+4*arr}:{43+4*arr}], 0 offen')
        a('s_mov_b64 exec, -1')
    a(f's_mul_i32 s26, s17, 9216\ns_add_u32 s25, s26, {WS_T}')
    clr(9, 26)
    tok_issue(); tok_verify()
    wgflag(0); stamp(a, 4, diag)
    a(f'''s_cmp_lg_u32 s17, 0
    s_cbranch_scc1 L_not2
    buffer_store_dwordx2 {vr(V_TK,2)}, v{V_F0}, s[36:39], 0 offen offset:128 sc1
    L_not2:
    v_add_u32 v11, 32768, v11
    buffer_load_dword v254, v11, s[44:47], 0 offen''')
    clr(9, 25)
    if TKA:
        a('s_cmp_lg_u32 s16, 3\ns_cbranch_scc1 L_ntk')
        tok_issue(128); tok_verify(128)
        ticket(8, 1024, 0)
        a('L_ntk:')
    wgflag(4096); stamp(a, 5, diag)
    if TKA: get_id(2)
    else: a('s_mov_b32 s35, s2')
    if PF:
        PFS = kw.get('PFS', 128); PFF = kw.get('PFF', '')
        a(f'''s_load_dwordx4 s[4:7], s[0:1], 32
        s_load_dwordx2 s[8:9], s[0:1], 48
        s_mul_i32 s23, s17, 20736
        v_mul_u32_u24 v2, {PFS}, v9
        v_add_u32 v2, s23, v2
        s_waitcnt lgkmcnt(0)''')
        srd(a, 40, 4, 576*9216); srd(a, 44, 6, 576*9216); srd(a, 48, 8, 576*9216)
        nl = 20736//PFS
        for r in range(kw.get('PFM', 3)):
            for i in range(0, nl, 64):
                a(f'v_add_u32 v3, {PFS*i}, v2')
                if nl - i < 64: a(f's_bfm_b64 exec, {nl-i}, 0')
                a(f'buffer_load_dword v254, v3, s[{40+4*r}:{43+4*r}], 0 offen {PFF}')
                if nl - i < 64: a('s_mov_b64 exec, -1')
    stamp(a, 6, diag)
    if diag: a('s_waitcnt vmcnt(0)')
    stamp(a, 7, diag)

    a.vm = ['pre']; a.lg = []
    from ffn import emit_ffn
    if P128:
        from ffn2 import emit_ffn2 as emit_ffn
        if P128 == 3:
            from ffn3 import emit_ffn3 as emit_ffn
    nv = emit_ffn(a, dict(kw, sentinel=sentinel, lds_wait=lds_wait, diag=diag, G2S=G2S, FE=FE, PRE=PRE, R=R, FPX=FPX, UP=UP, RATE0=RATE0, WSC=WSC, chk_issue=chk_issue, chk_verify=chk_verify,
                          flag_store=flag_store, V_L8=V_L8, V_F0=V_F0, V_TK=V_TK, V_CK=V_CK, stamp=stamp, rstamp=rstamp, Ops=Ops))
    if diag:
        vt = 24
        a.waitall()
        stamp(a, 14, True)
        a('s_memrealtime s[94:95]\ns_waitcnt lgkmcnt(0)')
        for i in range(1, 15):
            a(f's_cmp_eq_u32 s{60+2*i}, 0\ns_cselect_b32 s23, 0, s60\ns_sub_u32 s{60+2*i}, s{60+2*i}, s23\nv_mov_b32 v{vt+i}, s{60+2*i}')
        a(f'v_mov_b32 v{vt}, s92\nv_mov_b32 v{vt+15}, s94')
        a(f'''s_lshl_b32 s23, s2, 2
        s_add_u32 s23, s23, s16
        s_lshl_b32 s23, s23, 6
        s_add_u32 s23, s23, {WS_DBG}
        v_mov_b32 v{vt+16}, 0
        s_mov_b64 exec, 1''')
        for i in range(4): a(f'buffer_store_dwordx4 {vr(vt+4*i)}, v{vt+16}, s[12:15], s23 offen offset:{16*i}')
    a('L_end:\ns_endpgm\nL_codeend:')
    hdr = f'; @launch grid=(256,1,1) block=(256,1,1) lds={LDS_TOTAL}\n.amdgcn_target "amdgcn-amd-amdhsa--gfx950"\n.text\n'
    return hdr + a.text() + '.section .rodata,"a"\n' + kernel_desc(name, 256, 256, 102)

if __name__ == '__main__':
    import sys
    out = sys.argv[1] if len(sys.argv) > 1 else 'sequential_preLN__spectral_gfnet__geglu_ffn__prompt.s'
    open(out, 'w').write(gen_mega())
```

```python
from asmlib import *
from layout import *
import math
WS_X = 0x4000000

def cost(line):
    op = line.split()[0]
    if op.startswith(('v_exp', 'v_rcp', 'v_rsq')): return 8
    if op.startswith('buffer_'): return 16
    if op.startswith('v_pk_'): return 6
    if op.startswith('ds_write'): return 28
    if op.startswith(('v_fma_f32', 'v_cvt_pk', 'v_mul_lo', 'v_lshl_add', 'ds_')): return 5
    return 4

class COps(list):
    def __init__(self, a): super().__init__(); self.a = a
    def e(self, s):
        for line in s.split('\n'):
            line = line.strip()
            if line: self.append((cost(line), lambda line=line: self.a(line)))
    def f(self, fn, c=4): self.append((c, fn))
    def blob(self):
        l = list(self); return (sum(c for c, _ in l), lambda: [f() for _, f in l])

def emit_ffn3(a, P):
    import mega
    diag = P['diag']
    chk_issue, chk_verify, flag_store0 = P['chk_issue'], P['chk_verify'], P['flag_store']
    V_CK, stamp = P['V_CK'], P['stamp']
    SH, RDN, NFR = P.get('SH', 6), P.get('RDN', 19), 8
    DMAC = P.get('DMAC', 24)
    FLX = mega.FLX; FL4 = mega.FL4; FL3 = mega.FL3
    RING = 81920; RB = 57344; BS = 53248
    V_L16, V_B1, V_B2, V_ACTW = 1, 2, 3, 4
    V_DD, V_DH, V_B2g = 5, 6, 7
    V_C0, V_C1, V_IR = 10, 12, 14
    V_R = 16
    V_T = 24
    ACC = [48, 112]
    FR = 176
    BX = 208
    V_DG = 240
    def breg(bi): return vr(4*bi, 4, 'a') if bi < 64 else vr(BX + 4*(bi-64))
    PAD = P.get('PAD', 1)
    a('L_ffn:')
    if PAD: a('s_cmp_lg_u32 s16, 3\ns_cbranch_scc1 L_pad_end\ns_mov_b64 exec, 0\ns_branch L_pad0\nL_pad_end:\ns_mov_b64 exec, -1')
    npad = {'n': 0}
    def pad(last=False):
        n = npad['n']; npad['n'] += 1
        a(f'L_pad{n}:\ns_cbranch_execz ' + ('L_pad_end' if last else f'L_pad{n+1}'))
    a(f"""s_load_dwordx2 s[32:33], s[0:1], 56
    s_load_dwordx4 s[4:7], s[0:1], 32
    s_load_dwordx2 s[48:49], s[0:1], 48
    v_lshlrev_b32 v{V_L16}, 4, v9
    s_and_b32 s23, s35, 7
    s_lshr_b32 s24, s35, 3
    s_and_b32 s19, s24, 1
    s_and_b32 s17, s23, 3
    s_lshl_b32 s17, s17, 1
    s_bfe_u32 s25, s24, 0x10001
    s_add_u32 s17, s17, s25
    s_lshr_b32 s18, s23, 2
    s_lshl_b32 s18, s18, 3
    s_lshr_b32 s25, s24, 2
    s_add_u32 s18, s18, s25
    s_lshr_b32 s54, s16, 1
    s_and_b32 s55, s16, 1
    v_lshrrev_b32 v22, 3, v9
    v_and_b32 v23, 7, v9
    v_bfe_u32 v24, v9, 4, 1
    v_lshlrev_b32 v25, 1, v24
    v_xor_b32 v25, v25, v23
    s_mul_i32 s23, s16, 24
    v_add_u32 v26, s23, v22
    v_mul_u32_u24 v26, 9216, v26
    v_lshl_add_u32 v{V_DG}, v25, 4, v26
    v_add_u32 v{V_DG+1}, {8*9216-1024}, v{V_DG}
    v_add_u32 v{V_DG+2}, {16*9216-2048}, v{V_DG}
    v_xor_b32 v{V_DG+3}, 64, v{V_DG}
    v_xor_b32 v{V_DG+4}, 64, v{V_DG+1}
    v_xor_b32 v{V_DG+5}, 64, v{V_DG+2}
    s_mul_i32 s22, s16, 3072
    s_mul_i32 s20, s17, 1152
    s_lshl_b32 s23, s19, 6
    s_add_u32 s21, s20, s23
    s_add_u32 s21, s21, 512
    s_mul_i32 s23, s19, 640
    s_add_u32 s20, s20, s23
    s_waitcnt lgkmcnt(0)
    s_mov_b32 s40, s4
    s_mov_b32 s41, s5
    s_mov_b32 s42, {576*9216}
    s_mov_b32 s43, 0x20000
    s_mov_b32 s44, s6
    s_mov_b32 s45, s7
    s_mov_b32 s46, {576*9216}
    s_mov_b32 s47, 0x20000
    s_mov_b32 s50, {576*9216}
    s_mov_b32 s51, 0x20000
    s_mov_b32 s34, {NB}
    s_mov_b32 s35, 0x20000""")
    a('s_cmp_lg_u32 s16, 3\ns_cbranch_scc1 L_nopre\ns_cmp_lt_u32 s2, 64\ns_cbranch_scc1 L_pre')
    P['lds_wait'](1, 26)
    a(f'L_pre:\ns_mov_b32 s23, {mega.FLC+8192}')
    vm0 = list(a.vm); chk_issue(23, V_CK, 'ct'); a.vm = vm0
    a(f"""s_mov_b32 s25, {RING}
    s_mov_b32 s24, s20
    s_mov_b32 s26, 0""")
    for j in range(6): a(f'v_subrev_u32 v{48+j}, {72*9216}, v{V_DG+j}')
    a(f"""L_prel:
    s_mov_b32 m0, s25
    s_add_u32 s27, s25, 12288""")
    for j in range(3): a(f'buffer_load_dwordx4 v{48+j}, s[40:43], s24 offen offset:{1024*j} lds')
    a('s_mov_b32 m0, s27\ns_add_u32 s26, s26, 1')
    for j in range(3): a(f'buffer_load_dwordx4 v{51+j}, s[44:47], s24 offen offset:{1024*j} lds')
    a(f"""s_add_u32 s24, s24, {24*9216}
    s_add_u32 s25, s25, 3072
    s_and_b32 s27, s26, 3
    s_cmp_eq_u32 s27, 0
    s_cselect_b32 s27, 12288, 0
    s_add_u32 s25, s25, s27
    s_cmp_lt_u32 s26, 12
    s_cbranch_scc1 L_prel""")
    a(f"""L_nopre:
    s_cmp_ge_u32 s2, 64
    s_cbranch_scc1 L_nowd
    s_barrier
    s_lshl_b32 s24, s2, 2
    s_add_u32 s24, s24, s16
    s_mul_i32 s24, s24, 20736
    v_lshl_add_u32 v48, v9, 7, s24
    s_bfm_b64 exec, 54, 0""")
    for i in range(3): a(f'buffer_load_dword v254, v48, s[48:51], 0 offen\nv_add_u32 v48, 6912, v48')
    a('s_mov_b64 exec, -1\nL_nowd:')
    PASS = ['F0', 'H', 'F1', 'F2', 'F3']
    PG = [0, None, 1, 2, 3]
    stages = []
    pstart = []
    for p in range(5):
        pstart.append(len(stages))
        stages += [('g1', p, sg) for sg in range(3 if p == 1 else 6)]
    G2 = len(stages)
    KS = [('p',0),('p',1),('p',8), ('p',2),('p',3),('o',0), ('o',1),('o',8),('o',2), ('o',3),('o',4),('o',5), ('p',4),('p',5),('o',6), ('o',7),('p',6),('p',7)]
    sl = {k: i for i, k in enumerate(KS)}
    early = [('o',0),('o',1),('p',0),('p',1),('o',8),('p',8),('o',2),('o',3),('p',2),('p',3),('o',4),('o',5),('p',4),('p',5)]
    blocks = []
    order = early[:12] + [('o',6),('o',7),('p',4),('p',5),('p',6),('p',7)]
    for i in range(0, 18, 2):
        blocks += [('F', 0, sl[order[i]]), ('F', 0, sl[order[i+1]]), ('H', sl[order[i]], sl[order[i+1]])]
    NBE = P.get('NBE', 1)
    bb = [('F', 1, s) for s in range(18)]
    blocks = blocks[:24] + bb[:6*NBE] + blocks[24:] + bb[6*NBE:]
    for g in (2, 3): blocks += [('F', g, s) for s in range(18)]
    cuts = [6]*(4+NBE) + [3] + [6]*(9-NBE)
    i = 0
    for c in cuts: stages.append(('g2', blocks[i:i+c])); i += c
    NS = len(stages)
    SC = 36
    SL = G2+4+NBE; SB, SCn, SD, SO = SL+1, G2+8, G2+11, NS
    FREEA = G2+4
    slotb = {}; rel = {}
    avail = [(RING + i*24576, -9) for i in range(3)]
    extra = [(RB, 6), (0, G2), (24576, FREEA), (49152, FREEA)] if P.get('S4', 1) else [(0, FREEA), (24576, FREEA), (49152, FREEA)]
    for S in range(NS):
        while extra and extra[0][1] <= min(x[1] for x in avail): avail.append(extra.pop(0))
        cand = sorted(avail, key=lambda x: x[1])
        if S >= G2: cand = [x for x in cand if x[0] != RB]
        b = cand[0]; avail.remove(b)
        if S >= G2: avail = [x for x in avail if x[0] != RB]
        slotb[S], rel[S] = b[0], b[1]
        avail.append((b[0], S+1))
    LC = {0: 0, 1: 4, 2: 8, 3: 12, 8: 16, 4: 20, 5: 24, 6: 28, 7: 32}
    def rowbase(ks):
        kind, i = KS[ks]
        r = {('o', False): 4, ('p', False): 5, ('o', True): 6, ('p', True): 7}[(kind, i == 8)]
        return r, (32*i*1152 if i < 8 else 0)
    dg = {'g': None}
    def dma_ops(S):
        o = COps(a)
        if S >= NS or (P.get('NODMA') and 12 <= S < 24): return o
        st = stages[S]; slot = slotb[S]
        if st[0] == 'g1':
            p, sg = st[1], st[2]
            for mat in range(2):
                for j in range(3):
                    if p != 1:
                        pre = f's_add_u32 m0, s22, {slot+12288*mat}\ns_add_u32 s24, s20, {96*sg*9216+128*PG[p]}\n' if j == 0 else ''
                        ins = f'buffer_load_dwordx4 v{V_DG+3*mat+j}, s[{40+4*mat}:{43+4*mat}], s24 offen offset:{1024*j} lds'
                    else:
                        pre = f's_add_u32 m0, s22, {slot+12288*mat+1024*j}\ns_add_u32 s24, s21, {(192*sg+16*j)*9216}\n'
                        ins = f'buffer_load_dwordx4 v{22+mat}, s[{40+4*mat}:{43+4*mat}], s24 offen lds'
                    o.f(lambda pre=pre, ins=ins: (a(pre), a.vmem(ins, ('u', S))), DMAC + (8 if pre else 0))
        else:
            for n, b in enumerate(st[1]):
                pre = ''
                if b[0] == 'F':
                    if b[1] != dg['g']:
                        back = dg['g'] is not None and b[1] < dg['g']
                        pre = ''.join(f's_{"sub" if back else "add"}_u32 s{r}, s{r}, s{SC+(dg["g"] if back else b[1])}\n' for r in range(4, 8))
                        dg['g'] = b[1]
                    r, c = rowbase(b[2])
                    pre += f's_add_u32 s24, s{r}, {c}\n'
                    vo = V_DD
                else:
                    r, c = rowbase(b[1])
                    if r >= 6: pre = 's_mov_b32 s24, s8\n'
                    else: pre = f's_add_u32 s24, s{(3, 58)[r-4]}, {c}\n'
                    vo = V_DH
                pre = f's_add_u32 m0, s28, {slot+4096*n}\n' + pre
                o.f(lambda pre=pre, vo=vo: (a(pre), a.vmem(f'buffer_load_dwordx4 v{vo}, s[48:51], s24 offen lds', ('u', S))), DMAC + 8)
        return o
    def hc_ops(g):
        o = COps(a)
        if g >= 6: return o
        for mh in range(2):
            for j in range(3):
                pre = f's_add_u32 m0, s22, {(g%3)*24576+mh*12288}\ns_add_u32 s24, s30, {12288*g+73728*mh}\n' if j == 0 else ''
                o.f(lambda j=j, pre=pre: (a(pre), a.vmem(f'buffer_load_dwordx4 v{V_L16}, s[12:15], s24 offen offset:{j*1024} sc1 lds', ('dma', g))), DMAC)
        return o
    a(f"""s_mul_i32 s30, s18, {2*73728}
    s_add_u32 s30, s30, s22
    s_add_u32 s30, s30, {WS_HC}
    s_lshl_b32 s31, s18, 1
    s_add_u32 s31, s31, s54
    s_mul_i32 s27, s31, {NSSQ*256}
    s_add_u32 s27, s27, {WS_SSQ}
    v_lshlrev_b32 v8, 2, v9
    s_lshl_b32 s28, s16, 10
    s_mul_i32 s23, s17, {576*1152}
    s_mul_i32 s24, s19, {320*1152}
    s_add_u32 s4, s23, s24
    s_sub_u32 s5, s23, s24
    s_add_u32 s5, s5, {320*1152}
    s_mul_i32 s24, s19, {32*1152}
    s_add_u32 s6, s23, s24
    s_add_u32 s6, s6, {256*1152}
    s_sub_u32 s7, s23, s24
    s_add_u32 s7, s7, {288*1152}
    s_lshl_b32 s9, s19, 6
    s_add_u32 s9, s9, 512
    s_sub_u32 s23, s7, {32*1152}
    s_cmp_eq_u32 s54, 0
    s_cselect_b32 s8, s6, s23
    s_add_u32 s8, s8, s9
    s_lshr_b32 s3, s17, 1
    s_mul_i32 s23, s19, 640""")
    for g in range(4):
        a(f's_add_u32 s24, s3, {g+1}\ns_and_b32 s24, s24, 3\ns_lshl_b32 s24, s24, 7\ns_add_u32 s{SC+g}, s24, s23')
    a(f's_mov_b32 s29, s{SC+3}')
    for g in (3, 2, 1): a(f's_sub_u32 s{SC+g}, s{SC+g}, s{SC+g-1}')
    a('s_add_u32 s3, s4, s9')
    a(f"""s_lshl_b32 s23, s16, 3
    v_add_u32 v26, s23, v22
    v_mul_u32_u24 v26, 1152, v26
    v_lshlrev_b32 v25, 2, v24
    v_xor_b32 v25, v25, v23
    v_lshl_add_u32 v{V_DD}, v25, 4, v26
    v_lshrrev_b32 v25, 2, v9
    v_and_b32 v27, 3, v9
    s_lshl_b32 s23, s16, 4
    v_add_u32 v26, s23, v25
    v_mul_u32_u24 v26, 1152, v26
    v_lshl_add_u32 v{V_DH}, v27, 4, v26
    s_mul_i32 s23, s16, 48
    v_add_u32 v26, s23, v25
    v_mul_u32_u24 v26, 9216, v26
    v_lshl_add_u32 v22, v27, 4, v26
    v_xor_b32 v23, 32, v22
    v_and_b32 v29, 31, v9
    v_lshrrev_b32 v25, 5, v9
    v_lshlrev_b32 v{V_B1}, 10, v25
    v_lshl_add_u32 v{V_B1}, v29, 4, v{V_B1}
    v_lshl_add_u32 v{V_B2}, v25, 10, v{V_B1}
    s_mul_i32 s23, s54, 12288
    v_add_u32 v{V_B1}, s23, v{V_B1}
    s_lshl_b32 s23, s54, 10
    v_add_u32 v{V_B2}, s23, v{V_B2}
    s_lshl_b32 s24, s55, 13
    v_add_u32 v{V_ACTW}, s24, v{V_B2}
    s_lshl_b32 s24, s18, 3
    s_add_u32 s24, s24, s17
    s_lshl_b32 s24, s24, 1
    s_add_u32 s25, s24, s19
    s_xor_b32 s24, s25, 1
    s_mul_i32 s10, s25, 73728
    s_add_u32 s10, s10, {WS_X}
    s_mul_i32 s11, s24, 73728
    s_add_u32 s11, s11, {WS_X}
    s_lshl_b32 s52, s25, 10
    s_lshl_b32 s23, s16, 6
    s_add_u32 s52, s52, s23
    s_add_u32 s52, s52, {FLX}
    s_lshl_b32 s53, s24, 10
    s_lshl_b32 s23, s54, 7
    s_add_u32 s53, s53, s23
    s_add_u32 s53, s53, {FLX}""")
    a(f"""v_bfe_u32 v24, v9, 2, 2
    v_lshl_add_u32 v25, v25, 3, v24
    v_bfe_u32 v26, v9, 4, 1
    v_mul_u32_u24 v27, 12288, v26
    v_and_b32 v28, 1, v9
    v_lshl_add_u32 v27, v28, 4, v27
    v_bfe_u32 v28, v9, 1, 1
    v_lshl_add_u32 v27, v28, 3, v27
    v_add_u32 v27, {RB}, v27
    v_lshrrev_b32 v24, 1, v24
    v_lshl_or_b32 v24, v26, 1, v24
    s_lshl_b32 s23, s55, 1
    v_xor_b32 v24, s23, v24
    v_lshl_add_u32 v28, v25, 7, v27
    v_lshl_add_u32 v{V_R}, v24, 5, v28
    v_add_u32 v{V_R+1}, 49152, v{V_R}
    v_xor_b32 v{V_R+2}, 32, v{V_R}
    v_xor_b32 v{V_R+3}, 32, v{V_R+1}
    v_xor_b32 v24, s55, v26
    v_lshl_add_u32 v28, v25, 6, v27
    v_lshl_add_u32 v{V_R+4}, v24, 5, v28
    v_add_u32 v{V_R+5}, 49152, v{V_R+4}
    s_lshl_b32 s26, s18, 12
    s_add_u32 s26, s26, {FL3}
    s_mov_b32 s96, 0x3ffff
    s_mov_b32 s97, 0x3ffff
    s_mov_b64 s[98:99], 3
    v_mov_b32 v246, v{V_ACTW}""")
    LATEF = P.get('LATEF', 1)
    def f3flag():
        a.wait(vm='pre'); flag_store0(58, None, 255); a('s_add_u32 s58, s5, s9')
    if not LATEF: f3flag()
    else: a('s_cmp_lg_u32 s16, 3\ns_cbranch_scc1 L_w3\ns_waitcnt vmcnt(0)\nL_w3:')
    stamp(a, 8, diag)
    HSEN = P.get('HSEN', 1)
    a('s_cmp_lg_u32 s16, 3\ns_cbranch_scc1 L_c3skip')
    vm0 = list(a.vm)
    if not HSEN:
        chk_issue(26, V_CK, 'c3', 96); chk_verify(26, V_CK, 'c3', 96, 2)
    else:
        a(f's_cmp_ge_u32 s2, 64\ns_cbranch_scc1 L_c3skip\ns_mov_b32 s23, {mega.FLC+8192}')
        chk_verify(23, V_CK, 'ct', None, 8)
        a(f"""v_and_b32 v24, 15, v9
        v_min_u32 v24, 8, v24
        v_lshlrev_b32 v24, 12, v24
        v_bfe_u32 v25, v9, 4, 1
        v_lshl_add_u32 v24, v25, 9, v24
        v_lshrrev_b32 v25, 5, v9
        v_mul_u32_u24 v25, {73728//16}, v25
        v_lshl_add_u32 v24, v25, 4, v24
        s_sub_u32 s23, s30, s22
        s_mov_b32 s59, {mega.SPIN}
        L_hprobe:
        s_sleep 3
        buffer_load_dword v25, v24, s[12:15], s23 offen offset:1024 sc1
        s_waitcnt vmcnt(0)
        v_cmp_eq_u32 vcc, -1, v25
        s_sub_u32 s59, s59, 1
        s_cbranch_scc1 L_c3skip
        s_cmp_eq_u64 vcc, 0
        s_cbranch_scc0 L_hprobe""")
    a.vm = vm0
    a('L_c3skip:')
    if P.get('HD'): a(f's_cmp_lt_u32 s2, 64\ns_cbranch_scc1 L_nohd\ns_sleep {P["HD"]}\nL_nohd:')
    a('s_barrier')
    stamp(a, 9, diag); P['mark']('f0')
    for _, f in hc_ops(0) + hc_ops(1): f()
    if LATEF: f3flag()
    a(f'v_add_u32 v247, s22, v{V_L16}')
    HT = 112
    def hread(g):
        for n in range(6): a.lds(f'ds_read_b128 {vr(HT+4*n)}, v247 offset:{(g%3)*24576+(n//3)*12288+(n%3)*1024}', ('hr', g))
    def hcheck(g): P['sentinel'](HT, 24, ('hr', g), lambda: [f() for _, f in (hc_ops(g) + hc_ops(1) if g == 0 else hc_ops(g))], HT+24, lambda: hread(g))

    Qa = [48, 80, 112, 144]
    PACC = [(Qa[0], Qa[1]), (Qa[2],), (Qa[3], Qa[0]), (Qa[1], Qa[2]), (Qa[3], Qa[0])]
    GACC = {0: Qa[1], 'H': Qa[2], 1: Qa[3], 2: Qa[0], 3: Qa[1]}
    V_R2, V_R2H = 240, V_R
    mfs = []; frs = []; fid = {}; srange = []
    started = set()
    def addfr(S, key, base, off, hstep):
        if S < G2: off -= RB; base, off = base + off//49152, off % 49152
        else: base, off = base + off//BS, off % BS
        fid[key] = len(fid); frs[S].append((key, base, off, hstep)); return key
    def addmf(S, k, d, B, bi):
        first = d not in started; started.add(d)
        dd = vr(d, 16)
        mfs.append((S, k, bi, lambda A: f'v_mfma_f32_32x32x16_bf16 {dd}, {A}, {B}, {"0" if first else dd}'))
    SEL = {'n': 0}
    for S, st in enumerate(stages):
        frs.append([]); m0 = len(mfs); slot = slotb[S]
        if st[0] == 'g1':
            p, sg = st[1], st[2]
            if sg == 0: started.clear()
            if p != 1:
                for ks in range(6):
                    for tau in range(2):
                        k = addfr(S, (S, ks, tau), V_R+2*tau, slot+ks*2048, 512)
                        for mt in range(2): addmf(S, k, PACC[p][tau]+16*mt, breg(2*(6*sg+ks)+mt), 2*(6*sg+ks)+mt)
            else:
                for ks in range(12):
                    k = addfr(S, (S, ks, 0), V_R+4, slot+ks*1024, 256)
                    for mt in range(2): addmf(S, k, PACC[p][0]+16*mt, breg(2*(12*sg+ks)+mt), 2*(12*sg+ks)+mt)
        else:
            if S == G2 or S == NS-3: started.clear()
            for n, b in enumerate(st[1]):
                if b[0] == 'F':
                    for e in range(2):
                        k = addfr(S, (S, n, e), V_R2, slot+n*4096+e*2048, 512)
                        for mt in range(2 if b[1] != 3 else 1):
                            bi = 4*b[2]+2*e+mt
                            addmf(S, k, GACC[b[1]]+16*mt, breg(bi), bi)
                else:
                    for e in range(4):
                        k = addfr(S, (S, n, e), V_R2H, slot+n*4096+e*1024, 256)
                        bi = 4*b[1+e//2]+2*(e & 1)
                        addmf(S, k, GACC['H'], breg(bi), bi)
        srange.append((m0, len(mfs)))
    for k3 in range(3):
        S = NS+k3; S0 = NS-3+k3; frs.append([]); m0 = len(mfs); slot = slotb[S0]
        for n, b in enumerate(stages[S0][1]):
            for e in range(2):
                k = addfr(S, (S, n, e), V_R2, slot+n*4096+e*2048, 512)
                bi = 4*b[2]+2*e+1
                addmf(S, k, GACC[3]+16, breg(bi), bi)
        srange.append((m0, len(mfs)))
    NM = len(mfs)
    lastuse = {}; firstuse = {}
    for i, m in enumerate(mfs):
        lastuse[m[1]] = i; firstuse.setdefault(m[1], i)
    keys = sorted(fid, key=lambda k: fid[k])
    slots = [[] for _ in range(NM+1)]
    load = [0]*(NM+1)
    def at(i, c, f):
        i = max(0, min(NM, int(i))); slots[i].append(f); load[i] += c
    def put(ops, lo, hi):
        n = len(ops)
        for k, (c, f) in enumerate(ops): at(lo + (hi-lo)*k/n, c, f)
    def fill(ops, lo, hi):
        lo, hi = int(lo), int(hi)
        tot = sum(c for c, _ in ops)
        lv = 0
        while sum(max(0, lv - load[i]) for i in range(lo, hi)) < tot: lv += 1
        i = lo; carry = 0
        room = max(0, lv - load[i])
        for c, f in ops:
            while room < c/2 and i < hi-1:
                i += 1; room += max(0, lv - load[i])
            at(i, c, f); room -= c
    def frac(S, x):
        m0, m1 = srange[S]; return m0 + x*(m1-m0)
    bpos = {}; xwait = {}
    awn = {p: 0 for p in range(5)}; vis = set(); bl = {}
    def barrier(S):
        def f():
            lg = [('f', k[0]) for k in frs[S-1]] if S else []
            if S <= 6 or S == FREEA or S == G2: lg += [('b', k) for k in range(72)]
            if S == G2: assert all(bl[4*sl[('o', k)]+e] == 2 for k in range(3) for e in range(4))
            if S == FREEA: assert all(bl[4*k+e] == 2 for k in range(18) if KS[k][0] == 'o' for e in range(4))
            a.wait(vm=[('u', S)] + xwait.get(S, []), lg=lg)
            for p in range(5):
                if awn[p] == (2 if p == 1 else 4) and ('aw', p) not in a.lg: vis.add(p)
            if not P.get('NOBAR'): a('s_barrier')
            if P.get('SLW') and 9 <= S < 27: a(f's_sleep {P["SLW"]}')
        return f
    prev = 0
    for S in range(NS+3):
        m0, m1 = srange[S]
        b = max(prev + (3 if S < NS else 0), m0 - SH) if S else 0
        b = min(b, m0)
        bpos[S] = b
        if HSEN and S < 6:
            at(b - 4, 40, lambda S=S: (a.wait(vm=[('dma', S)]), hread(S)))
            at(b, 70, lambda S=S: hcheck(S))
        if S < NS: at(b, 10, barrier(S))
        n = len(frs[S])
        for j, (key, reg, off, hstep) in enumerate(frs[S]):
            pos = int(b + (firstuse[key]-m0)*RDN/24.0)
            i = fid[key]
            if i >= NFR: pos = max(pos, lastuse[keys[i-NFR]] + 1)
            pos = max(pos, prev)
            assert pos <= firstuse[key], (S, j, pos, firstuse[key])
            r = FR + 4*(i % NFR)
            for hf in range(2):
                if not (P.get('NOTR') and 9 <= S < 21): at(pos, 5, lambda key=key, reg=reg, off=off, hf=hf, r=r, hstep=hstep: a.lds(f'ds_read_b64_tr_b16 {vr(r+2*hf,2)}, v{reg} offset:{off+hstep*hf}', ('f', key)))
            load[firstuse[key]] += 4
            prev = pos
    def place_mem(ops, lo, hi):
        n = len(ops)
        for k, (c, f) in enumerate(ops):
            l, h = int(lo + (hi-lo)*k/n), int(lo + (hi-lo)*(k+1)/n)
            cand = range(l, max(h, l+1))
            at(min(cand, key=lambda i: load[i]), c, f)
    nxt = 3; queue = []
    M1 = P.get('M1', 0.65); dmaend = {}
    for S in range(NS):
        mem = list(hc_ops(S+2)) if S < 4 else []
        while nxt < NS and rel[nxt] <= S:
            queue += [(nxt, x) for x in dma_ops(nxt)]; nxt += 1
        w = bpos[S+1]-bpos[S]
        k = max(sum(1 for q in queue if q[0] <= S+2), min(len(queue), int(P.get('RATE', 8)*w/24)))
        mem += [q[1] for q in queue[:k]]; queue = queue[k:]
        hi = bpos[S] + 1 + (M1 if len(mem) <= 6 else 0.9)*w
        place_mem(mem, bpos[S]+1, hi)
        dmaend[S] = int(hi)
    assert not queue

    def bread1(bi):
        s, mt = bi >> 1, bi & 1; g = s//6
        off = (g % 3)*24576 + (s % 6)*2048 + mt*512
        def f():
            bl[bi] = 1; a.lds(f'ds_read_b128 {breg(bi)}, v{V_B1} offset:{off}', ('b', bi))
        return (5, f)
    V_B2x, V_B2gx = 22, 23
    def bread2(ks):
        kind, i = KS[ks]; o = COps(a)
        for e in range(2):
            for mt in range(2):
                bi = 4*ks+2*e+mt
                if kind == 'o':
                    def g(bi=bi, e=e, mt=mt):
                        assert (1 if i == 8 else PG.index(i//2)) in vis, (ks, vis)
                        off = LC[i]*2048 + e*4096
                        r = (V_B2, V_B2x)[mt] if off < 65536 else (V_B2g, V_B2gx)[mt]
                        bl[bi] = 2; a.lds(f'ds_read_b128 {breg(bi)}, v{r} offset:{off % 65536}', ('b', bi))
                    o.f(g, 5)
                else:
                    def f(bi=bi, e=e, mt=mt):
                        bl[bi] = 2
                        if mt == 0: a(f's_add_u32 s25, s11, {LC[i]*2048+e*4096}')
                        a.vmem(f'buffer_load_dwordx4 {breg(bi)}, v{(V_B2, V_B2x)[mt]}, s[12:15], s25 offen sc1', ('b', bi))
                    o.f(f, 20)
        return o
    for g in range(6):
        xwait[g] = [('dma', g)]
        put([bread1(bi) for bi in range(12*g, 12*g+12)], bpos[g], bpos[g] + (12 if g else 6))
    K0 = -2.0*math.log2(math.e)*math.sqrt(2.0/math.pi)
    o = COps(a)
    for j in range(NSSQ): o.f(lambda j=j: a.vmem(f'buffer_load_dword v{V_T+j}, v8, s[12:15], s27 offen offset:{j*256} sc1', 'ssq'), 12)
    place_mem(o, frac(4, 0.0), frac(4, 0.7))
    if HSEN:
        at(frac(2, 0.5), 24, lambda: chk_issue(26, V_CK, 'c3', 96))
        at(frac(3, 0.9), 24, lambda: chk_verify(26, V_CK, 'c3', 96, 2))
    o = COps(a)
    o.f(lambda: a.wait(vm='ssq'))
    for j in range(1, NSSQ): o.e(f'v_add_f32 v{V_T}, v{V_T}, v{V_T+j}')
    o.e(f'v_mov_b32 v{V_IR}, {hexf(1e-5)}\nv_fmac_f32 v{V_IR}, {hexf(1.0/576)}, v{V_T}\nv_mov_b32 v{V_IR+1}, v{V_IR}\ns_nop 1\nv_permlane32_swap_b32 v{V_IR}, v{V_IR+1}\ns_nop 1')
    for mt in range(2): o.e(f'v_rsq_f32 v{V_T+4+mt}, v{V_IR+mt}')
    o.e('s_nop 0')
    for mt in range(2): o.e(f'v_mul_f32 v{V_C0+mt}, {hexf(K0)}, v{V_T+4+mt}')
    for mt in range(2): o.e(f'v_mul_f32 v{V_T+8+mt}, v{V_T+4+mt}, v{V_T+4+mt}')
    for mt in range(2): o.e(f'v_mul_f32 v{V_C1+mt}, {hexf(0.044715)}, v{V_C0+mt}')
    for mt in range(2): o.e(f'v_mul_f32 v{V_C1+mt}, v{V_C1+mt}, v{V_T+8+mt}')
    fill(o, frac(5, 0.6), frac(6, 0.2))

    deferred = []
    V_XW = 246
    def flushdef(mt=None):
        if mt is None or any(d[0] == mt for d in deferred):
            while deferred: deferred.pop(0)[1]()
    for S in range(NS):
        for i in range(dmaend[S], bpos[S+1]): slots[i].append(flushdef)
    def gelu_ops(p, tau):
        o = COps(a); acc = PACC[p][tau]
        cb = 2048*LC[8 if p == 1 else 2*PG[p]]
        if p == 1: o.f(lambda: a(f's_lshl_b32 s23, s55, 12\nv_subrev_u32 v{V_ACTW}, s23, v{V_ACTW}\ns_sub_u32 s21, s10, s23'), 12)
        if p == 2 and tau == 0: o.f(lambda: a(f's_lshl_b32 s23, s55, 12\nv_add_u32 v{V_ACTW}, s23, v{V_ACTW}'), 8)
        for grp in range(4):
            mt = grp >> 1
            g = [acc + 16*mt + 4*(grp & 1) + i for i in range(4)]
            u = [x + 8 for x in g]
            oo = V_T + 16 + 4*mt + 2*(grp & 1)
            T = [V_T + 8*(grp & 1) + i for i in range(4)]
            Qr = [x + 4 for x in T]
            if P.get('GPK2'):
                pr = lambda x: f'v[{x}:{x+1}]'
                bc = f'op_sel:[0,{mt},{mt}] op_sel_hi:[1,{mt},{mt}]'
                for i in (0, 2): o.e(f'v_pk_mul_f32 {pr(T[i])}, {pr(g[i])}, {pr(g[i])}')
                for i in (0, 2): o.e(f'v_pk_mul_f32 {pr(Qr[i])}, {pr(g[i])}, {pr(u[i])}')
                for i in (0, 2): o.e(f'v_pk_fma_f32 {pr(T[i])}, {pr(T[i])}, {pr(V_C1)}, {pr(V_C0)} {bc}')
                for i in (0, 2): o.e(f'v_pk_mul_f32 {pr(T[i])}, {pr(T[i])}, {pr(g[i])}')
                for i in range(4): o.e(f'v_exp_f32 v{T[i]}, v{T[i]}')
                for i in (0, 2): o.e(f'v_pk_fma_f32 {pr(T[i])}, {pr(T[i])}, {pr(V_IR)}, {pr(V_IR)} {bc}')
                for i in range(4): o.e(f'v_rcp_f32 v{T[i]}, v{T[i]}')
                for i in (0, 2): o.e(f'v_pk_mul_f32 {pr(Qr[i])}, {pr(Qr[i])}, {pr(T[i])}')
                o.e(f'v_cvt_pk_bf16_f32 v{oo}, v{Qr[0]}, v{Qr[1]}\nv_cvt_pk_bf16_f32 v{oo+1}, v{Qr[2]}, v{Qr[3]}')
            elif not P.get('NOGELU'):
                for i in range(4): o.e(f'v_mul_f32 v{T[i]}, v{g[i]}, v{g[i]}')
                for i in range(4): o.e(f'v_fma_f32 v{T[i]}, v{T[i]}, v{V_C1+mt}, v{V_C0+mt}')
                for i in range(4): o.e(f'v_mul_f32 v{T[i]}, v{T[i]}, v{g[i]}')
                for i in range(4): o.e(f'v_exp_f32 v{T[i]}, v{T[i]}\nv_mul_f32 v{Qr[i]}, v{g[i]}, v{u[i]}')
                for i in range(4): o.e(f'v_fma_f32 v{T[i]}, v{T[i]}, v{V_IR+mt}, v{V_IR+mt}')
                for i in range(4): o.e(f'v_rcp_f32 v{T[i]}, v{T[i]}')
                for i in range(4): o.e(f'v_mul_f32 v{Qr[i]}, v{Qr[i]}, v{T[i]}')
                o.e(f'v_cvt_pk_bf16_f32 v{oo}, v{Qr[0]}, v{Qr[1]}\nv_cvt_pk_bf16_f32 v{oo+1}, v{Qr[2]}, v{Qr[3]}')
            if grp & 1:
                off = tau*4096 + mt*512
                o.f(lambda mt=mt, off=off: (awn.__setitem__(p, awn[p]+1), a.lds(f'ds_write_b128 v{V_ACTW}, {vr(V_T+16+4*mt)} offset:{cb+off}', ('aw', p))), 28)
                st_ = lambda mt=mt, off=off: (a(f's_add_u32 s31, s{10 if p != 1 else 21}, {cb+off}'), a.vmem(f'buffer_store_dwordx4 {vr(V_T+16+4*mt)}, v{V_XW}, s[12:15], s31 offen sc1', ('xs', p)))
                if p < 4: o.f(lambda st_=st_, mt=mt: deferred.append((mt, st_, p)), 20)
                else: o.f(st_, 20)
            else: o.insert(len(o)-2, (0, lambda mt=mt: flushdef(mt)))
        return o
    pH, p1, p2, p3 = pstart[1:5]
    def xflag(p, ck):
        def f():
            assert awn[p] == (2 if p == 1 else 4) and not any(d[2] <= p for d in deferred)
            a.wait(vm=[('xs', p)]); a(f's_add_u32 s23, s52, {256*ck}'); flag_store0(23)
        return f
    def xchk_i(ck): return lambda: (a(f's_add_u32 s26, s53, {256*ck}'), chk_issue(26, V_CK, ('cx', ck), 98))
    def xchk_v(ck): return lambda: chk_verify(26, V_CK, ('cx', ck), 98, 1)
    o = COps(a)
    o.e(f"""s_and_b32 s23, s17, 1
    s_xor_b32 s27, s23, s55
    s_lshl_b32 s23, s27, 9
    v_add_u32 v{V_B2}, s23, v{V_B2}
    v_xor_b32 v{V_B2x}, 512, v{V_B2}
    v_add_u32 v{V_B2g}, 0x10000, v{V_B2}
    v_add_u32 v{V_B2gx}, 0x10000, v{V_B2x}
    v_and_b32 v8, 1, v9
    v_lshlrev_b32 v8, 5, v8
    v_bfe_u32 v2, v9, 4, 1
    v_lshl_add_u32 v8, v2, 4, v8
    v_bfe_u32 v2, v9, 1, 1
    v_lshl_add_u32 v8, v2, 3, v8
    v_lshrrev_b32 v2, 5, v9
    v_lshlrev_b32 v2, 3, v2
    v_bfe_u32 v20, v9, 2, 2
    v_add_u32 v2, v2, v20
    v_lshl_add_u32 v20, v2, 6, v8
    v_lshl_add_u32 v8, v2, 7, v8
    v_bfe_u32 v2, v9, 3, 1
    v_xor_b32 v2, s55, v2
    v_lshl_add_u32 v8, v2, 6, v8""")
    fill(o, frac(p2, 0.0), frac(p2, 0.25))
    at(frac(G2-1, 0.3), 12, lambda: a(f'v_mov_b32 v{V_R2}, v8\nv_add_u32 v{V_R2+1}, {BS}, v8\nv_add_u32 v{V_R2+2}, {2*BS}, v8'))
    at(bpos[G2], 12, lambda: a(f'v_mov_b32 v{V_R2H}, v20\nv_add_u32 v{V_R2H+1}, {BS}, v20\nv_add_u32 v{V_R2H+2}, {2*BS}, v20'))
    o = COps(a)
    o.e(f"""v_mov_b32 v20, -1
    v_mov_b32 v21, -1
    v_mov_b32 v22, -1
    v_mov_b32 v23, -1
    s_add_u32 s26, s10, {2048*28}
    s_add_u32 s59, s26, 4096
    s_lshl_b32 s25, s18, 1
    s_add_u32 s25, s25, s19
    s_mul_i32 s25, s25, 9
    s_lshl_b32 s25, s25, 3
    s_add_u32 s25, s25, s17
    s_lshl_b32 s25, s25, 2
    s_add_u32 s25, s25, s16
    s_lshl_b32 s25, s25, 11
    s_add_u32 s25, s25, {WS_P}
    s_add_u32 s27, s17, 6
    s_and_b32 s27, s27, 6
    s_lshl_b32 s27, s27, 16
    s_add_u32 s100, s25, s27
    s_add_u32 s101, s100, 65536
    s_xor_b32 s27, s17, 1
    s_lshl_b32 s27, s27, 16
    s_add_u32 s25, s25, s27""")
    fill(o, frac(p1, 0.0), frac(p1, 0.3))
    cl = [(V_XW, (26,59)[q>>1], 512*(q&1)) for q in range(4)] + [(V_L16, sr, off) for sr in (25, 100, 101) for off in (0, 1024)]
    for q, (vo, sr, off) in enumerate(cl):
        at(dmaend[p1 + (q*6)//10] + 3*(q & 1), 16, lambda vo=vo, sr=sr, off=off: a.vmem(f'buffer_store_dwordx4 v[20:23], v{vo}, s[12:15], s{sr} offen offset:{off} sc1', 'clr'))
    assert dmaend[p1] >= frac(p1, 0.3) and dmaend[p1+5] + 3 < frac(p2, 0.0)
    if P.get('ISP', 0):
        NP = P.get('NP', 16)
        o = COps(a)
        o.e(f"""s_lshl_b32 s23, s2, 2
        s_add_u32 s23, s23, s16
        s_mul_i32 s100, s23, 5184
        s_and_b32 s100, s100, 0xffffff80
        s_lshl_b32 s101, s16, 2
        s_add_u32 s101, s101, s2
        s_and_b32 s101, s101, {NP-1}
        v_lshlrev_b32 v255, 7, v9""")
        at(frac(2, 0.9), *o.blob())
        for k in range(NP):
            def pf(k=k):
                a(f's_cmp_lg_u32 s101, {k}\ns_cbranch_scc1 L_pf{k}\ns_bfm_b64 exec, 41, 0\nbuffer_load_dword v254, v255, s[48:51], s100 offen\ns_mov_b64 exec, -1\nL_pf{k}:')
            at(dmaend[P.get('PF0', 5)+k], 8, pf)
    at(frac(p2+2, 0.5), 24, xflag(1, 0))
    at(frac(p2+5, 0.5), 24, xchk_i(0))
    at(frac(p3, 0.9), 24, xchk_v(0))
    place_mem(bread2(0) + bread2(1) + bread2(2), frac(p3+1, 0.05), frac(p3+4, 0.1))
    at(frac(p3+1, 0.7), 24, xflag(2, 1))
    at(frac(p3+3, 0.3), 24, xchk_i(1))
    at(frac(p3+4, 0.2), 24, xchk_v(1))
    place_mem(bread2(3) + bread2(4), frac(p3+4, 0.25), frac(G2, 0.5))
    put(bread2(5) + bread2(6) + bread2(7) + bread2(8), frac(p3+3, 0.05), frac(p3+4, 0.7))
    put(bread2(9), frac(p3+5, 0.05), frac(p3+5, 0.5))
    put(bread2(10) + bread2(11), frac(G2+1, 0.0), frac(G2+1, 0.6))
    at(frac(G2, 0.8), 24, xflag(3, 2))
    at(frac(G2+1, 0.7), 24, xchk_i(2))
    at(frac(G2+2, 0.3), 24, xchk_v(2))
    place_mem(bread2(12) + bread2(13), frac(G2+2, 0.35), frac(G2+2, 0.75))
    late = bread2(16) + bread2(17)
    place_mem(late, frac(SL, 0) - P.get('LL', 34), frac(SL, 0) - P.get('LL', 34) + 10)
    put(bread2(14) + bread2(15), bpos[G2+3], bpos[G2+3]+4)
    at(frac(SL, 0.0), 80, lambda: P['sentinel'](BX, 32, ('b', 71), lambda: [g() for _, g in late], V_T))
    o = COps(a)
    o.e(f"""s_lshl_b32 s23, s18, 1
    s_add_u32 s23, s23, s19
    s_mul_i32 s20, s23, {9*65536}
    s_add_u32 s20, s20, {WS_P}
    s_mul_i32 s21, s23, {9*2048}
    s_add_u32 s21, s21, {FL4}
    s_lshl_b32 s23, s16, 11
    s_add_u32 s40, s20, s23
    s_lshl_b32 s23, s16, 9
    s_add_u32 s41, s21, s23
    s_lshl_b32 s23, s17, 13
    s_add_u32 s42, s40, s23
    s_add_u32 s20, s20, s23
    s_lshl_b32 s23, s17, 6
    s_add_u32 s44, s41, s23
    s_add_u32 s21, s21, s23
    s_lshl_b32 s23, s54, 1
    s_add_u32 s23, s23, s27
    s_lshl_b32 s45, s23, 11
    s_add_u32 s20, s20, s45
    s_add_u32 s20, s20, {8*65536}
    s_lshl_b32 s45, s23, 9
    s_add_u32 s21, s21, s45
    s_add_u32 s21, s21, {8*2048}""")
    fill(o, frac(G2+2, 0.8), frac(G2+3, 0.5))
    ocnt = {'n': 0}
    def owner(g, pos, dst, sh, base, hreg):
        if g == 'H': return f's_mov_b32 s{dst}, s{hreg}'
        t = (f's_xor_b32 s{dst}, s17, 1\n' if pos == 0 else f's_mov_b32 s{dst}, s17\n')
        if g != 3: t += f's_add_u32 s{dst}, s{dst}, {2*(g+1)}\ns_and_b32 s{dst}, s{dst}, 7\n'
        return t + f's_lshl_b32 s{dst}, s{dst}, {sh}\ns_add_u32 s{dst}, s{dst}, s{base}'
    def out_ops(g, pos):
        o = COps(a); acc = GACC[g] + 16*pos
        oo = V_T + 8*(ocnt['n'] % 2); ocnt['n'] += 1
        o.f(lambda: a(owner(g, pos, 31, 16, 42, 20)), 20)
        for hf in range(2):
            for i in range(4): o.e(f'v_cvt_pk_bf16_f32 v{oo+4*hf+i}, v{acc+8*hf+2*i}, v{acc+8*hf+2*i+1}')
            o.f(lambda hf=hf: a.vmem(f'buffer_store_dwordx4 {vr(oo+4*hf)}, v{V_L16}, s[12:15], s31 offen offset:{hf*1024} sc1', ('st', g, pos)), 16)
        return o
    def oflag(g, pos):
        def f():
            a.wait(vm=[('st', g, pos)]); a(owner(g, pos, 23, 11, 44, 21)); flag_store0(23)
        return (36, f)
    fill(gelu_ops(0, 0), frac(pH, 0.25), frac(p1, 0.0))
    fill(gelu_ops(0, 1) + gelu_ops(1, 0), frac(p1, 0.0), frac(p2, 0.0))
    fill(gelu_ops(2, 0) + gelu_ops(2, 1), frac(p2, 0.25), frac(p2+5, 0.75))
    fill(gelu_ops(3, 0) + gelu_ops(3, 1), frac(p3, 0.25), frac(p3+5, P.get('GE3', 0.75)))
    fill(gelu_ops(4, 0) + gelu_ops(4, 1), frac(G2, 0.2), frac(G2+P.get('GE4', 2), P.get('GE4f', 0.3)))
    fill(out_ops(0, 0) + out_ops(0, 1) + out_ops('H', 0), frac(SB, 0.2), frac(SB, 0.95))
    put([oflag(0, 0), oflag(0, 1), oflag('H', 0)], frac(SCn+1, 0.0), frac(SCn+1, 0.28))
    fill(out_ops(1, 0) + out_ops(1, 1), frac(SCn, 0.22), frac(SCn, 0.7))
    put([oflag(1, 0), oflag(1, 1)], frac(SCn+2, 0.78), frac(SCn+2, 0.95))
    fill(out_ops(2, 0) + out_ops(2, 1), frac(SD, 0.5), frac(SD+1, 0.5))
    fill(out_ops(3, 0), frac(SO, 0.35), frac(SO, 0.7))
    RES = V_T+16; MU = V_C0; CS = V_C1; CR = V_IR
    V_OUT = V_B1
    o = COps(a)
    o.e(f"""s_lshl_b32 s23, s18, 1
    s_add_u32 s23, s23, s54
    s_mul_i32 s30, s23, 73728
    s_add_u32 s30, s30, {WS_HC}
    s_lshl_b32 s22, s23, 8
    s_add_u32 s22, s22, {WS_MU}
    s_mul_i32 s10, s23, 2304
    s_xor_b32 s27, s27, 1
    s_lshl_b32 s23, s55, 6
    s_add_u32 s52, s23, s29
    v_and_b32 v247, 31, v9
    v_lshrrev_b32 v{V_B2}, 5, v9
    v_lshlrev_b32 v{V_B2x}, 11, v{V_B2}
    v_lshl_add_u32 v{V_B2x}, v247, 4, v{V_B2x}
    v_lshlrev_b32 v8, 2, v247
    s_lshl_b32 s23, s52, 6
    s_add_u32 s23, s23, s30
    s_lshl_b32 s25, s27, 9
    s_add_u32 s23, s23, s25""")
    for hf in range(2): o.f(lambda hf=hf: a.vmem(f'buffer_load_dwordx4 {vr(RES+4*hf)}, v{V_B2x}, s[12:15], s23 offen offset:{hf*1024} sc1', 'res'), 16)
    o.e(f's_lshl_b32 s25, s27, 7\ns_add_u32 s23, s22, s25')
    o.f(lambda: a.vmem(f'buffer_load_dword v{MU}, v8, s[12:15], s23 offen sc1', 'res'), 16)
    o.e(f's_lshl_b32 s25, s55, 7\ns_add_u32 s23, s22, s25')
    o.f(lambda: a.vmem(f'buffer_load_dword v{MU+1}, v8, s[12:15], s23 offen sc1', 'res'), 16)
    o.e(f"""s_lshr_b32 s25, s17, 2
    s_lshl_b32 s25, s25, 10
    s_and_b32 s23, s17, 3
    s_lshl_b32 s23, s23, 2
    s_add_u32 s25, s25, s23
    s_add_u32 s11, s40, s25
    s_add_u32 s11, s11, {8*65536}
    s_lshl_b32 s23, s9, 6
    s_add_u32 s23, s23, s30
    s_add_u32 s23, s23, s25
    s_lshl_b32 s25, s55, 9
    s_add_u32 s23, s23, s25""")
    o.f(lambda: a.vmem(f'buffer_load_dword v{CR}, v{V_B2x}, s[12:15], s23 offen sc1', 'res'), 16)
    o.e(f"""s_mov_b32 s23, 73728
    v_mul_lo_u32 v{V_OUT}, v247, s23
    v_lshl_add_u32 v{V_OUT}, v{V_B2}, 5, v{V_OUT}
    s_mul_i32 s23, s27, 1152
    s_add_u32 s52, s52, s23
    s_add_u32 s52, s52, s10
    s_mul_i32 s23, s55, 1152
    s_add_u32 s53, s23, s10
    s_add_u32 s53, s53, s9
    s_lshl_b32 s23, s17, 2
    s_add_u32 s53, s53, s23
    s_add_u32 s30, s41, {8*2048}
    s_lshl_b32 s23, s17, 16
    s_add_u32 s40, s40, s23
    s_lshl_b32 s23, s17, 11
    s_add_u32 s41, s41, s23
    s_and_b32 s23, s17, 6
    s_lshl_b32 s25, 0x0303, s23
    s_lshr_b32 s96, s25, 2
    s_and_b32 s96, s96, 0xff
    s_mov_b32 s97, 0
    s_lshr_b32 s98, s25, 4
    s_and_b32 s98, s98, 0xff
    s_or_b32 s96, s96, s98
    s_lshr_b32 s98, s25, 6
    s_and_b32 s98, s98, 0xff
    s_mov_b32 s99, 0
    s_mov_b32 s100, 0x3f80
    s_mov_b32 s101, 0x3f800000
    s_mov_b64 s[46:47], 0xff""")
    fill(o, frac(SCn+1, 0.3), frac(SCn+2, 0.75))
    def accum(o, dst, src, n, plain=False):
        for i in range(n):
            if plain:
                o.e(f'v_lshlrev_b32 v{V_B2}, 16, v{src+i}\nv_and_b32 v{V_ACTW}, 0xffff0000, v{src+i}\nv_add_f32 v{dst+2*i}, v{V_B2}, v{plain}\nv_add_f32 v{dst+2*i+1}, v{V_ACTW}, v{plain}')
                continue
            o.e(f'v_dot2c_f32_bf16 v{dst+2*i}, s100, v{src+i}\nv_dot2c_f32_bf16 v{dst+2*i+1}, s101, v{src+i}')
    def pload(x, reg):
        if x == 1: a('s_xor_b32 s23, s17, 1')
        else: a(f's_and_b32 s23, s17, 6\ns_add_u32 s23, s23, {x}\ns_and_b32 s23, s23, 7')
        a('s_lshl_b32 s23, s23, 13\ns_add_u32 s23, s23, s40')
        for hf in range(2):
            a.vmem(f'buffer_load_dwordx4 {vr(reg+4*hf)}, v{V_L16}, s[12:15], s23 offen offset:{hf*1024} sc1', ('p', x))
    SUM = Qa[2]+16; CL = Qa[2]; PL = Qa[3]
    o = COps(a)
    o.f(lambda: a.wait(vm='res'))
    accum(o, SUM, RES, 8, MU)
    accum(o, CS, CR, 1, MU+1)
    fill(o, frac(SD+1, 0.55), frac(SO, 0.3))
    PD = Qa[0]
    at(frac(SO, P.get('CI', 0.0)), 40, lambda: (chk_issue(41, V_CK, 'cA', 96), chk_issue(30, 244, 'cC', 46)))
    o = COps(a)
    o.f(lambda: chk_verify(41, V_CK, 'cA', 96, 1), 24)
    for n, x in enumerate((6, 7, 4, 5)): o.f(lambda n=n, x=x: pload(x, PL+8*n), 50)
    o.f(lambda: chk_verify(30, 244, 'cC', 46, 1), 24)
    for p in range(8):
        o.f(lambda p=p: (a.vmem(f'buffer_load_dword v{CL+p}, v{V_L16}, s[12:15], s11 offen sc1', 'cl'), a('s_add_u32 s11, s11, 8192')), 20)
    o.f(lambda: pload(2, PD+8), 50); o.f(lambda: pload(3, PD+16), 50)
    put(o, frac(SO+1, P.get('CV', 0.6)), frac(SO+2, 0.95))
    if P.get('SHOW'): print('load', load); print([(S, slotb[S]//1024, rel[S]) for S in range(NS)])
    M16 = P.get('M16'); c16 = {'n': 0, 'd': None}; pend16 = []
    for i in range(NM):
        h = len(slots[i])//2 if pend16 else 0
        for f in slots[i][:h]: f()
        if pend16: a(pend16.pop())
        for f in slots[i][h:]: f()
        S, key, bi, mk = mfs[i]
        if diag and P.get('ST'):
            for q, SS in enumerate(P['ST']):
                if i == srange[SS][0]: stamp(a, 1+q, True)
        if diag and P.get('RT'):
            r0, r1 = (9, 21) if P['RT'] == 1 else P['RT']
            if i == srange[r0][0]: a('s_memtime s[62:63]\ns_memrealtime s[64:65]')
            if i == srange[r1][0]: a('s_memtime s[66:67]\ns_memrealtime s[68:69]')
        if diag and i == srange[6][0]: stamp(a, 10, True)
        if diag and i == srange[G2][0]: stamp(a, 11, True)
        if i == srange[G2][0]: P['mark']('g2')
        if i == srange[6][0]: P['mark']('f1')
        assert bl.get(bi) == (1 if S < G2 else 2), (i, S, bi)
        a.wait(vm=[('b', bi)], lg=[('f', key), ('b', bi)])
        txt = mk(vr(FR + 4*(fid[key] % NFR)))
        if M16 and M16[0] <= S < M16[1] and not txt.endswith(', 0') and lastuse[key] != i or (M16 and M16[0] <= S < M16[1] and not txt.endswith(', 0')):
            import re
            m_ = re.match(r'\S+ v\[(\d+):\d+\], (\S+), (\S+), ', txt)
            two = []
            for q in range(2):
                if c16['n'] % M16[2] == 0: c16['d'] = int(m_.group(1)) + 4*((c16['n']//M16[2]) % 4)
                c16['n'] += 1
                B = m_.group(3) if q == 0 else breg(bi ^ 1)
                two.append(f'v_mfma_f32_16x16x32_bf16 {vr(c16["d"])}, {m_.group(2)}, {B}, {vr(c16["d"])}')
            a(two[0]); pend16.append(two[1])
        else: a(txt)
    if pend16: a(pend16.pop())
    for f in slots[NM]: f()
    stamp(a, 12, diag); P['mark']('mend')
    pload(1, PD)
    o = COps(a)
    OWN = GACC[3]+16
    for n, x in enumerate((6, 7, 4, 5)):
        o.f(lambda x=x: a.wait(vm=[('p', x)])); accum(o, SUM, PL+8*n, 8)
    o.f(lambda: a.wait(vm='cl'))
    for p in range(8): accum(o, CS, CL+p, 1)
    for i in range(16): o.e(f'v_add_f32 v{SUM+i}, v{SUM+i}, v{OWN+i}')
    o.e(f'v_cvt_pk_bf16_f32 v{CR}, v{CS}, v{CS+1}')
    for _, g in o: g()
    a.vmem(f'buffer_store_dword v{CR}, v{V_OUT}, s[32:35], s53 offen {P.get("OF","")}', 'out')
    P['sentinel'](PD, 24, ('p', 1), lambda: (pload(2, PD+8), pload(3, PD+16), pload(1, PD)), V_T)
    stamp(a, 13, diag)
    o = COps(a)
    for hf in range(2):
        for n in range(3): accum(o, SUM+8*hf, PD+8*n+4*hf, 4)
    for _, g in o: g()
    for hf in range(2):
        if hf: a('s_nop 0')
        for i in range(4): a(f'v_cvt_pk_bf16_f32 v{RES+4*hf+i}, v{SUM+8*hf+2*i}, v{SUM+8*hf+2*i+1}')
        a.vmem(f'buffer_store_dwordx4 {vr(RES+4*hf)}, v{V_OUT}, s[32:35], s52 offen offset:{16*hf} {P.get("OF","")}', 'out')
```

```python
from asmlib import *
from layout import *
import math
WS_X = 0x4000000

import re
LD = 5
def cost(line):
    op = line.split()[0]
    if op.startswith(('v_exp', 'v_rcp', 'v_rsq')): return 8
    if op.startswith('buffer_'): return 8
    if op.startswith('ds_write'): return 8
    if op.startswith('ds_'): return LD
    if op.startswith('s_nop'): return 4
    if op.startswith('s_'): return 0
    if op.startswith('v_mul_lo'): return 8
    return 4

def regs(txt):
    op, rest = txt.split(None, 1)
    toks = [t.strip() for t in rest.split(',')]
    def ex(t):
        t = t.lstrip('-').split()[0]
        m = re.match(r'([vs])\[(\d+):(\d+)\]$', t)
        if m: return {(m.group(1), r) for r in range(int(m.group(2)), int(m.group(3))+1)}
        m = re.match(r'([vs])(\d+)$', t)
        return {(m.group(1), int(m.group(2)))} if m else set()
    allr = [ex(t) for t in toks]
    if op.startswith(('ds_write', 'buffer_store')): return set().union(*allr) | {'mem'}, {'mem'}
    return set().union(*allr[1:]), allr[0]

class COps(list):
    def __init__(self, a): super().__init__(); self.a = a
    def e(self, s):
        for line in s.split('\n'):
            line = line.strip()
            if line:
                fn = lambda line=line: self.a(line)
                fn.txt = line
                self.append((cost(line), fn))
    def f(self, fn, c=0, txt=None):
        if txt: fn.txt = txt
        self.append((c, fn))

def need(x):
    assert x

def emit_ffn4(a, P):
    import mega
    diag = P['diag']
    chk_issue, chk_verify, flag_store0 = P['chk_issue'], P['chk_verify'], P['flag_store']
    V_CK, stamp = P['V_CK'], P['stamp']
    SH, RDN, NFR = P.get('SH', 14), P.get('RDN', 21), 8
    DMAC = 9
    FLX = mega.FLX; FL4 = mega.FL4; FL3 = mega.FL3
    RING = 81920; RB = 57344; BS = 53248
    V_L16, V_B1, V_B1x, V_ACTW = 1, 2, 3, 4
    V_DD, V_DH, V_DGH = 5, 6, 7
    V_C0, V_C1, V_IR = 10, 14, 18
    V_RF, V_RH = 22, 23
    V_T = 24
    FR = 176
    BX = 208
    V_DG = 240
    V_B2, V_B2x = 243, 244
    def breg(bi): return vr(4*bi, 4, 'a') if bi < 64 else vr(BX + 4*(bi-64))
    PAD = P.get('PAD', 1)
    a('L_ffn:')
    if PAD: a('s_cmp_lg_u32 s16, 3\ns_cbranch_scc1 L_pad_end\ns_mov_b64 exec, 0\ns_branch L_pad0\nL_pad_end:\ns_mov_b64 exec, -1')
    npad = {'n': 0}
    def pad(last=False):
        n = npad['n']; npad['n'] += 1
        a(f'L_pad{n}:\ns_cbranch_execz ' + ('L_pad_end' if last else f'L_pad{n+1}'))
    a(f"""s_load_dwordx2 s[32:33], s[0:1], 56
    s_load_dwordx4 s[4:7], s[0:1], 32
    s_load_dwordx2 s[48:49], s[0:1], 48
    v_lshlrev_b32 v{V_L16}, 4, v9
    s_and_b32 s23, s35, 7
    s_lshr_b32 s24, s35, 3
    s_and_b32 s19, s24, 1
    s_and_b32 s17, s23, 3
    s_lshl_b32 s17, s17, 1
    s_bfe_u32 s25, s24, 0x10001
    s_add_u32 s17, s17, s25
    s_lshr_b32 s18, s23, 2
    s_lshl_b32 s18, s18, 3
    s_lshr_b32 s25, s24, 2
    s_add_u32 s18, s18, s25
    s_lshr_b32 s54, s16, 1
    s_and_b32 s55, s16, 1
    v_lshrrev_b32 v30, 3, v9
    v_and_b32 v31, 7, v9
    v_bfe_u32 v24, v9, 4, 1
    v_lshlrev_b32 v25, 2, v24
    v_xor_b32 v31, v25, v31
    s_mul_i32 s23, s16, 24
    v_add_u32 v26, s23, v30
    v_mul_u32_u24 v26, 9216, v26
    v_lshl_add_u32 v{V_DG}, v31, 4, v26
    v_add_u32 v{V_DG+1}, {8*9216-1024}, v{V_DG}
    v_add_u32 v{V_DG+2}, {16*9216-2048}, v{V_DG}
    s_mul_i32 s22, s16, 3072
    s_mul_i32 s20, s17, 1152
    s_lshl_b32 s23, s19, 6
    s_add_u32 s21, s20, s23
    s_add_u32 s21, s21, 512
    s_mul_i32 s23, s19, 640
    s_add_u32 s20, s20, s23
    s_waitcnt lgkmcnt(0)
    s_mov_b32 s40, s4
    s_mov_b32 s41, s5
    s_mov_b32 s42, {576*9216}
    s_mov_b32 s43, 0x20000
    s_mov_b32 s44, s6
    s_mov_b32 s45, s7
    s_mov_b32 s46, {576*9216}
    s_mov_b32 s47, 0x20000
    s_mov_b32 s50, {576*9216}
    s_mov_b32 s51, 0x20000
    s_mov_b32 s34, {NB}
    s_mov_b32 s35, 0x20000""")
    a('s_cmp_lg_u32 s16, 3\ns_cbranch_scc1 L_nopre\ns_cmp_lt_u32 s2, 64\ns_cbranch_scc1 L_pre')
    P['lds_wait'](1, 26)
    HF = P.get('HF', 1)
    if HF:
        a(f"""s_and_b32 s23, s2, 7
        s_mul_i32 s23, s23, 24
        s_lshr_b32 s24, s2, 3
        s_add_u32 s23, s23, s24
        s_sub_u32 s23, s23, 8
        s_mul_i32 s24, s23, 5462
        s_lshr_b32 s24, s24, 16
        s_lshl_b32 s24, s24, 2
        s_add_u32 s23, s23, s24
        s_lshl_b32 s23, s23, 6
        s_add_u32 s23, s23, {mega.FL1}""")
        if HF > 1: a(f's_sleep {HF}')
        vm0 = list(a.vm); flag_store0(23); a.vm = vm0
    a(f'L_pre:\ns_mov_b32 s23, {mega.FLC+8192}')
    vm0 = list(a.vm); chk_issue(23, V_CK, 'ct'); a.vm = vm0
    a(f"""s_mov_b32 s25, {RING}
    s_mov_b32 s24, s20
    s_mov_b32 s26, 0""")
    for j in range(3): a(f'v_subrev_u32 v{48+j}, {72*9216}, v{V_DG+j}')
    a(f"""L_prel:
    s_mov_b32 m0, s25
    s_add_u32 s27, s25, 12288""")
    for j in range(3): a(f'buffer_load_dwordx4 v{48+j}, s[40:43], s24 offen offset:{1024*j} lds')
    a('s_mov_b32 m0, s27\ns_add_u32 s26, s26, 1')
    for j in range(3): a(f'buffer_load_dwordx4 v{48+j}, s[44:47], s24 offen offset:{1024*j} lds')
    a(f"""s_add_u32 s24, s24, {24*9216}
    s_add_u32 s25, s25, 3072
    s_and_b32 s27, s26, 3
    s_cmp_eq_u32 s27, 0
    s_cselect_b32 s27, 12288, 0
    s_add_u32 s25, s25, s27
    s_cmp_lt_u32 s26, 12
    s_cbranch_scc1 L_prel""")
    a(f"""L_nopre:
    s_cmp_ge_u32 s2, 64
    s_cbranch_scc1 L_nowd
    s_barrier
    s_lshl_b32 s24, s2, 2
    s_add_u32 s24, s24, s16
""")
    if P.get('HP'):
        a(f's_mul_i32 s24, s24, {63*128}\ns_add_u32 s24, s24, {25344*128}\nv_lshl_add_u32 v48, v9, 7, s24\ns_bfm_b64 exec, 63, 0\nbuffer_load_dword v254, v48, s[48:51], 0 offen')
    else:
        a('s_mul_i32 s24, s24, 20736\nv_lshl_add_u32 v48, v9, 7, s24\ns_bfm_b64 exec, 54, 0')
        for i in range(3): a(f'buffer_load_dword v254, v48, s[48:51], 0 offen\nv_add_u32 v48, 6912, v48')
    a('s_mov_b64 exec, -1\nL_nowd:')
    PASS = ['F0', 'H', 'F1', 'F2', 'F3']
    PG = [0, None, 1, 2, 3]
    stages = []
    pstart = []
    for p in range(5):
        pstart.append(len(stages))
        stages += [('g1', p, sg) for sg in range(3 if p == 1 else 6)]
    G2 = len(stages)
    KS = [('p',0),('p',1),('p',8), ('p',2),('p',3),('o',0), ('o',1),('o',8),('o',2), ('o',3),('o',4),('o',5), ('p',4),('p',5),('o',6), ('o',7),('p',6),('p',7)]
    sl = {k: i for i, k in enumerate(KS)}
    early = [('o',0),('o',1),('p',0),('p',1),('o',8),('p',8),('o',2),('o',3),('p',2),('p',3),('o',4),('o',5),('p',4),('p',5)]
    blocks = []
    order = early[:12] + [('o',6),('o',7),('p',4),('p',5),('p',6),('p',7)]
    for i in range(0, 18, 2):
        blocks += [('F', 0, sl[order[i]]), ('F', 0, sl[order[i+1]]), ('H', sl[order[i]], sl[order[i+1]])]
    NBE = P.get('NBE', 1)
    bb = [('F', 1, s) for s in range(18)]
    blocks = blocks[:24] + bb[:6*NBE] + blocks[24:] + bb[6*NBE:]
    for g in (2, 3): blocks += [('F', g, s) for s in range(18)]
    cuts = [6]*(4+NBE) + [3] + [6]*(9-NBE)
    i = 0
    for c in cuts: stages.append(('g2', blocks[i:i+c])); i += c
    NS = len(stages)
    SC = 36
    SL = G2+4+NBE; SB, SCn, SD, SO = SL+1, G2+8, G2+11, NS
    FREEA = G2+4
    slotb = {}; rel = {}
    avail = [(RING + i*24576, -9) for i in range(3)]
    extra = [(RB, 6), (0, G2), (24576, FREEA), (49152, FREEA)] if P.get('S4', 1) else [(0, FREEA), (24576, FREEA), (49152, FREEA)]
    for S in range(NS):
        while extra and extra[0][1] <= min(x[1] for x in avail): avail.append(extra.pop(0))
        cand = sorted(avail, key=lambda x: x[1])
        if S >= G2: cand = [x for x in cand if x[0] != RB]
        b = cand[0]; avail.remove(b)
        if S >= G2: avail = [x for x in avail if x[0] != RB]
        slotb[S], rel[S] = b[0], b[1]
        avail.append((b[0], S+1))
    LC = {0: 0, 1: 4, 2: 8, 3: 12, 8: 16, 4: 20, 5: 24, 6: 28, 7: 32}
    def rowbase(ks):
        kind, i = KS[ks]
        r = {('o', False): 4, ('p', False): 5, ('o', True): 6, ('p', True): 7}[(kind, i == 8)]
        return r, (32*i*1152 if i < 8 else 0)
    dg = {'g': None}
    def dmai(ins, tag):
        if ' m0,' in a.L[-1]: a('s_nop 0')
        if tag[0] == 'u': ins = ins.replace(' lds', ' ' + P.get('WF', '') + ' lds')
        a.vmem(ins, tag)
    def dma_ops(S):
        o = COps(a)
        if S >= NS or (P.get('NODMA') and 12 <= S < 24): return o
        st = stages[S]; slot = slotb[S]
        if st[0] == 'g1':
            p, sg = st[1], st[2]
            for mat in range(2):
                for j in range(3):
                    if p != 1:
                        if j == 0: o.e(f's_add_u32 m0, s22, {slot+12288*mat}' + (f'\ns_add_u32 s24, s20, {96*sg*9216+128*PG[p]}' if mat == 0 else ''))
                        ins = f'buffer_load_dwordx4 v{V_DG+j}, s[{40+4*mat}:{43+4*mat}], s24 offen offset:{1024*j} lds'
                    else:
                        o.e(f's_add_u32 m0, s22, {slot+12288*mat+1024*j}\ns_add_u32 s24, s21, {(192*sg+16*j)*9216}')
                        ins = f'buffer_load_dwordx4 v{V_DGH}, s[{40+4*mat}:{43+4*mat}], s24 offen lds'
                    o.f(lambda ins=ins: dmai(ins, ('u', S)), DMAC)
        else:
            for n, b in enumerate(st[1]):
                pre = ''
                if b[0] == 'F':
                    if b[1] != dg['g']:
                        back = dg['g'] is not None and b[1] < dg['g']
                        pre = ''.join(f's_{"sub" if back else "add"}_u32 s{r}, s{r}, s{SC+(dg["g"] if back else b[1])}\n' for r in range(4, 8))
                        dg['g'] = b[1]
                    r, c = rowbase(b[2])
                    pre += f's_add_u32 s24, s{r}, {c}\n'
                    vo = V_DD
                else:
                    r, c = rowbase(b[1])
                    if r >= 6: pre = 's_mov_b32 s24, s8\n'
                    else: pre = f's_add_u32 s24, s{(3, 58)[r-4]}, {c}\n'
                    vo = V_DH
                pre = f's_add_u32 m0, s28, {slot+4096*n}\n' + pre
                o.e(pre)
                o.f(lambda vo=vo: dmai(f'buffer_load_dwordx4 v{vo}, s[48:51], s24 offen lds', ('u', S)), DMAC)
        return o
    def hc_ops(g):
        o = COps(a)
        if g >= 6: return o
        for mh in range(2):
            for j in range(3):
                if j == 0: o.e(f's_add_u32 m0, s22, {(g%3)*24576+mh*12288}\ns_add_u32 s24, s30, {12288*g+73728*mh}')
                o.f(lambda j=j: dmai(f'buffer_load_dwordx4 v{V_L16}, s[12:15], s24 offen offset:{j*1024} sc1 lds', ('dma', g)), DMAC)
        return o
    a(f"""s_mul_i32 s30, s18, {2*73728}
    s_add_u32 s30, s30, s22
    s_add_u32 s30, s30, {WS_HC}
    s_lshl_b32 s31, s18, 1
    s_add_u32 s31, s31, s54
    s_mul_i32 s27, s31, {NSSQ*256}
    s_add_u32 s27, s27, {WS_SSQ}
    v_lshlrev_b32 v8, 2, v9
    s_lshl_b32 s28, s16, 10
    s_mul_i32 s23, s17, {576*1152}
    s_mul_i32 s24, s19, {320*1152}
    s_add_u32 s4, s23, s24
    s_sub_u32 s5, s23, s24
    s_add_u32 s5, s5, {320*1152}
    s_mul_i32 s24, s19, {32*1152}
    s_add_u32 s6, s23, s24
    s_add_u32 s6, s6, {256*1152}
    s_sub_u32 s7, s23, s24
    s_add_u32 s7, s7, {288*1152}
    s_lshl_b32 s9, s19, 6
    s_add_u32 s9, s9, 512
    s_sub_u32 s23, s7, {32*1152}
    s_cmp_eq_u32 s54, 0
    s_cselect_b32 s8, s6, s23
    s_add_u32 s8, s8, s9
    s_lshr_b32 s3, s17, 1
    s_mul_i32 s23, s19, 640""")
    for g in range(4):
        a(f's_add_u32 s24, s3, {g+1}\ns_and_b32 s24, s24, 3\ns_lshl_b32 s24, s24, 7\ns_add_u32 s{SC+g}, s24, s23')
    a(f's_mov_b32 s29, s{SC+3}')
    for g in (3, 2, 1): a(f's_sub_u32 s{SC+g}, s{SC+g}, s{SC+g-1}')
    a('s_add_u32 s3, s4, s9')
    a(f"""s_lshl_b32 s23, s16, 3
    v_add_u32 v26, s23, v30
    v_mul_u32_u24 v26, 1152, v26
    v_lshl_add_u32 v{V_DD}, v31, 4, v26
    v_lshrrev_b32 v25, 2, v9
    v_and_b32 v27, 3, v9
    s_lshl_b32 s23, s16, 4
    v_add_u32 v26, s23, v25
    v_mul_u32_u24 v26, 1152, v26
    v_lshl_add_u32 v{V_DH}, v27, 4, v26
    s_mul_i32 s23, s16, 48
    v_add_u32 v26, s23, v25
    v_mul_u32_u24 v26, 9216, v26
    v_lshl_add_u32 v{V_DGH}, v27, 4, v26
    v_and_b32 v29, 15, v9
    v_lshrrev_b32 v25, 4, v9
    v_lshlrev_b32 v{V_B1}, 10, v25
    v_lshl_add_u32 v{V_B1}, v29, 4, v{V_B1}
    s_lshl_b32 s23, s55, 9
    v_add_u32 v{V_B1}, s23, v{V_B1}
    v_lshl_add_u32 v{V_B2}, v25, 10, v{V_B1}
    s_mul_i32 s23, s54, 12288
    v_add_u32 v{V_B1}, s23, v{V_B1}
    v_xor_b32 v{V_B1x}, 512, v{V_B1}
    s_lshl_b32 s23, s54, 10
    v_add_u32 v{V_B2}, s23, v{V_B2}
    s_lshl_b32 s24, s55, 13
    v_add_u32 v{V_ACTW}, s24, v{V_B2}
    s_lshl_b32 s24, s18, 3
    s_add_u32 s24, s24, s17
    s_lshl_b32 s24, s24, 1
    s_add_u32 s25, s24, s19
    s_xor_b32 s24, s25, 1
    s_mul_i32 s10, s25, 73728
    s_add_u32 s10, s10, {WS_X}
    s_mul_i32 s11, s24, 73728
    s_add_u32 s11, s11, {WS_X}
    s_lshl_b32 s52, s25, 10
    s_lshl_b32 s23, s16, 6
    s_add_u32 s52, s52, s23
    s_add_u32 s52, s52, {FLX}
    s_lshl_b32 s53, s24, 10
    s_lshl_b32 s23, s54, 7
    s_add_u32 s53, s53, s23
    s_add_u32 s53, s53, {FLX}""")
    a(f"""v_bfe_u32 v24, v9, 2, 2
    v_lshl_add_u32 v25, v25, 3, v24
    v_lshlrev_b32 v27, 4, v27
    v_lshl_add_u32 v{V_RH}, v25, 6, v27
    v_lshl_add_u32 v{V_RF}, v25, 7, v27
    v_bfe_u32 v24, v9, 3, 1
    v_xor_b32 v24, s55, v24
    v_lshl_add_u32 v{V_RF}, v24, 6, v{V_RF}
""")
    if P.get('CFHACK'):
        a(f"""v_lshrrev_b32 v27, 1, v27
        v_bfe_u32 v26, v9, 4, 1
        v_lshl_add_u32 v27, v26, 5, v27
        v_lshl_add_u32 v{V_RH}, v25, 6, v27
        v_lshl_add_u32 v{V_RF}, v25, 7, v27
        v_lshl_add_u32 v{V_RF}, v24, 6, v{V_RF}""")
    a(f"""s_lshl_b32 s26, s18, 12
    s_add_u32 s26, s26, {FL3}
    s_mov_b32 s96, 0x3ffff
    s_mov_b32 s97, 0x3ffff
    s_mov_b64 s[98:99], 3""")
    LATEF = P.get('LATEF', 1)
    def f3flag():
        a.wait(vm='pre'); flag_store0(58, None, 255); a('s_add_u32 s58, s5, s9')
    if not LATEF: f3flag()
    else: a('s_cmp_lg_u32 s16, 3\ns_cbranch_scc1 L_w3\ns_waitcnt vmcnt(0)\nL_w3:')
    stamp(a, 8, diag)
    HSEN = P.get('HSEN', 1)
    a('s_cmp_lg_u32 s16, 3\ns_cbranch_scc1 L_c3skip')
    vm0 = list(a.vm)
    if not HSEN:
        chk_issue(26, V_CK, 'c3', 96); chk_verify(26, V_CK, 'c3', 96, 2)
    else:
        a(f's_cmp_ge_u32 s2, 64\ns_cbranch_scc1 L_c3skip\ns_mov_b32 s23, {mega.FLC+8192}')
        chk_verify(23, V_CK, 'ct', None, 8)
        if HF:
            a(f's_lshl_b32 s23, s18, 10\ns_add_u32 s23, s23, {mega.FL1}\ns_bfm_b64 s[100:101], 12, 0')
            chk_issue(23, V_CK, 'hf', 100); chk_verify(23, V_CK, 'hf', 100, 4)
            if P.get('HFD'): a(f's_sleep {P["HFD"]}')
        else:
            a(f"""v_and_b32 v24, 15, v9
            v_min_u32 v24, 8, v24
            v_lshlrev_b32 v24, 12, v24
            v_bfe_u32 v25, v9, 4, 1
            v_lshl_add_u32 v24, v25, 9, v24
            v_lshrrev_b32 v25, 5, v9
            v_mul_u32_u24 v25, {73728//16}, v25
            v_lshl_add_u32 v24, v25, 4, v24
            s_sub_u32 s23, s30, s22
            s_mov_b32 s59, {mega.SPIN}
            L_hprobe:
            s_sleep 3
            buffer_load_dword v25, v24, s[12:15], s23 offen offset:1024 sc1
            s_waitcnt vmcnt(0)
            v_cmp_eq_u32 vcc, -1, v25
            s_sub_u32 s59, s59, 1
            s_cbranch_scc1 L_c3skip
            s_cmp_eq_u64 vcc, 0
            s_cbranch_scc0 L_hprobe""")
    a.vm = vm0
    a('L_c3skip:')
    if P.get('HD'): a(f's_cmp_lt_u32 s2, 64\ns_cbranch_scc1 L_nohd\ns_sleep {P["HD"]}\nL_nohd:')
    a('s_barrier')
    stamp(a, 9, diag); P['mark']('f0')
    for _, f in hc_ops(0) + hc_ops(1): f()
    if LATEF: f3flag()
    a(f'v_add_u32 v247, s22, v{V_L16}')
    HT = 112
    def hread(g):
        for n in range(6): a.lds(f'ds_read_b128 {vr(HT+4*n)}, v247 offset:{(g%3)*24576+(n//3)*12288+(n%3)*1024}', ('hr', g))
    def hcheck(g): P['sentinel'](HT, 24, ('hr', g), lambda: [f() for _, f in (hc_ops(g) + hc_ops(1) if g == 0 else hc_ops(g))], HT+24, lambda: hread(g), g > 0)

    Qa = [48, 80, 112, 144]
    PACC = [(Qa[0], Qa[1]), (Qa[2],), (Qa[3], Qa[0]), (Qa[1], Qa[2]), (Qa[3], Qa[0])]
    GACC = {0: Qa[1], 'H': Qa[2], 1: Qa[3], 2: Qa[0], 3: Qa[1]}
    mfs = []; frs = []; fid = {}; srange = []; grp_of = {}
    started = set()
    def addfr(S, key, reg, off, hstep):
        if P.get('CFHACK') and off & 8: off = (off - 8) ^ hstep*2 if False else off - 8
        fid[key] = len(fid); frs[S].append((key, reg, off, hstep)); return key
    def group(S, specs, dsts):
        ks = [addfr(S, *s[:4]) for s in specs]
        for k in ks: grp_of[k] = ks
        for pos, d in dsts:
            for k, s in zip(ks, specs):
                first = d not in started; started.add(d)
                bi = 4*s[4] + pos
                mfs.append((S, k, bi, lambda A, d=d, bi=bi, first=first: f'v_mfma_f32_16x16x32_bf16 {vr(d)}, {A}, {breg(bi)}, {"0" if first else vr(d)}'))
    def g2stage(S, blks, dpos=None):
        F = [(n, b) for n, b in enumerate(blks) if b[0] == 'F']; H = [(n, b) for n, b in enumerate(blks) if b[0] == 'H']
        L = 3 if len(F) == 6 else len(F)
        if len(F) == 4 and P.get('L2', 1): L = 2
        for i in range(0, len(F), L):
            g = F[i][1][1]
            for tau in range(2):
                group(S, [((S, n, tau), V_RF, n*4096+8*tau, 512, b[2]) for n, b in F[i:i+L]],
                      [(pos, GACC[g]+8*pos+4*tau) for pos in (dpos or range(4))])
        for tau in range(2):
            if H: group(S, [((S, n, tau, e), V_RH, n*4096+e*2048+8*tau, 256, b[1+e]) for n, b in H for e in range(2)],
                        [(pos, GACC['H']+8*pos+4*tau) for pos in range(2)])
    for S, st in enumerate(stages):
        frs.append([]); m0 = len(mfs)
        if st[0] == 'g1':
            p, sg = st[1], st[2]
            if sg == 0: started.clear()
            for mat in range(2):
                if p != 1:
                    for tau in range(2):
                        group(S, [((S, mat, tau, j), V_RF, mat*12288+j*4096+8*tau, 512, 3*sg+j) for j in range(3)],
                              [(pos, PACC[p][pos >> 1]+16*(pos & 1)+8*mat+4*tau) for pos in range(4)])
                else:
                    for h3 in range(2):
                        for tau in range(2):
                            group(S, [((S, mat, tau, j), V_RH, mat*12288+j*2048+8*tau, 256, 6*sg+j) for j in range(3*h3, 3*h3+3)],
                                  [(pos, PACC[p][0]+16*pos+8*mat+4*tau) for pos in range(2)])
        else:
            if S == G2 or S == NS-3: started.clear()
            g2stage(S, st[1], (0, 1) if S >= NS-3 else None)
        srange.append((m0, len(mfs)))
    for k3 in range(3):
        S = NS+k3; frs.append([]); m0 = len(mfs); slotb[S] = slotb[NS-3+k3]
        g2stage(S, stages[NS-3+k3][1], (2, 3))
        srange.append((m0, len(mfs)))
    NM = len(mfs)
    lastuse = {}; firstuse = {}
    for i, m in enumerate(mfs):
        lastuse[m[1]] = i; firstuse.setdefault(m[1], i)
    keys = sorted(fid, key=lambda k: fid[k])
    GW = P.get('GW', 1)
    if GW:
        for k in keys:
            if k[0]: firstuse[k] = firstuse[grp_of[k][0]]
    slots = [[] for _ in range(NM+1)]
    load = [0]*(NM+1); nld = [0]*(NM+1); nsal = [0]*(NM+1); excl = [0]*(NM+1)
    def at(i, c, f):
        i = max(0, min(NM, int(i))); slots[i].append(f)
        if c == LD: nld[i] += 1; c = 4
        if c == DMAC: c = 8; excl[i] = 1
        if c == 0: nsal[i] += 1
        load[i] += c
        return i
    def fits(i, c, cap=8):
        if c == 0: return nsal[i] < 2
        if c == LD: return nld[i] == 0 and load[i] + 4 <= cap
        if c > 8: return load[i] == 0
        return load[i] + c <= cap
    def near(i, c, f, span=8):
        i = int(i)
        for j in range(i, min(i+span, NM)):
            if fits(j, c): return at(j, c, f)
        return at(min(range(i, min(i+span, NM+1)), key=lambda j: load[j] + 4*nld[j]), c, f)
    def put(ops, lo, hi):
        n = len(ops); prev = int(lo)
        for k, (c, f) in enumerate(ops):
            i = max(prev, int(lo + (hi-lo)*k/n))
            prev = near(i, c, f, max(1, min(6, int(hi)-i)))
    place_mem = put
    def fill(ops, lo, hi, W=1):
        lo, hi = int(lo), int(hi)
        info = [regs(f.txt) if hasattr(f, 'txt') else None for c, f in ops]
        def attempt(extra, commit):
            L = load[:]; D = nld[:]; SA = nsal[:]
            todo = list(range(len(ops))); when = {}; credit = 0.0; plan = []
            for i in range(lo, hi):
                credit += extra
                while todo:
                    room = 8 - L[i] + (0 if excl[i] else (int(credit)//4)*4)
                    pick = None
                    for x in range(min(W, len(todo))):
                        k = todo[x]; c = ops[k][0]
                        if info[k] is None and x: break
                        ok = True
                        if x:
                            r, w = info[k]
                            for y in todo[:x]:
                                r2, w2 = info[y]
                                if r & w2 or w & r2 or w & w2: ok = False; break
                        if ok and info[k] and W > 1 and any(when.get(q) == i for q in info[k][0]): ok = False
                        cc = 4 if c == LD else min(c, 8)
                        if ok and (SA[i] < 2 if c == 0 else cc <= room and not (c == LD and D[i])):
                            if pick is None or (cc > min(ops[pick][0], 8) and cc == room): pick = k
                        if info[k] is None: break
                    if pick is None: break
                    c = ops[pick][0]; cc = 4 if c == LD else c
                    over = max(0, L[i] + min(cc, 8) - 8) - max(0, L[i] - 8)
                    credit -= over
                    L[i] += cc; D[i] += c == LD; SA[i] += c == 0
                    if info[pick]:
                        for q in info[pick][1]: when[q] = i
                    todo.remove(pick); plan.append((i, pick))
            if todo: return False
            for i, k in plan: at(i, *ops[k])
            return True
        extra = 0.0
        while not attempt(extra, True): extra += 0.25
    def frac(S, x):
        m0, m1 = srange[S]; return m0 + x*(m1-m0)
    bpos = {}; xwait = {}
    awn = {p: 0 for p in range(5)}; vis = set(); bl = {}
    def barrier(S):
        def f():
            lg = [('f', k[0]) for k in frs[S-1]] if S else []
            if S <= 6 or S == FREEA or S == G2: lg += [('b', k) for k in range(72)]
            if S == G2: assert all(bl[4*sl[('o', k)]+e] == 2 for k in range(3) for e in range(4))
            if S == FREEA: assert all(bl[4*k+e] == 2 for k in range(18) if KS[k][0] == 'o' for e in range(4))
            a.wait(vm=[('u', S)] + xwait.get(S, []), lg=lg)
            for p in range(5):
                if awn[p] == (2 if p == 1 else 4) and ('aw', p) not in a.lg: vis.add(p)
            if not P.get('NOBAR'): a('s_barrier')
            if P.get('SLW') and 9 <= S < 27: a(f's_sleep {P["SLW"]}')
        return f
    def bread1(bi):
        s, pos = bi >> 2, bi & 3; g = s//3
        off = (g % 3)*24576 + (s % 3)*4096 + (pos & 1)*256
        def f():
            bl[bi] = 1; a.lds(f'ds_read_b128 {breg(bi)}, v{(V_B1, V_B1x)[pos >> 1]} offset:{off}', ('b', bi))
        return (5, f)
    prev = 0; cur = {}; leads = []
    for S in range(NS+3):
        m0, m1 = srange[S]
        b = max(prev + (P.get('BG', 6) if S < NS else 0), m0 - SH) if S else 0
        b = min(b, m0)
        bpos[S] = b
        if HSEN and S == 0: at(0, 0, lambda: (a.wait(vm=[('dma', 0)]), hread(0)))
        if HSEN and S < 6: at(b, 0, lambda S=S: hcheck(S))
        if S < NS: at(b, 0, barrier(S))
        for reg in sorted(set(k[1] for k in frs[S])):
            dlt = slotb[S] - cur.get(reg, 0); cur[reg] = slotb[S]
            if dlt: at(b, 4, lambda reg=reg, dlt=dlt: a(f'v_add_u32 v{reg}, {dlt & 0xffffffff}, v{reg}'))
        n = len(frs[S])
        for j, (key, reg, off, hstep) in enumerate(frs[S]):
            i = fid[key]
            r = FR + 4*(i % NFR)
            for hf in range(2):
                pos = max(b, min(int(b + (m1-m0)*(2*j+hf)/(2*n)*RDN/24.0), firstuse[key] - P.get('LM', 10)))
                if i >= NFR: pos = max(pos, lastuse[keys[i-NFR]] + 1)
                pos = max(pos, prev)
                while not fits(pos, LD) and pos < firstuse[key] - 3: pos += 1
                assert pos <= firstuse[key], (S, j, pos, firstuse[key])
                pp = prev = pos
                if P.get('NOTR') and 9 <= S < 21: continue
                at(pp, LD, lambda key=key, reg=reg, off=off, hf=hf, r=r, hstep=hstep: a.lds(f'ds_read_b64_tr_b16 {vr(r+2*hf,2)}, v{reg} offset:{off+hstep*hf}', ('f', key)))
            leads.append(firstuse[key]-pp)
            if S < 6 and j == 2:
                q = b
                for x, bi in enumerate(4*(3*S+jj)+pos_ for pos_ in range(4) for jj in range(3)):
                    while not fits(q, LD) and q < m0 + x - 4: q += 1
                    at(q, *bread1(bi))
            prev = pp
    nxt = 3; queue = []
    M1 = P.get('M1', 0.65); dmaend = {}
    for S in range(NS):
        mem = list(hc_ops(S+2)) if S < 4 else []
        while nxt < NS and rel[nxt] <= S:
            queue += [(nxt, x) for x in dma_ops(nxt)]; nxt += 1
        w = bpos[S+1]-bpos[S]
        lim = int(P.get('RATE', 8)*w/48); k = 0; nd = 0
        while k < len(queue) and (queue[k][0] <= S+2 or nd < lim or queue[k][1][0] == DMAC and k and queue[k-1][1][0] != DMAC or (stages[queue[k][0]][0] == 'g1' and k and queue[k][0] == queue[k-1][0])):
            nd += queue[k][1][0] == DMAC; k += 1
        mem += [q[1] for q in queue[:k]]; queue = queue[k:]
        hi = bpos[S] + 1 + (M1 if sum(1 for c, _ in mem if c == DMAC) <= 6 else 0.8)*w
        place_mem(mem, bpos[S]+1, hi)
        dmaend[S] = int(hi)
    assert not queue

    xok = {'i': -1, 'v': -1, 'c3': 0}; s25o = {'k': None}
    def bread2(ks):
        kind, i = KS[ks]; o = COps(a)
        for pos in range(4):
            bi = 4*ks+pos
            if kind == 'o':
                def g(bi=bi, pos=pos):
                    assert (1 if i == 8 else PG.index(i//2)) in vis, (ks, vis)
                    off = LC[i]*2048 + (pos & 1)*256
                    r = (V_B2, V_B2x)[pos >> 1] if off < 65536 else (V_B1, V_B1x)[pos >> 1]
                    bl[bi] = 2; a.lds(f'ds_read_b128 {breg(bi)}, v{r} offset:{off % 65536}', ('b', bi))
                o.f(g, 5)
            else:
                def f(bi=bi, pos=pos):
                    assert xok['v'] >= {0: 0, 1: 0, 8: 0, 2: 1, 3: 1}.get(i, 2), (ks, xok)
                    assert pos == 0 or s25o['k'] == ks
                    s25o['k'] = ks
                    bl[bi] = 2
                    if pos == 0: a(f's_add_u32 s25, s11, {LC[i]*2048}')
                    a.vmem(f'buffer_load_dwordx4 {breg(bi)}, v{(V_B2, V_B2x)[pos >> 1]}, s[12:15], s25 offen offset:{(pos & 1)*256} sc1', ('b', bi))
                o.f(f, DMAC)
        return o
    for g in range(6):
        xwait[g] = [('dma', g)]
        if HSEN and g:
            o = COps(a)
            o.f(lambda g=g: a.wait(vm=[('dma', g)]))
            for n in range(6): o.f(lambda n=n, g=g: a.lds(f'ds_read_b128 {vr(HT+4*n)}, v247 offset:{(g%3)*24576+(n//3)*12288+(n%3)*1024}', ('hr', g)), LD)
            put(o, bpos[g]-P.get('HC0', 24), bpos[g]-12)
            o = COps(a)
            o.f(lambda g=g: a.wait(lg=[('hr', g)])); o.e(P['maxchain'](HT, 24, HT+24))
            fill(o, bpos[g]-9, bpos[g]-1)
    K0 = -2.0*math.log2(math.e)*math.sqrt(2.0/math.pi)
    o = COps(a)
    for j in range(NSSQ): o.f(lambda j=j: (need(xok['c3'] == 2 or not HSEN), a.vmem(f'buffer_load_dword v{V_T+j}, v8, s[12:15], s27 offen offset:{j*256} sc1', 'ssq')), DMAC)
    place_mem(o, frac(4, 0.0), frac(4, 0.7))
    if HSEN:
        near(frac(2, 0.5), DMAC, lambda: (chk_issue(26, V_CK, 'c3', 96), xok.__setitem__('c3', 1)))
        near(frac(3, 0.8), DMAC, lambda: (need(xok['c3'] == 1), chk_verify(26, V_CK, 'c3', 96, 2), xok.__setitem__('c3', 2)))
    o = COps(a)
    o.f(lambda: a.wait(vm='ssq'))
    for j in range(1, NSSQ): o.e(f'v_add_f32 v{V_T}, v{V_T}, v{V_T+j}')
    o.e(f'v_mov_b32 v{V_T+1}, {hexf(1e-5)}\nv_fmac_f32 v{V_T+1}, {hexf(1.0/576)}, v{V_T}\nv_and_b32 v{V_T+2}, 15, v9\nv_lshlrev_b32 v{V_T+2}, 2, v{V_T+2}')
    o.f(lambda: a(f's_lshl_b32 s23, s55, 7\nv_add_u32 v{V_T+2}, s23, v{V_T+2}'), 4)
    o.e(f'v_xor_b32 v{V_T+3}, 128, v{V_T+2}')
    for pos in range(4): o.f(lambda pos=pos: a.lds(f'ds_bpermute_b32 v{V_IR+pos}, v{V_T+2+(pos>>1)}, v{V_T+1} offset:{64*(pos&1)}', 'bp'), LD)
    for q in range(5): o.f(lambda: None, 8)
    o.f(lambda: a.wait(lg='bp'))
    for mt in range(4): o.e(f'v_rsq_f32 v{V_T+4+mt}, v{V_IR+mt}')
    for mt in range(4): o.e(f'v_mul_f32 v{V_C0+mt}, {hexf(K0)}, v{V_T+4+mt}')
    for mt in range(4): o.e(f'v_mul_f32 v{V_T+8+mt}, v{V_T+4+mt}, v{V_T+4+mt}')
    for mt in range(4): o.e(f'v_mul_f32 v{V_C1+mt}, {hexf(0.044715)}, v{V_C0+mt}')
    for mt in range(4): o.e(f'v_mul_f32 v{V_C1+mt}, v{V_C1+mt}, v{V_T+8+mt}')
    fill(o, frac(5, 0.45), frac(6, 0.2))

    aw = {'pi': 0}; xsn = {}
    def gelu_ops(p, pi):
        o = COps(a); acc = PACC[p][pi]
        cb = 2048*LC[8 if p == 1 else 2*PG[p]]
        if pi != aw['pi']: o.e(f'v_xor_b32 v{V_ACTW}, 512, v{V_ACTW}'); aw['pi'] = pi
        if p == 1: o.f(lambda: a(f's_lshl_b32 s23, s55, 13\nv_subrev_u32 v{V_ACTW}, s23, v{V_ACTW}'), 4)
        if p == 2 and pi == 0: o.f(lambda: a(f's_lshl_b32 s23, s55, 13\nv_add_u32 v{V_ACTW}, s23, v{V_ACTW}'), 4)
        if pi == 0: o.e(f's_add_u32 s31, s10, {cb}')
        for grp in range(4):
            mt = grp >> 1; c = 2*pi + mt
            if P.get('NOGELU'): o.e = lambda s: None
            g = [acc + 16*mt + 4*(grp & 1) + i for i in range(4)]
            u = [x + 8 for x in g]
            oo = V_T + 16 + 4*mt + 2*(grp & 1)
            T = [V_T + 8*(grp & 1) + i for i in range(4)]
            Qr = [x + 4 for x in T]
            for i in range(4): o.e(f'v_mul_f32 v{T[i]}, v{g[i]}, v{g[i]}')
            for i in range(4): o.e(f'v_fma_f32 v{T[i]}, v{T[i]}, v{V_C1+c}, v{V_C0+c}')
            for i in range(4): o.e(f'v_mul_f32 v{T[i]}, v{T[i]}, v{g[i]}')
            for i in range(4): o.e(f'v_exp_f32 v{T[i]}, v{T[i]}')
            for i in range(4): o.e(f'v_mul_f32 v{Qr[i]}, v{g[i]}, v{u[i]}')
            for i in range(4): o.e(f'v_fma_f32 v{T[i]}, v{T[i]}, v{V_IR+c}, v{V_IR+c}')
            for i in range(4): o.e(f'v_rcp_f32 v{T[i]}, v{T[i]}')
            for i in range(4): o.e(f'v_mul_f32 v{Qr[i]}, v{Qr[i]}, v{T[i]}')
            o.e(f'v_cvt_pk_bf16_f32 v{oo}, v{Qr[0]}, v{Qr[1]}\nv_cvt_pk_bf16_f32 v{oo+1}, v{Qr[2]}, v{Qr[3]}')
            if grp & 1:
                t1 = f'ds_write_b128 v{V_ACTW}, {vr(V_T+16+4*mt)} offset:{cb+256*mt}'
                t2 = f'buffer_store_dwordx4 {vr(V_T+16+4*mt)}, v{V_ACTW}, s[12:15], s31 offen offset:{256*mt} sc1'
                o.f(lambda t1=t1: (awn.__setitem__(p, awn[p]+1), a.lds(t1, ('aw', p))), 8, t1)
                o.f(lambda t2=t2: (xsn.__setitem__(p, xsn.get(p, 0)+1), a.vmem(t2, ('xs', p))), 8, t2)
        return o
    pH, p1, p2, p3 = pstart[1:5]
    def xflag(p, ck):
        def f():
            assert all(xsn.get(q) == (2 if q == 1 else 4) for q in range(p+1))
            assert ck == 0 or 'clr' not in a.vm
            a.wait(vm=[('xs', p)]); a(f's_add_u32 s23, s52, {256*ck}'); flag_store0(23)
        return f
    def xchk_i(ck):
        def f():
            assert xok['v'] == ck-1
            a(f's_add_u32 s26, s53, {256*ck}'); chk_issue(26, V_CK, ('cx', ck), 98); xok['i'] = ck
        return f
    def xchk_v(ck):
        def f():
            assert xok['i'] == ck
            chk_verify(26, V_CK, ('cx', ck), 98, 1); xok['v'] = ck
        return f
    o = COps(a)
    o.e(f"""s_and_b32 s23, s17, 1
    s_xor_b32 s27, s23, s55
    s_lshl_b32 s23, s23, 9
    v_xor_b32 v{V_B2}, s23, v{V_B2}
    v_xor_b32 v{V_B2x}, 512, v{V_B2}
    v_add_u32 v{V_B1}, 0x10000, v{V_B2}
    v_add_u32 v{V_B1x}, 0x10000, v{V_B2x}""")
    fill(o, frac(p2, 0.0), frac(p2, 0.2))
    o = COps(a)
    o.e(f"""v_mov_b32 v244, -1
    v_mov_b32 v245, -1
    v_mov_b32 v246, -1
    v_mov_b32 v247, -1
    s_lshl_b32 s26, s16, 12
    s_add_u32 s26, s26, s10
    s_add_u32 s26, s26, {2048*28}
    s_lshl_b32 s25, s18, 1
    s_add_u32 s25, s25, s19
    s_mul_i32 s25, s25, 9
    s_lshl_b32 s25, s25, 3
    s_add_u32 s25, s25, s17
    s_lshl_b32 s25, s25, 2
    s_add_u32 s25, s25, s16
    s_lshl_b32 s25, s25, 11
    s_add_u32 s25, s25, {WS_P}
    s_add_u32 s27, s17, 6
    s_and_b32 s27, s27, 6
    s_lshl_b32 s27, s27, 16
    s_add_u32 s100, s25, s27
    s_add_u32 s101, s100, 65536
    s_xor_b32 s27, s17, 1
    s_lshl_b32 s27, s27, 16
    s_add_u32 s25, s25, s27""")
    fill(o, frac(p1, 0.0), frac(p1, 0.3))
    cl = [(V_L16, 26, 1024*q) for q in range(4)] + [(V_L16, sr, off) for sr in (25, 100, 101) for off in (0, 1024)]
    for q, (vo, sr, off) in enumerate(cl):
        near(dmaend[p1 + (q*6)//10] + 5*(q & 1), DMAC, lambda vo=vo, sr=sr, off=off: a.vmem(f'buffer_store_dwordx4 v[244:247], v{vo}, s[12:15], s{sr} offen offset:{off} sc1', 'clr'))
    assert dmaend[p1] >= frac(p1, 0.3) and dmaend[p1+5] + 13 < frac(p2, 0.0)
    near(frac(p2+2, 0.5), DMAC, xflag(1, 0))
    near(frac(p2+5, 0.5), DMAC, xchk_i(0))
    put([(8, xchk_v(0))] + bread2(0) + bread2(1) + bread2(2), frac(p3+1, 0.0), frac(p3+4, 0.1))
    near(frac(p3+1, P.get('X2', 0.7)), DMAC, xflag(2, 1))
    near(frac(p3+3, 0.3), DMAC, xchk_i(1))
    put([(8, xchk_v(1))] + bread2(3) + bread2(4), frac(p3+4, 0.2), frac(G2, 0.5))
    put(bread2(5) + bread2(6) + bread2(7) + bread2(8), frac(p3+3, 0.05), frac(p3+4, 0.7))
    put(bread2(9), frac(p3+5, 0.05), frac(p3+5, 0.5))
    put(bread2(10) + bread2(11), frac(G2+1, 0.0), frac(G2+1, 0.6))
    near(frac(G2, P.get('X3', 0.8)), DMAC, xflag(3, 2))
    near(frac(G2+1, 0.7), DMAC, xchk_i(2))
    put([(8, xchk_v(2))] + bread2(12) + bread2(13), frac(G2+2, 0.3), frac(G2+2, 0.75))
    late = bread2(16) + bread2(17)
    place_mem(late, frac(SL, 0) - P.get('LL', 80), frac(SL, 0) - P.get('LL', 80) + 24)
    for x, op in enumerate(y for z in zip(bread2(14), bread2(15)) for y in z): at(bpos[G2+3] + 2*x, *op)
    o = COps(a)
    o.f(lambda: a.wait(vm=[('b', 71)])); o.e(P['maxchain'](BX, 32, V_T))
    fill(o, frac(SL, 0)-16, frac(SL, 0)-1)
    at(frac(SL, 0.0), 0, lambda: P['sentinel'](BX, 32, ('b', 71), lambda: [g() for _, g in late], V_T, None, True))
    o = COps(a)
    o.e(f"""s_lshl_b32 s23, s18, 1
    s_add_u32 s23, s23, s19
    s_mul_i32 s20, s23, {9*65536}
    s_add_u32 s20, s20, {WS_P}
    s_mul_i32 s21, s23, {9*2048}
    s_add_u32 s21, s21, {FL4}
    s_lshl_b32 s23, s16, 11
    s_add_u32 s40, s20, s23
    s_lshl_b32 s23, s16, 9
    s_add_u32 s41, s21, s23
    s_lshl_b32 s23, s17, 13
    s_add_u32 s42, s40, s23
    s_add_u32 s20, s20, s23
    s_lshl_b32 s23, s17, 6
    s_add_u32 s44, s41, s23
    s_add_u32 s21, s21, s23
    s_lshl_b32 s23, s54, 1
    s_add_u32 s23, s23, s27
    s_lshl_b32 s45, s23, 11
    s_add_u32 s20, s20, s45
    s_add_u32 s20, s20, {8*65536}
    s_lshl_b32 s45, s23, 9
    s_add_u32 s21, s21, s45
    s_add_u32 s21, s21, {8*2048}""")
    fill(o, frac(G2+2, 0.8), frac(G2+3, 0.5))
    ocnt = {'n': 0}; stn = {}
    def owner(g, pos, dst, sh, base, hreg):
        if g == 'H': return f's_mov_b32 s{dst}, s{hreg}'
        t = (f's_xor_b32 s{dst}, s17, 1\n' if pos == 0 else f's_mov_b32 s{dst}, s17\n')
        if g != 3: t += f's_add_u32 s{dst}, s{dst}, {2*(g+1)}\ns_and_b32 s{dst}, s{dst}, 7\n'
        return t + f's_lshl_b32 s{dst}, s{dst}, {sh}\ns_add_u32 s{dst}, s{dst}, s{base}'
    def out_ops(g, pos):
        o = COps(a); acc = GACC[g] + 16*pos
        oo = V_T + 8*(ocnt['n'] % 2); ocnt['n'] += 1
        o.e(owner(g, pos, 31, 16, 42, 20))
        for hf in range(2):
            for i in range(4): o.e(f'v_cvt_pk_bf16_f32 v{oo+4*hf+i}, v{acc+8*hf+2*i}, v{acc+8*hf+2*i+1}')
            o.f(lambda hf=hf: (stn.__setitem__((g, pos), stn.get((g, pos), 0)+1), a.vmem(f'buffer_store_dwordx4 {vr(oo+4*hf)}, v{V_L16}, s[12:15], s31 offen offset:{hf*1024} sc1', ('st', g, pos))), 8)
        return o
    def oflag(g, pos):
        def f():
            assert stn.get((g, pos)) == 2
            a.wait(vm=[('st', g, pos)]); a(owner(g, pos, 23, 11, 44, 21)); flag_store0(23)
        return (DMAC, f)
    fill(gelu_ops(0, 0), frac(pH, 0.25), frac(p1, 0.0), P.get('GWIN', 40))
    fill(gelu_ops(0, 1) + gelu_ops(1, 0), frac(p1, 0.0), frac(p2, 0.0), P.get('GWIN', 40))
    fill(gelu_ops(2, 0) + gelu_ops(2, 1), frac(p2, 0.2), frac(p2+5, 0.95), P.get('GWIN', 40))
    fill(gelu_ops(3, 0) + gelu_ops(3, 1), frac(p3, 0.2), frac(p3+5, P.get('GE3', 0.95)), P.get('GWIN', 40))
    fill(gelu_ops(4, 0) + gelu_ops(4, 1), frac(G2, 0.2), frac(G2+P.get('GE4', 2), P.get('GE4f', 0.3)), P.get('GWIN', 40))
    if P.get('OS', 0) == 0:
        fill(out_ops(0, 0) + out_ops(0, 1) + out_ops('H', 0), frac(SB, 0.2), frac(SB, 0.95))
        put([oflag(0, 0), oflag(0, 1), oflag('H', 0)], frac(SCn+1, 0.0), frac(SCn+1, 0.28))
        fill(out_ops(1, 0) + out_ops(1, 1), frac(SCn, 0.22), frac(SCn, 0.7))
        put([oflag(1, 0), oflag(1, 1)], frac(SCn+2, 0.78), frac(SCn+2, 0.95))
    else:
        put(out_ops(0, 0) + out_ops(0, 1) + out_ops('H', 0), frac(SB, 0.2), frac(SB+1, 0.95))
        put(out_ops(1, 0) + out_ops(1, 1), frac(SCn, 0.22), frac(SCn+1, 0.25))
        put([oflag(0, 0), oflag(0, 1), oflag('H', 0)], frac(SCn+2, 0.78), frac(SCn+2, 0.98))
        put([oflag(1, 0), oflag(1, 1)], frac(SD+P['OS'], 0.1), frac(SD+P['OS'], 0.4))
    fill(out_ops(2, 0) + out_ops(2, 1), frac(SD, 0.5), frac(SD+1, 0.5))
    fill(out_ops(3, 0), frac(SO, 0.35), frac(SO, 0.7))
    RES = V_T+16; MU = 10; CS = 14; CR = 13
    V_OUT, V_OUTC, V_CL = V_B1, V_B1x, 246
    o = COps(a)
    o.e(f"""s_lshl_b32 s23, s18, 1
    s_add_u32 s23, s23, s54
    s_mul_i32 s30, s23, 73728
    s_add_u32 s30, s30, {WS_HC}
    s_lshl_b32 s22, s23, 8
    s_add_u32 s22, s22, {WS_MU}
    s_mul_i32 s10, s23, 2304
    s_xor_b32 s27, s27, 1
    s_lshl_b32 s23, s55, 6
    s_add_u32 s52, s23, s29
    v_and_b32 v16, 15, v9
    v_lshrrev_b32 v17, 4, v9
    v_lshlrev_b32 v18, 10, v17
    v_lshl_add_u32 v18, v16, 4, v18
    v_lshlrev_b32 v8, 2, v16
    s_lshl_b32 s23, s52, 6
    s_add_u32 s23, s23, s30
    s_lshl_b32 s25, s27, 9
    s_add_u32 s23, s23, s25""")
    for hf in range(2): o.f(lambda hf=hf: a.vmem(f'buffer_load_dwordx4 {vr(RES+4*hf)}, v18, s[12:15], s23 offen offset:{hf*256} sc1', 'res'), DMAC)
    o.e(f's_lshl_b32 s25, s27, 7\ns_add_u32 s23, s22, s25')
    for hf in range(2): o.f(lambda hf=hf: a.vmem(f'buffer_load_dword v{MU+hf}, v8, s[12:15], s23 offen offset:{64*hf} sc1', 'res'), DMAC)
    o.e(f"""v_and_b32 v19, 3, v9
    v_bfe_u32 v20, v9, 2, 2
    v_lshlrev_b32 v8, 2, v19
    s_lshl_b32 s25, s55, 7
    s_add_u32 s23, s22, s25
    s_lshl_b32 s25, s17, 4
    s_add_u32 s23, s23, s25""")
    o.f(lambda: a.vmem(f'buffer_load_dword v{MU+2}, v8, s[12:15], s23 offen sc1', 'res'), DMAC)
    o.e(f"""v_lshlrev_b32 v18, 10, v20
    v_lshl_add_u32 v18, v19, 4, v18
    v_lshl_add_u32 v18, v17, 2, v18
    s_lshl_b32 s23, s9, 6
    s_add_u32 s23, s23, s30
    s_lshl_b32 s25, s55, 9
    s_add_u32 s23, s23, s25
    s_lshl_b32 s25, s17, 6
    s_add_u32 s23, s23, s25""")
    o.f(lambda: a.vmem(f'buffer_load_dword v{CR}, v18, s[12:15], s23 offen sc1', 'res'), DMAC)
    o.e(f"""v_lshlrev_b32 v{V_CL}, 13, v17
    v_lshl_add_u32 v{V_CL}, v20, 8, v{V_CL}
    v_lshl_add_u32 v{V_CL}, v19, 4, v{V_CL}
    s_lshr_b32 s25, s17, 2
    s_lshl_b32 s25, s25, 10
    s_and_b32 s23, s17, 3
    s_lshl_b32 s23, s23, 6
    s_add_u32 s25, s25, s23
    s_add_u32 s11, s40, s25
    s_add_u32 s11, s11, {8*65536}
    s_mov_b32 s23, 73728
    v_mul_lo_u32 v{V_OUT}, v16, s23
    v_lshl_add_u32 v{V_OUT}, v17, 4, v{V_OUT}
    v_mul_lo_u32 v{V_OUTC}, v19, s23
    v_lshl_add_u32 v{V_OUTC}, v20, 4, v{V_OUTC}
    v_lshl_add_u32 v{V_OUTC}, v17, 2, v{V_OUTC}
    s_mul_i32 s23, s27, 1152
    s_add_u32 s52, s52, s23
    s_add_u32 s52, s52, s10
    s_mul_i32 s23, s55, 1152
    s_add_u32 s53, s23, s10
    s_add_u32 s53, s53, s9
    s_mul_i32 s23, s17, {4*73728}
    s_add_u32 s53, s53, s23
    s_add_u32 s30, s41, {8*2048}
    s_lshl_b32 s23, s17, 16
    s_add_u32 s40, s40, s23
    s_lshl_b32 s23, s17, 11
    s_add_u32 s41, s41, s23
    s_and_b32 s23, s17, 6
    s_lshl_b32 s25, 0x0303, s23
    s_lshr_b32 s96, s25, 2
    s_and_b32 s96, s96, 0xff
    s_mov_b32 s97, 0
    s_lshr_b32 s98, s25, 4
    s_and_b32 s98, s98, 0xff
    s_or_b32 s96, s96, s98
    s_lshr_b32 s98, s25, 6
    s_and_b32 s98, s98, 0xff
    s_mov_b32 s99, 0
    s_mov_b32 s100, 0x3f80
    s_mov_b32 s101, 0x3f800000
    s_mov_b64 s[46:47], 0xff""")
    fill(o, frac(SCn+1, 0.3), frac(SCn+2, 0.75))
    def accum(o, dst, src, n, plain=False):
        for i in range(n):
            if plain:
                o.e(f'v_lshlrev_b32 v{V_B2}, 16, v{src+i}\nv_and_b32 v{V_ACTW}, 0xffff0000, v{src+i}\nv_add_f32 v{dst+2*i}, v{V_B2}, v{plain}\nv_add_f32 v{dst+2*i+1}, v{V_ACTW}, v{plain}')
                continue
            o.e(f'v_dot2c_f32_bf16 v{dst+2*i}, s100, v{src+i}\nv_dot2c_f32_bf16 v{dst+2*i+1}, s101, v{src+i}')
    def pops(x, reg):
        o = COps(a)
        if x == 1: o.e('s_xor_b32 s23, s17, 1')
        else: o.e(f's_and_b32 s23, s17, 6\ns_add_u32 s23, s23, {x}\ns_and_b32 s23, s23, 7')
        o.e('s_lshl_b32 s23, s23, 13\ns_add_u32 s23, s23, s40')
        for hf in range(2):
            o.f(lambda hf=hf: a.vmem(f'buffer_load_dwordx4 {vr(reg+4*hf)}, v{V_L16}, s[12:15], s23 offen offset:{hf*1024} sc1', ('p', x)), DMAC)
        return o
    def pload(x, reg):
        for _, g in pops(x, reg): g()
    SUM = Qa[2]+16; CL = Qa[2]; PL = Qa[3]
    o = COps(a)
    o.f(lambda: a.wait(vm='res'))
    accum(o, SUM, RES, 4, MU); accum(o, SUM+8, RES+4, 4, MU+1)
    accum(o, CS, CR, 1, MU+2)
    for i in range(8): o.e(f'v_mov_b32 v{CL+8+i}, 0')
    fill(o, frac(SD+1, 0.55), frac(SO, 0.3))
    PD = Qa[0]
    put([(DMAC, lambda: chk_issue(41, V_CK, 'cA', 96)), (DMAC, lambda: chk_issue(30, 244, 'cC', 46))], frac(SO, P.get('CI', 0.0)), frac(SO, P.get('CI', 0.0))+4)
    o = COps(a)
    o.f(lambda: chk_verify(41, V_CK, 'cA', 96, 1), 8)
    for n, x in enumerate((6, 7, 4, 5)): o += pops(x, PL+8*n)
    o.f(lambda: chk_verify(30, 244, 'cC', 46, 1), 8)
    for p in range(2):
        o.f(lambda p=p: (a.vmem(f'buffer_load_dwordx4 {vr(CL+4*p)}, v{V_CL}, s[12:15], s11 offen sc1', 'cl'), a('s_add_u32 s11, s11, 32768')), DMAC)
    o += pops(2, PD+8) + pops(3, PD+16)
    put(o, frac(SO+1, P.get('CV', 0.6)), frac(SO+2, 0.95))
    if P.get('SHOW'): print('load', load); print('leads', leads); print('bpos', [srange[S][0]-bpos[S] for S in range(NS+3)]); print([(S, slotb[S]//1024, rel[S]) for S in range(NS)])
    for i in range(NM):
        for f in slots[i]: f()
        S, key, bi, mk = mfs[i]
        if diag and P.get('ST'):
            for q, SS in enumerate(P['ST']):
                if i == srange[SS][0]: stamp(a, 1+q, True)
        if diag and P.get('RT'):
            r0, r1 = (9, 21) if P['RT'] == 1 else P['RT']
            if i == srange[r0][0]: a('s_memtime s[62:63]\ns_memrealtime s[64:65]')
            if i == srange[r1][0]: a('s_memtime s[66:67]\ns_memrealtime s[68:69]')
        if diag and i == srange[6][0]: stamp(a, 10, True)
        if diag and i == srange[G2][0]: stamp(a, 11, True)
        if i == srange[G2][0]: P['mark']('g2')
        if i == srange[6][0]: P['mark']('f1')
        assert bl.get(bi) == (1 if S < G2 else 2), (i, S, bi)
        a.wait(vm=[('b', bi)], lg=[('f', k) for k in (grp_of[key] if GW and S else [key])] + [('b', bi)])
        a(mk(vr(FR + 4*(fid[key] % NFR))))
    for f in slots[NM]: f()
    stamp(a, 12, diag); P['mark']('mend')
    pload(1, PD)
    o = COps(a)
    OWN = GACC[3]+16
    for n, x in enumerate((6, 7, 4, 5)):
        o.f(lambda x=x: a.wait(vm=[('p', x)])); accum(o, SUM, PL+8*n, 8)
    o.f(lambda: a.wait(vm='cl'))
    C8 = CL+8
    for p in range(2): accum(o, C8, CL+4*p, 4)
    for i in range(16): o.e(f'v_add_f32 v{SUM+i}, v{SUM+i}, v{OWN+i}')
    for i in range(4): o.e(f'v_permlane32_swap_b32 v{C8+i}, v{C8+4+i}')
    for i in range(4): o.e(f'v_add_f32 v{C8+i}, v{C8+i}, v{C8+4+i}')
    o.e('s_nop 1')
    for i in range(2): o.e(f'v_permlane16_swap_b32 v{C8+i}, v{C8+2+i}')
    o.e('s_nop 1')
    for i in range(2): o.e(f'v_add_f32 v{CS+i}, v{CS+i}, v{C8+i}')
    for i in range(2): o.e(f'v_add_f32 v{CS+i}, v{CS+i}, v{C8+2+i}')
    o.e(f'v_cvt_pk_bf16_f32 v{CR}, v{CS}, v{CS+1}')
    for _, g in o: g()
    a.vmem(f'buffer_store_dword v{CR}, v{V_OUTC}, s[32:35], s53 offen', 'out')
    a(f's_add_u32 s53, s52, {16*73728}')
    P['sentinel'](PD, 24, ('p', 1), lambda: (pload(2, PD+8), pload(3, PD+16), pload(1, PD)), V_T)
    stamp(a, 13, diag)
    o = COps(a)
    for hf in range(2):
        for n in range(3): accum(o, SUM+8*hf, PD+8*n+4*hf, 4)
    for _, g in o: g()
    for hf in range(2):
        if hf: a('s_nop 0')
        for i in range(4): a(f'v_cvt_pk_bf16_f32 v{RES+4*hf+i}, v{SUM+8*hf+2*i}, v{SUM+8*hf+2*i+1}')
        a.vmem(f'buffer_store_dwordx4 {vr(RES+4*hf)}, v{V_OUT}, s[32:35], s{52+hf} offen', 'out')
```

```python
from asmlib import *
from layout import *
import math

KNAME = 'sequential_preLN__spectral_gfnet__geglu_ffn__prompt_kernel'
FLB = 0x2E00000
FL1 = FLB
FL2 = FL1 + 9*4096
FL3 = FL2 + 9*4096
FLW = FL3 + 32*2048
FLC = FLW
FLC2 = FLW + 16384
FLCx = FLW + 24*4096
FL4 = FLCx + 4096
TKC = 0x2F80000
FLX = 0x2F00000
WS_WP = WS_H
LDS_G = 36864
LDS_HS = 147456
LDS_ST = 159744
LDS_SY = LDS_ST + 1536
LDS_ID = LDS_SY + 16
LDS_TOTAL = LDS_SY + 64
LDS_W = 110592
LDS_BN = 147456
WS_JUNK = 0x09C0000
TOK = 56
SPIN = 50000

def stamp(a, idx, on):
    if on: a(f's_memtime s[{60+2*idx}:{61+2*idx}]')
def rstamp(a, idx, on):
    if on: a(f's_memrealtime s[{60+2*idx}:{61+2*idx}]')

def srd(a, d, lo, size):
    a(f's_mov_b32 s{d}, s{lo}\ns_mov_b32 s{d+1}, s{lo+1}\ns_mov_b32 s{d+2}, {size}\ns_mov_b32 s{d+3}, 0x20000')

def spread(a, mf, fillers, lo=0, hi=None):
    n = len(mf)
    if hi is None: hi = n
    span = max(hi - lo, 1); done = 0
    for i, m in enumerate(mf):
        m()
        if i >= lo:
            want = min(len(fillers), -(-len(fillers)*(i-lo+1)//span))
            while done < want:
                fillers[done](); done += 1
    while done < len(fillers):
        fillers[done](); done += 1

class Ops(list):
    def __init__(self, a): super().__init__(); self.a = a
    def e(self, s):
        for line in s.split('\n'):
            if line.strip(): self.append(lambda line=line: self.a(line))
    def f(self, fn): self.append(fn)

def gen_mega(diag=False, R=26, FPX=2, UP=12, RATE0=2, WSC='sc1', NOSHUF=False, SLEEP=0, FE=False, PACE=1, PRE=16, G1=18, G2S=False, NT='nt', G0=2, GPK=True, NTX='nt', NTW='', G1W=2, NTX2='', P128=4, PF=True, **kw):
    a = Asm()
    name = KNAME
    MK = kw.get('MK')
    _stamp = globals()['stamp']
    PROBE = kw.get('PROBE')
    def stamp(a_, idx, on):
        if MK is None or idx == 14: _stamp(a_, idx, on)
    def mark(nm):
        if diag and MK and nm in MK: _stamp(a, 1 + MK.index(nm), True)
        if PROBE == nm: a('s_memrealtime s[62:63]')
    lbl = {'n': 0}
    def L(p):
        lbl['n'] += 1; return f'L_{p}{lbl["n"]}'
    V_L8 = 250
    V_F0 = 251
    V_TK = 252
    V_MU = 254
    V_CK = 248

    def chk_ld(soff, vdst, smask):
        ld = f'buffer_load_dwordx2 {vr(vdst,2)}, v{V_L8}, s[12:15], s{soff} offen sc1'
        if smask is None: return ld
        return f's_mov_b64 exec, s[{smask}:{smask+1}]\n{ld}\ns_mov_b64 exec, -1'
    def chk_issue(soff, vdst, tag, smask=None):
        a(chk_ld(soff, vdst, smask)); a.vm.append(tag)
    def chk_verify(soff, vdst, tag, smask, sleep=None):
        a.wait(vm=[tag])
        ok, lp = L('ok'), L('lp')
        test = f'v_cmp_eq_u64 vcc, s[{TOK}:{TOK+1}], {vr(vdst,2)}\ns_nop 1\n'
        test += (f's_orn2_b64 vcc, vcc, s[{smask}:{smask+1}]\n' if smask is not None else '') + 's_cmp_eq_u64 vcc, -1\n'
        a(test + f's_cbranch_scc1 {ok}\ns_mov_b32 s59, {SPIN}\n{lp}:')
        sl = SLEEP if sleep is None else sleep
        if sl: a(f's_sleep {sl}')
        a(chk_ld(soff, vdst, smask) + f'\ns_waitcnt vmcnt(0)\ns_sub_u32 s59, s59, 1\ns_cbranch_scc1 {ok}')
        a(test + f's_cbranch_scc0 {lp}\n{ok}:')
    def flag_store(soff, vt=None, vf=None):
        a.vmem(f'buffer_store_dwordx2 {vr(vt or V_TK,2)}, v{vf or V_F0}, s[12:15], s{soff} offen sc1', 'fl')
    def tok_issue(off=0):
        a.vmem(f'buffer_load_dwordx2 {vr(V_TK,2)}, off, s[36:39], 0 offset:{off} sc1', 'tok')
    def tok_verify(off=0):
        a.wait(vm='tok')
        ok, lp = L('ok'), L('lp')
        rd = f'v_readfirstlane_b32 s{TOK}, v{V_TK}\nv_readfirstlane_b32 s{TOK+1}, v{V_TK+1}\ns_nop 1\ns_cmp_lg_u32 s{TOK}, 0\n'
        a(rd + f's_cbranch_scc1 {ok}\ns_mov_b32 s59, {SPIN}\n{lp}:')
        a(f's_sleep 4\nbuffer_load_dwordx2 {vr(V_TK,2)}, off, s[36:39], 0 offset:{off} sc1\ns_waitcnt vmcnt(0)\ns_sub_u32 s59, s59, 1\ns_cbranch_scc1 {ok}')
        a(rd + f's_cbranch_scc0 {lp}\n{ok}:')
    def lds_arrive(k, vt):
        a.waitall(vm=False)
        a(f'v_mov_b32 v{vt}, {LDS_SY+4*k}\nv_mov_b32 v{vt+1}, 1')
        a.lds(f'ds_add_u32 v{vt}, v{vt+1}', 'arr')
    def lds_wait(k, vt, n=192, slp=False):
        lp = L('ls')
        a(f'v_mov_b32 v{vt}, {LDS_SY+4*k}\ns_branch {lp}b\n{lp}:\ns_sleep 1\n{lp}b:\nds_read_b32 v{vt+1}, v{vt}\ns_waitcnt lgkmcnt(0)\nv_readfirstlane_b32 s59, v{vt+1}\ns_nop 1\ns_cmp_ge_u32 s59, {n}\ns_cbranch_scc0 {lp}' if slp else
          f'v_mov_b32 v{vt}, {LDS_SY+4*k}\n{lp}:\nds_read_b32 v{vt+1}, v{vt}\ns_waitcnt lgkmcnt(0)\nv_readfirstlane_b32 s59, v{vt+1}\ns_nop 1\ns_cmp_ge_u32 s59, {n}\ns_cbranch_scc0 {lp}')
        a.lg = []

    a.raw(kernel_header(name))
    a(f'''s_cmp_ge_u32 s2, 256
    s_cbranch_scc1 L_end
    s_getpc_b64 s[44:45]
    L_pc:
    s_load_dwordx2 s[4:5], s[0:1], 0
    s_load_dwordx4 s[48:51], s[0:1], 8
    s_load_dwordx4 s[36:39], s[0:1], 64''')
    if PROBE: a('s_memrealtime s[60:61]\ns_mov_b64 s[62:63], 0')
    if diag:
        for i in range(1, 16): a(f's_mov_b64 s[{60+2*i}:{61+2*i}], 0')
        a('s_memtime s[60:61]\ns_memrealtime s[92:93]')
    a(f'''v_lshrrev_b32 v8, 6, v0
    v_and_b32 v9, 63, v0
    v_readfirstlane_b32 s16, v8
    v_lshlrev_b32 v{V_L8}, 6, v9
    s_cmp_ge_u32 s2, 64
    s_cbranch_scc1 L_fftwg
    s_mov_b32 s46, L_codeend - L_pc
    s_mov_b32 s47, 0x20000
    s_lshl_b32 s23, s16, 13
    v_lshl_add_u32 v11, v9, 7, s23
    buffer_load_dword v254, v11, s[44:47], 0 offen {kw.get('CF', '')}
    s_branch L_pure
    L_fftwg:
    v_mov_b32 v10, {LDS_SY}
    v_mov_b32 v12, 0
    v_mov_b32 v13, 0
    v_mov_b32 v14, 0
    v_mov_b32 v15, 0
    ds_write_b128 v10, v[12:15]
    s_and_b32 s33, s2, 7
    s_lshr_b32 s34, s2, 3
    s_sub_u32 s34, s34, 8
    s_cmp_eq_u32 s16, 3
    s_cbranch_scc1 L_he''')
    def ws_srd():
        a(f'''s_waitcnt lgkmcnt(0)
        s_mov_b32 s12, s38
        s_mov_b32 s13, s39
        s_mov_b32 s14, {WS_SIZE}
        s_mov_b32 s15, 0x20000
        s_mov_b32 s38, 256
        s_mov_b32 s39, 0x20000
        v_min_u32 v{V_F0}, 1, v9
        v_lshlrev_b32 v{V_F0}, 31, v{V_F0}''')

    def ticket(cap, off, base):
        lp = L('tk')
        a(f'''s_getreg_b32 s30, hwreg(HW_REG_XCC_ID)
        s_mov_b32 s28, 7
        {lp}:
        s_and_b32 s30, s30, 7
        s_lshl_b32 s31, s30, 7
        s_add_u32 s31, s31, {TKC+off}
        s_mov_b32 s35, 1
        s_atomic_add s35, s[12:13], s31 glc
        s_waitcnt lgkmcnt(0)
        s_add_u32 s30, s30, 1
        s_cmp_lt_u32 s35, {cap}
        s_cbranch_scc1 {lp}x
        s_sub_u32 s28, s28, 1
        s_cbranch_scc0 {lp}
        s_lshr_b32 s35, s2, 3
        s_and_b32 s30, s2, 7
        s_add_u32 s30, s30, 1
        {lp}x:
        s_sub_u32 s30, s30, 1
        s_add_u32 s35, s35, {base}
        s_lshl_b32 s35, s35, 3
        s_add_u32 s35, s35, s30
        v_mov_b32 v10, {LDS_ID}
        v_mov_b32 v11, s35
        ds_write_b32 v10, v11
        s_waitcnt lgkmcnt(0)''')
    def get_id(vt, tok=False):
        a(f'v_mov_b32 v{vt}, {LDS_ID}')
        if tok: a(f'ds_read_b64 {vr(V_TK,2)}, v{vt} offset:8')
        a(f'ds_read_b32 v{vt}, v{vt}\ns_waitcnt lgkmcnt(0)\nv_readfirstlane_b32 s35, v{vt}')
        if tok: a(f'v_readfirstlane_b32 s{TOK}, v{V_TK}\nv_readfirstlane_b32 s{TOK+1}, v{V_TK+1}')
        a('s_nop 1')
        a.lg = []
    XV = 16; TB = 64; ACC = [136, 168]; XB = 200; TW = 216; ST = 222; TMP = 230
    def xreg(t, s): return vr(36*t + 4*s, 4, 'a')
    a(f'''s_mul_i32 s17, s34, 43
    s_lshr_b32 s17, s17, 7
    s_mul_i32 s18, s17, 3
    s_sub_u32 s18, s34, s18
    s_lshl_b32 s23, s33, 3
    s_add_u32 s17, s17, s23
    v_and_b32 v1, 31, v9
    v_lshrrev_b32 v2, 5, v9
    v_lshrrev_b32 v3, 2, v1
    s_mov_b32 s23, 73728
    v_mul_lo_u32 v4, v3, s23
    v_and_b32 v5, 3, v9
    v_lshl_add_u32 v4, v5, 4, v4
    v_lshl_add_u32 v4, v2, 6, v4
    s_mul_i32 s20, s17, 1152''')
    a('s_mul_i32 s23, s16, 384\ns_add_u32 s25, s20, s23')
    def rot_setup():
        a('s_mul_i32 s19, s18, 3\ns_add_u32 s19, s19, s16')
        for g in range(3):
            a(f'''s_add_u32 s23, s16, {g}
            s_cmp_ge_u32 s23, 3
            s_cselect_b32 s24, 3, 0
            s_sub_u32 s{28+g}, s23, s24''')
    V_L16 = 247
    def xload(t, s):
        a.lds(f'ds_read_b128 {xreg(t,s)}, v{V_L16} offset:{(s*4+t)*1024}', ('x', t, s))
    a(f's_mov_b32 s10, {NB}\ns_mov_b32 s11, 0x20000\ns_mul_i32 s24, s16, 12288')
    mark('t0'); a('s_waitcnt lgkmcnt(0)\ns_mov_b32 s8, s4\ns_mov_b32 s9, s5'); mark('karg')
    for t in range(4):
        for q in range(3):
            a(f's_add_u32 m0, s24, {(q*4+t)*1024}\ns_add_u32 s23, s25, {t*8*73728+128*q}')
            a.vmem(f'buffer_load_dwordx4 v4, s[8:11], s23 offen {NTX} lds', ('xd', t))
    mark('xiss')
    a(f'''s_barrier
    s_branch L_p1
    L_he:
    s_waitcnt lgkmcnt(0)
    s_barrier
    s_branch L_help
''')
    if kw.get('PAD', 1): a.raw('.p2align 12')
    a('L_p1:')
    rot_setup()
    ws_srd()
    a(f'v_lshlrev_b32 v{V_L16}, 4, v9')
    a(f'''s_lshl_b32 s23, s19, 5
    s_add_u32 s23, s23, 1
    v_add_u32 v6, s23, v1
    v_cvt_f32_u32 v6, v6
    v_mul_f32 v7, {hexf(1.0/576)}, v6
    v_mul_f32 v10, {hexf(1.0/18)}, v6
    v_cvt_f32_u32 v11, v2''')
    PM = 'op_sel:[0,0] op_sel_hi:[0,1]'; PF_ = 'op_sel:[1,1,0] op_sel_hi:[1,0,1]'
    OFS = 136
    for q in range(4): a(f'v_mul_f32 v12, {hexf(q+0.5)}, v7\nv_cos_f32 v{OFS+2*q}, v12\nv_sin_f32 v{OFS+2*q+1}, v12')
    a(f'v_mul_f32 v7, {hexf(3.5)}, v7')
    E = lambda e: 152 + 2*e
    for s in range(9):
        a(f'''v_add_f32 v12, {hexf(2.0*s)}, v11
        v_mul_f32 v12, v12, v10
        v_fract_f32 v12, v12
        v_add_f32 v12, v12, v7
        v_cos_f32 v14, v12
        v_sin_f32 v15, v12
        s_nop 0''')
        for q in range(4): a(f'v_pk_mul_f32 {vr(E(4+q),2)}, {vr(OFS+2*q,2)}, v[14:15] {PM}')
        for q in range(4): a(f'v_pk_fma_f32 {vr(E(3-q),2)}, {vr(OFS+2*q,2)}, v[14:15], {vr(E(4+q),2)} {PF_} neg_hi:[1,0,0]')
        for q in range(4): a(f'v_pk_fma_f32 {vr(E(4+q),2)}, {vr(OFS+2*q,2)}, v[14:15], {vr(E(4+q),2)} {PF_} neg_lo:[1,0,0]')
        for e in range(0, 8, 2):
            a(f'v_cvt_pk_bf16_f32 v{TB+8*s+e//2}, v{E(e)}, v{E(e+1)}\nv_cvt_pk_bf16_f32 v{TB+8*s+4+e//2}, -v{E(e)+1}, -v{E(e+1)+1}')
    mark('tb7')
    SC = 2.0/(2048*576)
    ABR, ABI = 176, 192
    def p3_consts():
        a(f'''v_lshl_add_u32 v10, v1, 6, s17
        v_cvt_f32_u32 v10, v10
        v_mul_f32 v10, {hexf(1.0/2048)}, v10
        v_cvt_f32_u32 v11, v2
        v_mul_f32 v11, 4.0, v11
        v_mul_f32 v11, v11, v10
        v_mul_f32 v12, {hexf(5.0)}, v10''')
        for n in range(16):
            c = 222 + 4*(n & 1)
            a(f'''v_cos_f32 v{c}, v11
            v_sin_f32 v{c+1}, v11
            v_add_f32 v11, v11, v{10 if (n & 3) < 3 else 12}
            v_cvt_pk_bf16_f32 v{c+2}, v{c}, -v{c+1}
            v_cvt_pk_bf16_f32 v{c+3}, v{c+1}, v{c}
            v_accvgpr_write_b32 a{ABR+n}, v{c+2}
            v_accvgpr_write_b32 a{ABI+n}, v{c+3}''')
    goff = lambda n: 16*(n >> 3) + ((n >> 2) & 1) + 2*(n & 3)
    gpos = [n for n in range(16) if goff(n) > 11]
    gmir = {n: [q for q in range(16) if goff(q) == 23 - goff(n)][0] for n in gpos}
    def g_body(O, T, B, F, sink):
        for half in range(2):
            ns = gpos[4*half:4*half+4]
            for n in ns: a(f'v_pk_mul_f32 {vr(T+2*n,2)}, {vr(O+2*n,2)}, {vr(B,2)} {PM}')
            for n in ns: a(f'v_pk_fma_f32 {vr(T+2*gmir[n],2)}, {vr(O+2*n,2)}, {vr(B,2)}, {vr(T+2*n,2)} {PF_} neg_hi:[1,0,0]')
            for n in ns: a(f'v_pk_fma_f32 {vr(T+2*n,2)}, {vr(O+2*n,2)}, {vr(B,2)}, {vr(T+2*n,2)} {PF_} neg_lo:[1,0,0]')
            if half and F is not None: a(f'v_mul_f32 v{T+30}, v{T+30}, v{F}\nv_mul_f32 v{T+31}, v{T+31}, v{F}')
            for j in (gmir[ns[0]] >> 2, ns[0] >> 2): sink(j)
    def own_g():
        a(f'''v_and_b32 v10, 3, v9
        v_bfe_u32 v11, v9, 2, 1
        v_lshl_add_u32 v10, v11, 4, v10
        v_bfe_u32 v11, v9, 3, 2
        v_lshl_add_u32 v10, v11, 2, v10
        s_lshl_b32 s23, s19, 5
        v_add_u32 v10, s23, v10
        v_cvt_f32_u32 v10, v10
        v_mul_f32 v10, {hexf(1.0/576)}, v10
        s_mul_i32 s23, s30, 96
        v_lshl_add_u32 v11, v2, 3, s23
        v_cvt_f32_u32 v11, v11
        v_add_f32 v11, {hexf(12.5)}, v11
        v_cvt_f32_u32 v13, v2
        s_cmp_eq_u32 s30, 2
        s_cselect_b32 s23, -0.5, 0
        v_fma_f32 v13, v13, s23, 1.0''')
        for n in gpos: a(f'v_mul_f32 v12, {hexf(goff(n)-11.5)}, v10\nv_cos_f32 v{120+2*n}, v12\nv_sin_f32 v{121+2*n}, v12')
        for q in range(3):
            a(f'v_mul_f32 v12, v11, v10\nv_cos_f32 v14, v12\nv_sin_f32 v15, v12\nv_add_f32 v11, {hexf(32.0)}, v11')
            def sink(j, q=q):
                for n in range(4*j, 4*j+4): a(f'v_cvt_pk_bf16_f32 v{184+n}, v{152+2*n}, -v{153+2*n}')
                for n in range(4*j, 4*j+4): a(f'v_accvgpr_write_b32 a{96+16*q+n}, v{184+n}')
            g_body(120, 152, 14, 13 if q == 2 else None, sink)
    a(f'v_mul_f32 v12, {hexf(1.0/72)}, v6\nv_add_f32 v13, v12, v12\nv_add_f32 v14, v13, v12')
    for c in range(3):
        a(f'v_cos_f32 v{TW+2*c}, v{12+c}\nv_sin_f32 v{TW+2*c+1}, -v{12+c}')
    if kw.get('PC', 4) == 1: p3_consts()
    stamp(a, 1, diag); mark('tb')
    TE0 = kw.get('TE0', 1)
    pre_x = []
    a.raw('@@PREX@@')
    a.wait(vm=[('xd', 3)])
    a(f'v_mov_b32 v12, {LDS_SY}\nv_mov_b32 v13, 1')
    a.lds('ds_add_u32 v12, v13', 'arr')
    mark('dot')
    lds_wait(0, 12)
    for q in range(9): xload(0, q)
    mark('bar')

    def tile_mf(t):
        acc = ACC[t & 1]; mf = []
        for s in range(9):
            for cs in range(2):
                d = vr(acc+16*cs, 16)
                def f(s=s, cs=cs, d=d):
                    a.wait(lg=[('x', t, s)])
                    a(f'v_mfma_f32_32x32x16_bf16 {d}, {xreg(t,s)}, {vr(TB+8*s+4*cs)}, {"0" if s == 0 else d}')
                mf.append(f)
        return mf
    def combine(t):
        acc = ACC[t & 1]; o = Ops(a)
        for c in range(1, 4):
            tr, ti = TW+2*(c-1), TW+2*(c-1)+1
            for j in range(4):
                o.e(f'v_fmac_f32 v{acc+4*j}, v{tr}, v{acc+4*j+c}\nv_fmac_f32 v{acc+16+4*j}, v{tr}, v{acc+16+4*j+c}')
            for j in range(4):
                o.e(f'v_fma_f32 v{acc+4*j}, -v{ti}, v{acc+16+4*j+c}, v{acc+4*j}\nv_fmac_f32 v{acc+16+4*j}, v{ti}, v{acc+4*j+c}')
        for j in range(4): o.e(f'v_cvt_pk_bf16_f32 v{XB+4*t+j}, v{acc+4*j}, v{acc+16+4*j}')
        return o
    A1R, A1I, CSR = TMP, 48, 16
    def trig_ops():
        o = Ops(a)
        o.e(f'''v_lshl_add_u32 v12, v2, 6, s17
        v_mul_u32_u24 v12, v12, v1
        v_cvt_f32_u32 v12, v12
        v_mul_f32 v12, {hexf(1.0/2048)}, v12
        v_cvt_f32_u32 v13, v1
        v_mul_f32 v13, {hexf(1.0/16)}, v13''')
        for n in range(16): o.e(f'v_cos_f32 v{CSR+2*n}, v12\nv_sin_f32 v{CSR+2*n+1}, v12\nv_add_f32 v12, v12, v13')
        return o
    def rs_ops():
        o = Ops(a)
        o.f(lambda: lds_wait(3, 12, 64))
        o.e(f'v_lshlrev_b32 v12, 6, v2\nv_add_u32 v12, {LDS_ST}, v12\nv_lshlrev_b32 v13, 2, v1\nv_add_u32 v13, {LDS_ST+128}, v13')
        for q in range(4): o.f(lambda q=q: a.lds(f'ds_read_b128 {vr(A1I+4*q)}, v12 offset:{16*q}', 'rs'))
        o.f(lambda: a.lds(f'ds_read_b32 v{V_MU}, v13', 'rs'))
        return o
    def a1_ops(lo, hi):
        o = Ops(a)
        if lo == 0: o.f(lambda: a.wait(lg='rs'))
        for n in range(lo, hi): o.e(f'v_mul_f32 v{CSR+2*n}, v{CSR+2*n}, v{A1I+n}\nv_mul_f32 v{CSR+2*n+1}, v{CSR+2*n+1}, v{A1I+n}')
        for n in range(lo, hi): o.e(f'v_cvt_pk_bf16_f32 v{A1R+n}, v{CSR+2*n}, v{CSR+2*n+1}\nv_cvt_pk_bf16_f32 v{A1I+n}, -v{CSR+2*n+1}, v{CSR+2*n}')
        return o
    xl = lambda t: [lambda q=q: xload(t, q) for q in range(9)]
    if TE0:
        n0 = len(a.L)
        for f in trig_ops(): f()
        pre_x = a.L[n0:]; del a.L[n0:]
    k = a.L.index('@@PREX@@'); a.L[k:k+1] = pre_x
    pc = []
    if kw.get('PC', 4) == 4:
        n0 = len(a.L); p3_consts(); lines = a.L[n0:]; del a.L[n0:]
        pc = [lambda l=l: a.raw(l) for l in lines]
    PCS = kw.get('PCS', 70)
    spread(a, tile_mf(0), xl(1) + ([] if TE0 else trig_ops()) + pc[:PCS] + xl(2), 0); mark('m0')
    o1 = Ops(a)
    o1.e(f'''v_lshrrev_b32 v5, 3, v1
    v_lshlrev_b32 v5, 10, v5
    v_and_b32 v4, 7, v1
    v_lshl_add_u32 v5, v4, 6, v5
    v_lshl_add_u32 v5, v2, 5, v5
    s_lshr_b32 s23, s19, 1
    s_lshl_b32 s23, s23, 12
    s_and_b32 s24, s19, 1
    s_lshl_b32 s24, s24, 9
    s_add_u32 s23, s23, s24
    v_add_u32 v4, s23, v5
    s_add_u32 s24, s19, 9
    s_lshr_b32 s23, s24, 1
    s_lshl_b32 s23, s23, 12
    s_and_b32 s24, s24, 1
    s_lshl_b32 s24, s24, 9
    s_add_u32 s23, s23, s24
    v_add_u32 v5, s23, v5''')
    for q in range(4):
        o1.f(lambda q=q: a.lds(f'ds_read_b128 {vr(240+4*q,4,"a")}, v{4+(q>>1)} offset:{(q&1)*16}', 'x3'))
    spread(a, tile_mf(1), xl(3) + o1 + combine(0), 0); mark('m1')
    spread(a, tile_mf(2), pc[PCS:] + combine(1), 0 if pc else 4); mark('m2')
    c2 = combine(2)
    spread(a, tile_mf(3), rs_ops() + c2 + a1_ops(0, 8), 0); mark('m3')
    O = ACC[0]
    def st2(t):
        return [lambda: a(f'v_mfma_f32_32x32x16_bf16 {vr(O,16)}, {vr(A1R+4*t)}, {vr(XB+4*t)}, {"0" if t == 0 else vr(O,16)}'),
                lambda: a(f'v_mfma_f32_32x32x16_bf16 {vr(O+16,16)}, {vr(A1I+4*t)}, {vr(XB+4*t)}, {"0" if t == 0 else vr(O+16,16)}')]
    a('s_nop 1')
    m = st2(0) + st2(1)
    spread(a, m, a1_ops(8, 16), 0)
    c3 = combine(3)
    for f in c3[:20]: f()
    spread(a, st2(2), c3[20:], 0)
    a('s_nop 1')
    for f in st2(3): f()
    a(f'''s_mov_b32 s23, 294912
    v_mul_lo_u32 v12, v2, s23
    v_lshl_add_u32 v12, v1, 4, v12
    s_lshl_b32 s22, s19, 6
    s_add_u32 s22, s22, s17
    s_lshl_b32 s23, s22, 9
    s_add_u32 s23, s23, {WS_Z1}''')
    mark('s2'); lds_wait(2, 13, 64, True); mark('cc')
    a('s_nop 1')
    for j in range(4):
        for i in range(4): a(f'v_cvt_pk_bf16_f32 v{XB+4*j+i}, v{O+4*j+i}, v{O+16+4*j+i}')
        a.vmem(f'buffer_store_dwordx4 {vr(XB+4*j)}, v12, s[12:15], s23 offen sc1', 'st1')
        if j < 3: a(f's_add_u32 s23, s23, {2*294912}')
    stamp(a, 2, diag); mark('p1')

    if kw.get('PC', 4) == 3: p3_consts()
    if kw.get('OG', 2) == 1: own_g()
    Z = 16; WR = 32; WI = 48; XR = 64; XI = 80; Y = 96; AT = 112; TI = 32
    def areg(mt, v, sg): return AT + ((mt*2 + v)*4 + sg)*4
    a(f'''s_mul_i32 s24, s34, 3
    s_add_u32 s24, s24, s16
    s_lshr_b32 s20, s24, 3
    s_and_b32 s21, s24, 7
    v_and_b32 v3, 15, v9
    v_lshrrev_b32 v4, 4, v9
    v_mov_b32 v14, v{V_L16}
    v_lshlrev_b32 v8, 9, v4
    v_and_b32 v6, 3, v9
    v_lshl_add_u32 v8, v6, 5, v8
    v_and_b32 v6, 1, v9
    v_lshlrev_b32 v6, 1, v6
    v_sub_u32 v8, v8, v6
    v_bfe_u32 v6, v9, 2, 2
    v_lshl_add_u32 v8, v6, 1, v8
    s_lshl_b32 s23, s16, 3
    s_add_u32 s23, s23, {LDS_W + 2}
    v_add_u32 v8, s23, v8''')
    for i in range(32): a(f'v_mov_b32 v{WR+i}, 0')
    wrd = [(r, arr) for r in range(16) for arr in range(2)]
    ZP = kw.get('ZP', 16)
    a(f'''v_lshlrev_b32 v240, 11, v4
    v_lshl_add_u32 v240, v3, 2, v240
    s_mul_i32 s22, s33, 9
    s_add_u32 s22, s22, s20
    s_lshl_b32 s22, s22, 15
    s_lshl_b32 s23, s21, 6
    s_add_u32 s22, s22, s23
    s_add_u32 s22, s22, {WS_Z1}''')
    a('s_add_u32 s24, s22, 8192\ns_add_u32 s25, s22, 16384\ns_add_u32 s26, s22, 24576\ns_mov_b32 s27, s22')
    stamp(a, 3, diag)
    def zloads():
        for sg in range(4):
            for j in range(4):
                a.vmem(f'buffer_load_dword v{Z+4*sg+j}, v240, s[12:15], s{(27,24,25,26)[sg]} offen offset:{j*512} sc1', 'z')
    def maxchain(base, n, t0):
        t = f'v_max3_u32 v{t0}, v{base}, v{base+1}, v{base+2}\nv_max3_u32 v{t0+1}, v{base+3}, v{base+4}, v{base+5}\n'
        i = 6
        while i < n:
            t += f'v_max3_u32 v{t0+(i//2+1)%2}, v{t0+(i//2+1)%2}, v{base+i}, v{base+i+1}\n'; i += 2
        return t + f'v_max_u32 v{t0}, v{t0}, v{t0+1}\nv_cmp_eq_u32 vcc, -1, v{t0}\n'
    def sentinel(base, n, tag, reload, t0, after=None, pre=False):
        a.wait(vm=[tag], lg=[tag]); mark(('w', tag))
        ok, lp = L('ok'), L('lp')
        t = maxchain(base, n, t0) + 's_nop 1\ns_cmp_eq_u64 vcc, 0\n'
        a(('s_cmp_eq_u64 vcc, 0\n' if pre else t) + f's_cbranch_scc1 {ok}\ns_mov_b32 s59, {SPIN}\n{lp}:')
        vm0 = list(a.vm)
        reload()
        a.vm = vm0
        a(f's_waitcnt vmcnt(0)')
        if after:
            lg0 = list(a.lg); after(); a.lg = lg0; a('s_waitcnt lgkmcnt(0)')
        a(f's_sub_u32 s59, s59, 1\ns_cbranch_scc1 {ok}')
        a(t + f's_cbranch_scc0 {lp}\n{ok}:')
    a(f'''v_cvt_f32_u32 v5, v3
    v_mul_f32 v5, {hexf(1.0/64)}, v5
    v_cvt_f32_u32 v6, v4
    v_mul_f32 v6, 4.0, v6
    v_mul_f32 v6, v6, v5
    v_mul_f32 v7, {hexf(13.0)}, v5''')
    rot = lambda n, c, s: [(f'v{c}', f'v{s}'), (f'-v{s}', f'v{c}'), (f'-v{c}', f'-v{s}'), (f'v{s}', f'-v{c}')][n % 4]
    for sg in range(4):
        for j in range(4):
            if 4*sg+j == ZP: zloads()
            for (r, arr) in wrd[4*(4*sg+j):4*(4*sg+j)+4]:
                a.lds(f'ds_read_u16_d16_hi v{(WR,WI)[arr]+r}, v8 offset:{arr*8192+(r>>2)*2048+(r&3)*128}', 'w')
            c = 10 + 2*(j & 1)
            a(f'v_cos_f32 v{c}, v6\nv_sin_f32 v{c+1}, v6')
            a(f'v_add_f32 v6, v6, v{5 if j < 3 else 7}')
            for mt in range(4):
                for v in range(2):
                    p = rot(j*mt + v, c, c+1)
                    a(f'v_cvt_pk_bf16_f32 v{areg(mt,v,sg)+j}, {p[0]}, {p[1]}')
    mark('p2t')
    if ZP == 16: zloads()
    a(f'''s_mov_b32 s23, 36864
    v_lshrrev_b32 v6, 2, v9
    v_mul_lo_u32 v6, v6, s23
    v_and_b32 v7, 3, v9
    v_lshl_add_u32 v6, v7, 4, v6
    s_lshl_b32 s23, s16, 12
    s_add_u32 s23, s23, {LDS_BN}
    v_lshlrev_b32 v7, 6, v3
    v_lshl_add_u32 v7, v4, 4, v7
    v_add_u32 v7, s23, v7
    v_add_u32 v15, s23, v14
    s_lshl_b32 s22, s20, 12
    s_lshl_b32 s23, s33, 9
    s_add_u32 s22, s22, s23
    s_lshl_b32 s23, s21, 6
    s_add_u32 s22, s22, s23
    s_add_u32 s22, s22, {WS_T}''')
    def fwd(mt):
        mf = []
        for v in range(2):
            d = vr((XR, XI)[v] + 4*mt)
            for sg in range(4):
                def f(v=v, sg=sg, d=d):
                    a(f'v_mfma_f32_16x16x32_bf16 {d}, {vr(areg(mt,v,sg))}, {vr(Z+4*sg)}, {"0" if sg == 0 else d}')
                mf.append(f)
        return mf
    def filt(mt):
        o = Ops(a)
        for i in range(4): o.e(f'v_mul_f32 v{10+i}, v{XR+4*mt+i}, v{WR+4*mt+i}')
        for i in range(4): o.e(f'v_mul_f32 v{XR+4*mt+i}, v{XR+4*mt+i}, v{WI+4*mt+i}')
        for i in range(4): o.e(f'v_fma_f32 v{10+i}, -v{XI+4*mt+i}, v{WI+4*mt+i}, v{10+i}')
        for i in range(4): o.e(f'v_fmac_f32 v{XR+4*mt+i}, v{XI+4*mt+i}, v{WR+4*mt+i}')
        for i in range(4): o.e(f'v_cvt_pk_bf16_f32 v{Y+4*mt+i}, v{10+i}, -v{XR+4*mt+i}')
        return o
    a.wait(lg='w'); mark('p2w')
    sentinel(Z, 16, 'z', zloads, 10)
    stamp(a, 4, diag); mark('z')
    for f in fwd(0) + fwd(1): f()
    spread(a, fwd(2), filt(0))
    spread(a, fwd(3), filt(1))
    TRr = lambda mt: Z + 4*mt
    TIr = lambda mt: (XR, XR+4, XI, XI+4)[mt]
    def inv(sg):
        mf = []
        for mt in range(4):
            for v in range(2):
                d = vr(TRr(mt) if v == 0 else TIr(mt))
                mf.append(lambda v=v, mt=mt, d=d: a(f'v_mfma_f32_16x16x32_bf16 {d}, {vr(Y+4*sg)}, {vr(areg(mt,v,sg))}, {"0" if sg == 0 else d}'))
        return mf
    spread(a, inv(0), filt(2))
    spread(a, inv(1), filt(3))
    a('s_nop 1')
    for f in inv(2): f()
    for f in inv(3): f()
    a('s_nop 1')
    for mt in range(4):
        if mt == 3: a('s_nop 0')
        for i in range(4): a(f'v_cvt_pk_bf16_f32 v{WR+4*mt+i}, v{TRr(mt)+i}, -v{TIr(mt)+i}')
        a.lds(f'ds_write_b128 v7, {vr(WR+4*mt)} offset:{1024*mt}', 'tw')
        a.lds(f'ds_read_b128 {vr(WI+4*mt)}, v15 offset:{1024*mt}', ('tr', mt))
    for mt in range(4):
        a.wait(lg=[('tr', mt)])
        a.vmem(f'buffer_store_dwordx4 {vr(WI+4*mt)}, v6, s[12:15], s22 offen sc1', 'st2')
        if mt < 3: a(f's_add_u32 s22, s22, {16*36864}')
    stamp(a, 5, diag); mark('p2')
    lds_arrive(3, 10)

    TT = 48; BR = 96; BI = 112; AC3 = [128, 160]; PK = 192; XX = 208; ZB = 16
    if kw.get('PC', 4) == 0: p3_consts()
    a(f'''v_and_b32 v4, 7, v1
    v_lshlrev_b32 v4, 1, v4
    v_bfe_u32 v5, v1, 3, 1
    v_add_u32 v4, v4, v5
    v_and_b32 v5, 16, v1
    v_add_u32 v4, v4, v5
    v_lshlrev_b32 v4, 4, v4
    v_lshl_add_u32 v4, v2, 9, v4
    s_mul_i32 s20, s17, 9
    s_mul_i32 s23, s16, 3
    s_add_u32 s20, s20, s23
    s_lshl_b32 s20, s20, 12
    s_add_u32 s20, s20, {WS_T}
    s_add_u32 s21, s20, 4096
    s_add_u32 s22, s20, 8192
    s_mul_i32 s23, s16, 12288
    v_add_u32 v7, s23, v14''')
    AO, AE = 192, 208
    LO = AC3[0]; HI = AC3[0]+16
    def tloads(kt):
        for tau in range(4):
            a.vmem(f'buffer_load_dwordx4 {vr(TT+16*kt+4*tau)}, v4, s[12:15], s{(20,21,22)[kt]} offen offset:{tau*1024} sc1', ('t', kt))
    if kw.get('OG', 2) == 2: own_g(); a(f'v_mov_b32 v14, v{V_L16}')
    if kw.get('TE', 1) == 0:
        for kt in range(3): tloads(kt)
    for i in range(16): a(f'v_accvgpr_read_b32 v{16+i}, a{240+i}')
    for r in range(16):
        x0 = 16 + r//2; x1 = 24 + r//2
        if r % 2 == 0: a(f'v_lshlrev_b32 v12, 16, v{x0}\nv_lshlrev_b32 v13, 16, v{x1}')
        else: a(f'v_and_b32 v12, 0xffff0000, v{x0}\nv_and_b32 v13, 0xffff0000, v{x1}')
        a(f'v_sub_f32 v{AO+r}, v12, v13\nv_mul_f32 v{AO+r}, 0.5, v{AO+r}\nv_sub_f32 v12, v12, v{V_MU}\nv_sub_f32 v{AE+r}, v12, v{AO+r}')
    if kw.get('TE', 1) == 1:
        for kt in range(3): tloads(kt)
    mark('tiss'); lds_wait(2, 10, 128, True); mark('gw')
    a(f's_mul_i32 s24, s16, 24576\ns_add_u32 s24, s24, {LDS_G}\nv_add_u32 v5, s24, v14')
    for n in range(24): a.lds(f'ds_read_b128 {vr(4*n,4,"a")}, v5 offset:{1024*n}', 'g')
    if kw.get('TE', 1) == 3:
        for kt in range(3): tloads(kt)
    for g in range(1, 3): a(f's_mul_i32 s23, s{28+g}, 12288\nv_add_u32 v{224+g}, s23, v14')
    a(f'''v_lshlrev_b32 v8, 11, v2
    v_lshl_add_u32 v8, v1, 4, v8
    s_lshr_b32 s23, s17, 1
    s_mul_i32 s24, s23, 73728
    s_and_b32 s26, s17, 1
    s_lshl_b32 s27, s26, 9
    s_add_u32 s24, s24, s27
    s_lshl_b32 s27, s19, 12
    s_add_u32 s24, s24, s27
    s_add_u32 s24, s24, {WS_HC}
    s_add_u32 s27, s24, 36864
    s_mul_i32 s25, s26, 9
    s_add_u32 s25, s25, s19
    s_lshl_b32 s25, s25, 6
    s_lshl_b32 s31, s23, 11
    s_add_u32 s25, s25, s31
    s_add_u32 s58, s25, {FL3}
    s_mul_i32 s23, s23, {NSSQ}
    s_add_u32 s23, s23, s19
    s_lshl_b32 s23, s23, 8
    s_lshl_b32 s26, s26, 7
    s_add_u32 s23, s23, s26
    s_add_u32 s23, s23, {WS_SSQ}
    v_lshlrev_b32 v6, 2, v1
    v_mov_b32 v255, v{V_F0}''')
    lds_wait(3, 10, 256); get_id(10, True); mark('gr')
    if kw.get('TE', 1) == 2:
        for kt in range(3): tloads(kt)
    def chk(kt): return lambda: sentinel(TT+16*kt, 16, ('t', kt), lambda: [tloads(q) for q in range(kt, 3)], 10)
    def s1_mf(kt):
        acc = AC3[kt & 1]; mf = []
        for tau in range(4):
            for v in range(2):
                d = vr(acc+16*v, 16)
                mf.append(lambda tau=tau, v=v, d=d: a(f'v_mfma_f32_32x32x16_bf16 {d}, {vr(TT+16*kt+4*tau)}, {vr((ABR,ABI)[v]+4*tau,4,"a")}, {"0" if tau == 0 else d}'))
        return mf
    def s1_out(kt):
        acc = AC3[kt & 1]; o = Ops(a)
        for j in range(4):
            for i in range(4): o.e(f'v_cvt_pk_bf16_f32 v{TT+16*kt+4*j+i}, v{acc+4*j+i}, v{acc+16+4*j+i}')
            o.f(lambda j=j: a.lds(f'ds_write_b128 v7, {vr(TT+16*kt+4*j)} offset:{(4*kt+j)*1024}', 'zw'))
        return o
    def mmf(n, B):
        d = vr(AO if n % 2 == 0 else AE, 16)
        a(f'v_mfma_f32_32x32x16_bf16 {d}, {vr(4*n,4,"a")}, {B}, {d}')
    chk(0)()
    spread(a, s1_mf(0), [chk(1)], 2, 3)
    stamp(a, 6, diag); mark('k0')
    m = s1_mf(1)
    m[0](); chk(2)()
    spread(a, m[1:], s1_out(0), 0, 6); mark('k1')
    m = s1_mf(2)
    for f in m[:3]: f()
    a('s_nop 7')
    spread(a, m[3:], s1_out(1)); mark('k2')
    own = [lambda n=n: mmf(n, vr(TT+4*n)) for n in range(12)]
    for f in own[:3]: f()
    a('s_nop 7')
    spread(a, own[3:8], s1_out(2))
    lds_arrive(1, 10); mark('za')
    for f in own[8:11]: f()
    lds_wait(1, 10); mark('zw')
    zl = {'n': 12}
    def zload():
        n = zl['n']
        if n >= 36: return
        a.lds(f'ds_read_b128 {vr(ZB+4*(n%8))}, v{224+n//12} offset:{(n%12)*1024}', ('zf', n)); zl['n'] += 1
    for i in range(7): zload()
    own[11]()
    for n in range(12, 36):
        a.wait(lg=[('zf', n)])
        mmf(n, vr(ZB+4*(n%8)))
        zload()
    mark('mm')
    a('s_nop 7\ns_nop 3')
    PK = 48
    for q in range(4):
        dst = (LO, HI)[q >> 1] + 8*(q & 1)
        for r in range(8): a(f'v_{"add" if q < 2 else "sub"}_f32 v{dst+r}, v{AE+8*(q&1)+r}, v{AO+8*(q&1)+r}')
        for i in range(4): a(f'v_cvt_pk_bf16_f32 v{PK+4*q+i}, v{dst+2*i}, v{dst+2*i+1}')
        a.vmem(f'buffer_store_dwordx4 {vr(PK+4*q)}, v8, s[12:15], s{24 if q < 2 else 27} offen offset:{(q&1)*1024} sc1', 'st3')
    a(f'v_mul_f32 v11, v{LO}, v{LO}\nv_mul_f32 v12, v{HI}, v{HI}')
    for r in range(1, 16): a(f'v_fmac_f32 v11, v{LO+r}, v{LO+r}\nv_fmac_f32 v12, v{HI+r}, v{HI+r}')
    a(f'''v_add_f32 v11, v11, v12
    v_mov_b32 v12, v11
    s_nop 1
    v_permlane32_swap_b32 v11, v12
    s_nop 1
    v_add_f32 v11, v11, v12''')
    a.vmem(f'buffer_store_dword v11, v6, s[12:15], s23 offen sc1', 'st3')
    a(f's_lshl_b32 s23, s17, 7\ns_add_u32 s23, s23, {WS_MU}\ns_cmp_eq_u32 s19, 0\ns_cselect_b32 s24, 0, 0x80000000\nv_or_b32 v6, s24, v6')
    a.vmem(f'buffer_store_dword v{V_MU}, v6, s[12:15], s23 offen sc1', 'st3')
    stamp(a, 7, diag); mark('p3')
    a('s_branch L_ffn')

    gst = {'it': 0}
    def gen_g(cnt):
        cnt = min(cnt, 18 - gst['it'])
        while cnt > 0:
            it = gst['it']; w, r = it//6, it % 6
            kt = (3*w + r) % 9
            if r == 0:
                a(f'v_add_u32 v21, {32*w}, v18\nv_cvt_f32_u32 v21, v21\nv_mul_f32 v21, {hexf(1.0/576)}, v21')
                for n in gpos: a(f'v_mul_f32 v23, {hexf(goff(n)-11.5)}, v21\nv_cos_f32 v{180+2*n}, v23\nv_sin_f32 v{181+2*n}, v23')
            m = min(cnt, 6 - r, 9 - kt)
            lp = L('gg')
            a(f'''v_add_f32 v22, {hexf(32.0*kt + 11.5)}, v19
            s_mov_b32 s31, {kt}
            {lp}:
            v_mul_f32 v23, v22, v21
            v_cos_f32 v24, v23
            v_sin_f32 v25, v23
            v_add_f32 v22, {hexf(32.0)}, v22
            s_cmp_eq_u32 s31, 8
            s_cselect_b64 vcc, -1, 0
            v_cndmask_b32 v26, 1.0, v17, vcc''')
            def sink(j):
                for n in range(4*j, 4*j+4): a(f'v_cvt_pk_bf16_f32 v{212+n}, v{136+2*n}, -v{137+2*n}')
                a(f'ds_write_b128 v20, {vr(212+4*j)} offset:{1024*j}')
            g_body(180, 136, 24, 26, sink)
            a(f'''v_add_u32 v20, 4096, v20
            s_add_u32 s31, s31, 1
            s_cmp_lt_u32 s31, {kt+m}
            s_cbranch_scc1 {lp}''')
            a.lg.append('gw')
            gst['it'] += m; cnt -= m
    a.vm = [None]*9; a.lg = []
    a(f'''L_help:
    s_mov_b32 s58, 0
    v_bfrev_b32 v255, 1''')
    srd(a, 40, 48, 2048*578); srd(a, 44, 50, 2048*578)
    a(f'''v_lshrrev_b32 v4, 3, v9
    v_lshlrev_b32 v4, 5, v4
    v_bfe_u32 v5, v9, 1, 2
    v_add_u32 v4, v4, v5
    v_mul_u32_u24 v4, 578, v4
    v_and_b32 v5, 2, v9
    v_add_u32 v4, v4, v5
    v_and_b32 v5, 1, v9
    v_lshl_add_u32 v4, v5, 4, v4
    s_mul_i32 s22, s33, {4*578}
    s_mul_i32 s23, s34, 24
    s_add_u32 s22, s22, s23''')
    if kw.get('WT', 2):
        a(f'''v_mul_u32_u24 v5, 13, v9
        v_lshrrev_b32 v5, 8, v5
        v_mul_u32_u24 v6, 20, v5
        v_sub_u32 v6, v9, v6
        s_mul_i32 s23, s34, 3
        v_add_u32 v5, s23, v5
        v_mul_u32_u24 v5, {32*578}, v5
        s_mul_i32 s23, s33, {4*578}
        v_add_u32 v5, s23, v5
        v_and_b32 v5, 0xffffff80, v5
        v_lshl_add_u32 v5, v6, 7, v5
''')
    def wtouch():
        a(f'''s_bfm_b64 exec, 60, 0
        buffer_load_dword v254, v5, s[40:43], 0 offen {kw.get('WTF', 'nt')}
        buffer_load_dword v254, v5, s[44:47], 0 offen {kw.get('WTF', 'nt')}
        s_mov_b64 exec, -1''')
    if kw.get('WT', 2) == 1: wtouch()
    HP = kw.get('HP', 0)
    if HP: a('s_load_dwordx2 s[8:9], s[0:1], 48')
    def hpf():
        a(f'''s_mov_b32 s10, {576*9216}
        s_mov_b32 s11, 0x20000
        s_sub_u32 s24, s2, 64
        s_mul_i32 s24, s24, {132*128}
        v_lshl_add_u32 v6, v9, 7, s24
        s_bfm_b64 exec, 44, 0''')
        for i in range(3):
            a.vmem(f'buffer_load_dword v254, v6, s[8:11], 0 offen', 'hp'); a(f'v_add_u32 v6, {44*128}, v6')
        a('s_mov_b64 exec, -1')
    def wdma(lo, hi):
        for i in range(lo, hi):
            for arr in range(2):
                a(f's_mov_b32 m0, {LDS_W+arr*8192+i*1024}\ns_add_u32 s23, s22, {i*8*32*578}')
                a.vmem(f'buffer_load_dwordx4 v4, s[{40+4*arr}:{43+4*arr}], s23 offen {NTW} lds', 'wd')
    ws_srd()
    a(f'''v_and_b32 v18, 3, v9
    v_bfe_u32 v19, v9, 2, 1
    v_lshl_add_u32 v18, v19, 4, v18
    v_bfe_u32 v19, v9, 3, 2
    v_lshl_add_u32 v18, v19, 2, v18
    s_mul_i32 s24, s34, 43
    s_lshr_b32 s24, s24, 7
    s_mul_i32 s24, s24, 3
    s_sub_u32 s23, s34, s24
    s_mul_i32 s23, s23, 96
    v_add_u32 v18, s23, v18
    v_lshrrev_b32 v19, 5, v9
    v_cvt_f32_u32 v17, v19
    v_fma_f32 v17, v17, -0.5, 1.0
    v_lshl_add_u32 v19, v19, 3, 1
    v_cvt_f32_u32 v19, v19
    v_lshlrev_b32 v20, 4, v9
    v_add_u32 v20, {LDS_G}, v20
    s_mov_b32 s27, {FLC}''')
    def clr(n, sreg):
        for i in range(n):
            if i and i % 4 == 0: a(f's_add_u32 s{sreg}, s{sreg}, 4096')
            a.vmem(f'buffer_store_dwordx4 v[12:15], v1, s[12:15], s{sreg} offen offset:{(i%4)*1024} sc1', 'clr')
    TKA = kw.get('TKA', 1); GA = kw.get('GA', 3)
    if HP == 3: hpf()
    if HP == 4: gen_g(2); hpf()
    if kw.get('WT', 2) == 2: gen_g(2); wtouch(); GA -= 2
    gen_g(GA)
    WN = kw.get('WN', 8)
    XH = 32; SH_ = 228
    a(f'v_lshlrev_b32 v28, 4, v9\nv_mov_b32 v29, 0x3f803f80')
    for i in range(8): a(f'v_mov_b32 v{SH_+i}, 0')
    lds_wait(0, 10)
    for n in range(36): a.lds(f'ds_read_b128 {vr(XH+4*n)}, v28 offset:{1024*n}', ('hx', n))
    if HP == 5: hpf()
    for q in range(9):
        WQ = kw.get('WQ', 1)
        if WQ == 0 and q < WN: wdma(q, q+1)
        if WQ == 1 and q >= 5: wdma(2*(q-5), 2*(q-5)+2)
        a.wait(lg=[('hx', 4*q+3)])
        for i in range(4):
            for t in range(4):
                x = XH + 16*q + 4*t + i
                a(f'v_dot2c_f32_bf16 v{SH_+2*t}, v{x}, v29\nv_dot2c_f32_bf16 v{SH_+2*t+1}, v{x}, v{x}')
    a('s_nop 2')
    for perm in ('[1,0,3,2]', '[2,3,0,1]'):
        for i in range(8): a(f'v_add_f32_dpp v{SH_+i}, v{SH_+i}, v{SH_+i} quad_perm:{perm} row_mask:0xf bank_mask:0xf')
    if kw.get('CQ', 0) == 0: tok_issue(128); chk_issue(27, 240, 'cc')
    a('s_nop 0')
    for i in range(4): a(f'v_permlane32_swap_b32 v{SH_+i}, v{SH_+4+i}')
    a('s_nop 0')
    for i in range(4): a(f'v_add_f32 v{SH_+i}, v{SH_+i}, v{SH_+4+i}')
    for t in range(2):
        a(f'''v_mul_f32 v{SH_+2*t}, {hexf(1.0/576)}, v{SH_+2*t}
        v_mov_b32 v{SH_+4+t}, {hexf(1e-5)}
        v_fmac_f32 v{SH_+4+t}, {hexf(1.0/576)}, v{SH_+2*t+1}
        v_fma_f32 v{SH_+4+t}, -v{SH_+2*t}, v{SH_+2*t}, v{SH_+4+t}
        v_max_f32 v{SH_+4+t}, {hexf(1e-5)}, v{SH_+4+t}
        v_rsq_f32 v{SH_+4+t}, v{SH_+4+t}''')
    a(f'''v_lshrrev_b32 v28, 5, v9
    v_bfe_u32 v29, v9, 2, 3
    v_lshl_add_u32 v30, v28, 4, v29
    v_lshlrev_b32 v30, 2, v30
    v_add_u32 v30, {LDS_ST+128}, v30
    v_bfe_u32 v29, v9, 3, 2
    v_lshl_add_u32 v28, v28, 3, v29
    v_bfe_u32 v29, v9, 2, 1
    v_lshl_add_u32 v28, v29, 4, v28
    v_lshlrev_b32 v28, 2, v28
    v_add_u32 v28, {LDS_ST}, v28
    v_mul_f32 v{SH_+4}, {hexf(SC)}, v{SH_+4}
    v_mul_f32 v{SH_+5}, {hexf(SC)}, v{SH_+5}''')
    for t in range(2): a(f'ds_write_b32 v28, v{SH_+4+t} offset:{16*t}\nds_write_b32 v30, v{SH_+2*t} offset:{32*t}')
    lds_arrive(3, 10); stamp(a, 3, diag)
    if WQ == 2: wdma(0, 8)
    if kw.get('CQ', 0) == 1: tok_issue(128); chk_issue(27, 240, 'cc')
    gen_g(kw.get('GC', 1))
    if kw.get('PAD', 1): a('s_mov_b64 exec, 0\ns_branch L_qad0\nL_qad_end:\ns_mov_b64 exec, -1'); srd(a, 40, 48, 2048*578); srd(a, 44, 50, 2048*578)
    tok_verify(128); chk_verify(27, 240, 'cc', None, kw.get('HS', 8))
    assert WN == 8
    lds_arrive(2, 10); stamp(a, 4, diag)
    if TKA:
        a(f'''s_waitcnt lgkmcnt(0)
        s_getreg_b32 s30, hwreg(HW_REG_XCC_ID)
        s_and_b32 s30, s30, 7
        s_lshl_b32 s29, s30, 7
        s_add_u32 s29, s29, {TKC}
        s_mov_b32 s35, 1
        s_atomic_add s35, s[12:13], s29 glc''')
    gen_g(2)
    if TKA:
        a(f'''s_waitcnt lgkmcnt(0)
        s_mov_b32 s28, 7
        s_branch L_tkc
        L_tkl:
        s_add_u32 s30, s30, 1
        s_and_b32 s30, s30, 7
        s_lshl_b32 s29, s30, 7
        s_add_u32 s29, s29, {TKC}
        s_mov_b32 s35, 1
        s_atomic_add s35, s[12:13], s29 glc
        s_waitcnt lgkmcnt(0)
        L_tkc:
        s_cmp_lt_u32 s35, 24
        s_cbranch_scc1 L_tkx
        s_sub_u32 s28, s28, 1
        s_cbranch_scc0 L_tkl
        s_mov_b32 s35, s34
        s_mov_b32 s30, s33
        L_tkx:
        s_add_u32 s35, s35, 8
        s_lshl_b32 s35, s35, 3
        s_add_u32 s35, s35, s30''')
    else: a('s_mov_b32 s35, s2')
    a(f'v_mov_b32 v10, {LDS_ID}\nv_mov_b32 v11, s35\nds_write_b32 v10, v11\nds_write_b64 v10, {vr(V_TK,2)} offset:8')
    if kw.get('HSEN', 1):
        gen_g(max(0, 16 - gst['it'])); a(f's_add_u32 s27, s27, 8192'); chk_issue(27, 30, 'ch'); gen_g(18); chk_verify(27, 30, 'ch', None, kw.get('HS', 8))
    gen_g(18); lds_arrive(2, 10); stamp(a, 6, diag)
    a('s_branch L_ffn')
    a.vm = []; a.lg = []
    a(f'''L_pure:
    s_add_u32 s23, s2, s16
    s_cmp_lg_u32 s23, 0
    s_cbranch_scc1 L_notok
    s_memrealtime s[40:41]
    v_lshlrev_b32 v2, 7, v9
    v_add_u32 v2, {TKC}, v2
    v_mov_b32 v3, 0
    s_waitcnt lgkmcnt(0)
    s_or_b32 s40, s40, 1
    v_mov_b32 v4, s40
    v_mov_b32 v5, s41
    s_mov_b64 exec, 1
    global_store_dwordx2 v3, v[4:5], s[36:37] sc1
    s_mov_b64 exec, 0xffff
    global_store_dword v2, v3, s[38:39] sc1
    s_mov_b64 exec, -1
    L_notok:
    s_mov_b32 s58, 0
    v_bfrev_b32 v255, 1''')
    ws_srd()
    a(f'''s_lshl_b32 s17, s2, 2
    s_add_u32 s17, s17, s16
    v_lshlrev_b32 v1, 4, v9
    v_mov_b32 v12, -1
    v_mov_b32 v13, -1
    v_mov_b32 v14, -1
    v_mov_b32 v15, -1
    s_lshl_b32 s27, s2, 6
    s_add_u32 s27, s27, {FLC}
    s_cmp_eq_u32 s16, 0
    s_cselect_b32 s23, 0, 0x80000000
    v_or_b32 v5, s23, v{V_F0}''')
    def wgflag(off, n=0):
        a(f's_waitcnt vmcnt({n})\ns_barrier\ns_add_u32 s23, s27, {off}'); flag_store(23, None, 5)
    if kw.get('WPF', 0):
        srd(a, 40, 48, 2048*578); srd(a, 44, 50, 2048*578)
        a(f's_mul_i32 s23, s17, 4736\nv_lshl_add_u32 v2, v9, 7, s23\ns_bfm_b64 exec, 37, 0')
        for arr in range(2): a(f'buffer_load_dword v254, v2, s[{40+4*arr}:{43+4*arr}], 0 offen')
        a('s_mov_b64 exec, -1')
    a(f's_mul_i32 s26, s17, 9216\ns_add_u32 s25, s26, {WS_T}')
    if kw.get('CD'): tok_issue(); tok_verify()
    clr(9, 26)
    if not kw.get('CD'): tok_issue(); tok_verify()
    elif kw['CD'] == 2: a('s_waitcnt vmcnt(0)')
    a(f'''s_cmp_lg_u32 s17, 0
    s_cselect_b32 s23, 0x80000000, 0
    v_or_b32 v6, s23, v{V_F0}
    buffer_store_dwordx2 {vr(V_TK,2)}, v6, s[36:39], 0 offen offset:128 sc1''')
    clr(9, 25)
    wgflag(0); stamp(a, 4, diag); mark('pz')
    PF0 = 0
    if kw.get('HSEN', 1):
        a(f's_mul_i32 s25, s17, 9216\ns_add_u32 s25, s25, {WS_HC}')
        clr(9, 25)
    a(f'''v_add_u32 v11, 32768, v11
    buffer_load_dword v254, v11, s[44:47], 0 offen
    v_add_u32 v11, 32768, v11
    buffer_load_dword v254, v11, s[44:47], 0 offen''')
    PFE = kw.get('PFE', 1)
    def fin2(n):
        wgflag(8192 if kw.get('HSEN', 1) else 4096, n); stamp(a, 5, diag)
        if TKA:
            a('s_cmp_lg_u32 s16, 3\ns_cbranch_scc1 L_ntk')
            tok_issue(128); tok_verify(128)
            ticket(8, 1024, 0)
            a('L_ntk:')
    if not PFE: fin2(0)
    if PF:
        PFS = kw.get('PFS', 128); PFF = kw.get('PFF', '')
        a(f'''s_load_dwordx4 s[4:7], s[0:1], 32
        s_load_dwordx2 s[8:9], s[0:1], 48
        s_mul_i32 s23, s17, 20736
        v_mul_u32_u24 v2, {PFS}, v9
        v_add_u32 v2, s23, v2
        s_waitcnt lgkmcnt(0)''')
        srd(a, 40, 4, 576*9216); srd(a, 44, 6, 576*9216); srd(a, 48, 8, 576*9216)
        nl = 20736//PFS
        for r in range(kw.get('PFM', 2)):
            for i in range(64*PF0 if r == 1 else 0, nl, 64):
                a(f'v_add_u32 v3, {PFS*i}, v2')
                if nl - i < 64: a(f's_bfm_b64 exec, {nl-i}, 0')
                if kw.get('NOPF'): a('v_bfrev_b32 v3, 1')
                a(f'buffer_load_dword v254, v3, s[{40+4*r}:{43+4*r}], 0 offen {PFF}')
                if nl - i < 64: a('s_mov_b64 exec, -1')
                if PFE and r == 0 and i == 0: a('v_mov_b32 v6, v2'); fin2(3); a('v_mov_b32 v2, v6')
                if kw.get('PFW1'): a(f's_waitcnt vmcnt({kw["PFW1"]-1})')
    stamp(a, 6, diag)
    if TKA: a('s_barrier'); get_id(2)
    else: a('s_mov_b32 s35, s2')
    stamp(a, 7, diag); mark('pend')

    a.vm = ['pre']; a.lg = []
    from ffn import emit_ffn
    if P128:
        from ffn2 import emit_ffn2 as emit_ffn
        if P128 == 3:
            from ffn3 import emit_ffn3 as emit_ffn
        if P128 == 4:
            from ffn4 import emit_ffn4 as emit_ffn
    nv = emit_ffn(a, dict(kw, mark=mark, sentinel=sentinel, maxchain=maxchain, lds_wait=lds_wait, diag=diag, G2S=G2S, FE=FE, PRE=PRE, R=R, FPX=FPX, UP=UP, RATE0=RATE0, WSC=WSC, chk_issue=chk_issue, chk_verify=chk_verify,
                          flag_store=flag_store, V_L8=V_L8, V_F0=V_F0, V_TK=V_TK, V_CK=V_CK, stamp=stamp, rstamp=rstamp, Ops=Ops))
    if diag:
        vt = 24
        a.waitall()
        stamp(a, 14, True)
        a('s_memrealtime s[94:95]\ns_waitcnt lgkmcnt(0)')
        for i in range(1, 15):
            if kw.get('RT') and i in (2, 4): a(f'v_mov_b32 v{vt+i}, s{60+2*i}'); continue
            a(f's_cmp_eq_u32 s{60+2*i}, 0\ns_cselect_b32 s23, 0, s60\ns_sub_u32 s{60+2*i}, s{60+2*i}, s23\nv_mov_b32 v{vt+i}, s{60+2*i}')
        a(f'v_mov_b32 v{vt}, s92\nv_mov_b32 v{vt+15}, s94')
        a(f'''s_lshl_b32 s23, s2, 2
        s_add_u32 s23, s23, s16
        s_lshl_b32 s23, s23, 6
        s_add_u32 s23, s23, {WS_DBG}
        v_mov_b32 v{vt+16}, 0
        s_mov_b64 exec, 1''')
        for i in range(4): a(f'buffer_store_dwordx4 {vr(vt+4*i)}, v{vt+16}, s[12:15], s23 offen offset:{16*i}')
    if PROBE:
        a('s_waitcnt vmcnt(0)'); mark('end')
        if PROBE == 'tok': a(f's_mov_b32 s62, s{TOK}')
        a('''s_waitcnt lgkmcnt(0)
        s_cmp_eq_u32 s62, 0
        s_cselect_b32 s62, s60, s62
        s_add_u32 s62, s62, 8000
        L_probe:
        s_memrealtime s[64:65]
        s_waitcnt lgkmcnt(0)
        s_sub_u32 s64, s64, s62
        s_cmp_lt_i32 s64, 0
        s_cbranch_scc1 L_probe''')
    a('L_end:\ns_endpgm\nL_codeend:')
    hdr = f'; @launch grid=(256,1,1) block=(256,1,1) lds={LDS_TOTAL}\n.amdgcn_target "amdgcn-amd-amdhsa--gfx950"\n.text\n'
    tail = '.section .rodata,"a"\n' + kernel_desc(name, 256, 256, 102)
    if kw.get('PAD', 1): add_pads(a, hdr, tail, kw.get('PADN', 1))
    return hdr + a.text() + tail

def add_pads(a, hdr, tail, per):
    import subprocess, re, os
    tmp = '_pad_%d' % os.getpid()
    open(tmp + '.s', 'w').write(hdr + a.text() + 'L_pad0:\nL_qad0:\n' + tail)
    subprocess.run(['clang', '-x', 'assembler', '-target', 'amdgcn-amd-amdhsa', '-mcpu=gfx950', '-c', tmp + '.s', '-o', tmp + '.o'], check=True)
    dis = subprocess.run(['llvm-objdump', '-d', '--mcpu=gfx950', tmp + '.o'], capture_output=True, text=True).stdout
    dis = dis[dis.index('<L_p1>:'):]
    sizes = [4*len(m.group(1).split()) for m in re.finditer(r'// [0-9A-F]{12}: ([0-9A-F ]+)', dis)]
    i0 = a.L.index('L_p1:')
    out = a.L[:i0+1]; addr = 0; k = 0
    n = {'q': 0, 'p': 0}
    targets = sorted(p*4096 + q*64 for p in range(1, 24) for q in range(per))
    ch = 'q'
    for line in a.L[i0+1:]:
        if line == 'L_help:':
            out += [f'L_qad{n["q"]}:', '  s_branch L_qad_end']; addr += 4; ch = None
        if line == 'L_pad_end:': ch = 'p'
        if line.endswith(':'): out.append(line); continue
        while addr >= targets[0]:
            targets.pop(0)
            if ch and not out[-1].strip().startswith(('s_mov_b64 exec', 's_bfm_b64 exec', 's_add_u32 m0', 's_cmp', 's_sub_u32 s59')):
                out += [f'L_{ch}ad{n[ch]}:', f'  s_cbranch_execz L_{ch}ad{n[ch]+1}']; n[ch] += 1; addr += 4
            elif ch:
                targets.insert(0, addr + 1); break
        out.append(line); addr += sizes[k]; k += 1
    j = out.index('L_codeend:')
    out[j:j] = [f'L_pad{n["p"]}:', '  s_branch L_pad_end']
    a.L = out

if __name__ == '__main__':
    import sys
    out = sys.argv[1] if len(sys.argv) > 1 else 'sequential_preLN__spectral_gfnet__geglu_ffn__prompt.s'
    open(out, 'w').write(gen_mega())
```

```python
from asmlib import *
from layout import *
import math
WS_X = 0x4000000

import re
LD = 5
def cost(line):
    op = line.split()[0]
    if op.startswith(('v_exp', 'v_rcp', 'v_rsq')): return 8
    if op.startswith('buffer_'): return 8
    if op.startswith('ds_write'): return 8
    if op.startswith('ds_'): return LD
    if op.startswith('s_nop'): return 4
    if op.startswith('s_'): return 0
    if op.startswith('v_mul_lo'): return 8
    return 4

def regs(txt):
    op, rest = txt.split(None, 1)
    toks = [t.strip() for t in rest.split(',')]
    def ex(t):
        t = t.lstrip('-').split()[0]
        m = re.match(r'([vs])\[(\d+):(\d+)\]$', t)
        if m: return {(m.group(1), r) for r in range(int(m.group(2)), int(m.group(3))+1)}
        m = re.match(r'([vs])(\d+)$', t)
        return {(m.group(1), int(m.group(2)))} if m else set()
    allr = [ex(t) for t in toks]
    if op.startswith(('ds_write', 'buffer_store')): return set().union(*allr) | {'mem'}, {'mem'}
    return set().union(*allr[1:]), allr[0]

class COps(list):
    def __init__(self, a): super().__init__(); self.a = a
    def e(self, s):
        for line in s.split('\n'):
            line = line.strip()
            if line:
                fn = lambda line=line: self.a(line)
                fn.txt = line
                self.append((cost(line), fn))
    def f(self, fn, c=0, txt=None):
        if txt: fn.txt = txt
        self.append((c, fn))

def need(x):
    assert x

def emit_ffn4(a, P):
    import mega
    diag = P['diag']
    chk_issue, chk_verify, flag_store0 = P['chk_issue'], P['chk_verify'], P['flag_store']
    V_CK, stamp = P['V_CK'], P['stamp']
    SH, RDN, NFR = P.get('SH', 14), P.get('RDN', 21), 8
    DMAC = 9
    FLX = mega.FLX; FL4 = mega.FL4; FL3 = mega.FL3
    RING = 81920; RB = 57344; BS = 53248
    V_L16, V_B1, V_B1x, V_ACTW = 1, 2, 3, 4
    V_DD, V_DH, V_DGH = 5, 6, 7
    V_C0, V_C1, V_IR = 10, 14, 18
    V_RF, V_RH = 22, 23
    V_T = 24
    FR = 176
    BX = 208
    V_DG = 240
    V_B2, V_B2x = 243, 244
    def breg(bi): return vr(4*bi, 4, 'a') if bi < 64 else vr(BX + 4*(bi-64))
    PAD = P.get('PAD', 1); LF = P.get('LF', 1)
    DROP = P.get('DROP', ())
    if DROP:
        ov = a.vmem
        def vm(s_, tag=None):
            k = tag[0] if isinstance(tag, tuple) else tag
            if k in DROP: return
            ov(s_, tag)
        a.vmem = vm
    a('L_ffn:')
    if PAD: a('s_cmp_lg_u32 s16, 3\ns_cbranch_scc1 L_pad_end\ns_mov_b64 exec, 0\ns_branch L_pad0\nL_pad_end:\ns_mov_b64 exec, -1')
    npad = {'n': 0}
    def pad(last=False):
        n = npad['n']; npad['n'] += 1
        a(f'L_pad{n}:\ns_cbranch_execz ' + ('L_pad_end' if last else f'L_pad{n+1}'))
    a(f"""s_load_dwordx2 s[32:33], s[0:1], 56
    s_load_dwordx4 s[4:7], s[0:1], 32
    s_load_dwordx2 s[48:49], s[0:1], 48
    v_lshlrev_b32 v{V_L16}, 4, v9
    s_and_b32 s23, s35, 7
    s_lshr_b32 s24, s35, 3
    s_and_b32 s19, s24, 1
    s_and_b32 s17, s23, {(8 >> LF)-1}
    s_lshl_b32 s17, s17, {LF}
    s_lshr_b32 s25, s24, 1
    s_and_b32 s25, s25, {(1 << LF)-1}
    s_add_u32 s17, s17, s25
    s_lshr_b32 s18, s23, {3-LF}
    s_lshl_b32 s18, s18, {4-LF}
    s_lshr_b32 s25, s24, {1+LF}
    s_add_u32 s18, s18, s25
    s_lshr_b32 s54, s16, 1
    s_and_b32 s55, s16, 1
    v_lshrrev_b32 v30, 3, v9
    v_and_b32 v31, 7, v9
    v_bfe_u32 v24, v9, 4, 1
    v_lshlrev_b32 v25, 2, v24
    v_xor_b32 v31, v25, v31
    s_mul_i32 s23, s16, 24
    v_add_u32 v26, s23, v30
    v_mul_u32_u24 v26, 9216, v26
    v_lshl_add_u32 v{V_DG}, v31, 4, v26
    v_add_u32 v{V_DG+1}, {8*9216-1024}, v{V_DG}
    v_add_u32 v{V_DG+2}, {16*9216-2048}, v{V_DG}
    s_mul_i32 s22, s16, 3072
    s_mul_i32 s20, s17, 1152
    s_lshl_b32 s23, s19, 6
    s_add_u32 s21, s20, s23
    s_add_u32 s21, s21, 512
    s_mul_i32 s23, s19, 640
    s_add_u32 s20, s20, s23
    s_waitcnt lgkmcnt(0)
    s_mov_b32 s40, s4
    s_mov_b32 s41, s5
    s_mov_b32 s42, {576*9216}
    s_mov_b32 s43, 0x20000
    s_mov_b32 s44, s6
    s_mov_b32 s45, s7
    s_mov_b32 s46, {576*9216}
    s_mov_b32 s47, 0x20000
    s_mov_b32 s50, {576*9216}
    s_mov_b32 s51, 0x20000
    s_mov_b32 s34, {NB}
    s_mov_b32 s35, 0x20000""")
    a('s_cmp_lg_u32 s16, 3\ns_cbranch_scc1 L_nopre\ns_cmp_lt_u32 s2, 64\ns_cbranch_scc1 L_pre')
    P['lds_wait'](0 if P.get('PT', 0) else 1, 26, 192, True)
    HF = P.get('HF', 1)
    if HF:
        a(f"""s_and_b32 s23, s2, 7
        s_mul_i32 s23, s23, 24
        s_lshr_b32 s24, s2, 3
        s_add_u32 s23, s23, s24
        s_sub_u32 s23, s23, 8
        s_mul_i32 s24, s23, 5462
        s_lshr_b32 s24, s24, 16
        s_lshl_b32 s24, s24, 2
        s_add_u32 s23, s23, s24
        s_lshl_b32 s23, s23, 6
        s_add_u32 s23, s23, {mega.FL1}""")
        a('s_mov_b32 s3, s23')
        if not P.get('PT', 0): vm0 = list(a.vm); flag_store0(3); a.vm = vm0
    a(f'L_pre:\ns_mov_b32 s23, {mega.FLC}')
    vm0 = list(a.vm); chk_issue(23, V_CK, 'ct'); a.vm = vm0
    a(f"""s_mov_b32 s25, {RING}
    s_mov_b32 s24, s20
    s_mov_b32 s26, 0""")
    for j in range(3): a(f'v_subrev_u32 v{48+j}, {72*9216}, v{V_DG+j}')
    a(f"""L_prel:
    s_mov_b32 m0, s25
    s_add_u32 s27, s25, 12288""")
    for j in range(3): a(f'buffer_load_dwordx4 v{48+j}, s[40:43], s24 offen offset:{1024*j} lds')
    a('s_mov_b32 m0, s27\ns_add_u32 s26, s26, 1')
    for j in range(3): a(f'buffer_load_dwordx4 v{48+j}, s[44:47], s24 offen offset:{1024*j} lds')
    a(f"""s_add_u32 s24, s24, {24*9216}
    s_add_u32 s25, s25, 3072
    s_and_b32 s27, s26, 3
    s_cmp_eq_u32 s27, 0
    s_cselect_b32 s27, 12288, 0
    s_add_u32 s25, s25, s27
    s_cmp_lt_u32 s26, 12
    s_cbranch_scc1 L_prel""")
    if HF and P.get('PT', 0):
        a('s_cmp_lt_u32 s2, 64\ns_cbranch_scc1 L_nopre'); vm0 = list(a.vm); flag_store0(3); a.vm = vm0
    a(f"""L_nopre:
    s_cmp_ge_u32 s2, 64
    s_cbranch_scc1 L_nowd
    s_barrier
    s_lshl_b32 s24, s2, 2
    s_add_u32 s24, s24, s16
""")
    if P.get('HP'):
        a(f's_mul_i32 s24, s24, {63*128}\ns_add_u32 s24, s24, {25344*128}\nv_lshl_add_u32 v48, v9, 7, s24\ns_bfm_b64 exec, 63, 0\nbuffer_load_dword v254, v48, s[48:51], 0 offen')
    else:
        a('s_mul_i32 s24, s24, 20736\nv_lshl_add_u32 v48, v9, 7, s24\ns_bfm_b64 exec, 54, 0')
        for i in range(3): a(f'buffer_load_dword v254, v48, s[48:51], 0 offen\nv_add_u32 v48, 6912, v48')
    a('s_mov_b64 exec, -1\nL_nowd:')
    PASS = ['F0', 'H', 'F1', 'F2', 'F3']
    PG = [0, None, 1, 2, 3]
    stages = []
    pstart = []
    for p in range(5):
        pstart.append(len(stages))
        stages += [('g1', p, sg) for sg in range(3 if p == 1 else 6)]
    G2 = len(stages)
    KS = [('p',0),('p',1),('p',8), ('p',2),('p',3),('o',0), ('o',1),('o',8),('o',2), ('o',3),('o',4),('o',5), ('p',4),('p',5),('o',6), ('o',7),('p',6),('p',7)]
    sl = {k: i for i, k in enumerate(KS)}
    early = [('o',0),('o',1),('p',0),('p',1),('o',8),('p',8),('o',2),('o',3),('p',2),('p',3),('o',4),('o',5),('p',4),('p',5)]
    blocks = []
    order = early[:12] + [('o',6),('o',7),('p',4),('p',5),('p',6),('p',7)]
    for i in range(0, 18, 2):
        blocks += [('F', 0, sl[order[i]]), ('F', 0, sl[order[i+1]]), ('H', sl[order[i]], sl[order[i+1]])]
    NBE = P.get('NBE', 1)
    bb = [('F', 1, s) for s in range(18)]
    blocks = blocks[:24] + bb[:6*NBE] + blocks[24:] + bb[6*NBE:]
    for g in (2, 3): blocks += [('F', g, s) for s in range(18)]
    cuts = [6]*(4+NBE) + [3] + [6]*(9-NBE)
    i = 0
    for c in cuts: stages.append(('g2', blocks[i:i+c])); i += c
    NS = len(stages)
    SC = 36
    SL = G2+4+NBE; SB, SCn, SD, SO = SL+1, G2+8, G2+11, NS
    FREEA = G2+4
    slotb = {}; rel = {}
    avail = [(RING + i*24576, -9) for i in range(3)]
    extra = [(RB, 6), (0, G2), (24576, FREEA), (49152, FREEA)] if P.get('S4', 1) else [(0, FREEA), (24576, FREEA), (49152, FREEA)]
    for S in range(NS):
        while extra and extra[0][1] <= min(x[1] for x in avail): avail.append(extra.pop(0))
        cand = sorted(avail, key=lambda x: x[1])
        if S >= G2: cand = [x for x in cand if x[0] != RB]
        b = cand[0]; avail.remove(b)
        if S >= G2: avail = [x for x in avail if x[0] != RB]
        slotb[S], rel[S] = b[0], b[1]
        avail.append((b[0], S+1))
    LC = {0: 0, 1: 4, 2: 8, 3: 12, 8: 16, 4: 20, 5: 24, 6: 28, 7: 32}
    def rowbase(ks):
        kind, i = KS[ks]
        r = {('o', False): 4, ('p', False): 5, ('o', True): 6, ('p', True): 7}[(kind, i == 8)]
        return r, (32*i*1152 if i < 8 else 0)
    dg = {'g': None}
    def dmai(ins, tag):
        if ' m0,' in a.L[-1]: a('s_nop 0')
        if tag[0] == 'u': ins = ins.replace(' lds', ' ' + P.get('WF', '') + ' lds')
        a.vmem(ins, tag)
    def dma_ops(S):
        o = COps(a)
        if S >= NS or (P.get('NODMA') and 12 <= S < 24): return o
        st = stages[S]; slot = slotb[S]
        if st[0] == 'g1':
            p, sg = st[1], st[2]
            for mat in range(2):
                for j in range(3):
                    if p != 1:
                        if j == 0: o.e(f's_add_u32 m0, s22, {slot+12288*mat}' + (f'\ns_add_u32 s24, s20, {96*sg*9216+128*PG[p]}' if mat == 0 else ''))
                        ins = f'buffer_load_dwordx4 v{V_DG+j}, s[{40+4*mat}:{43+4*mat}], s24 offen offset:{1024*j} lds'
                    else:
                        o.e(f's_add_u32 m0, s22, {slot+12288*mat+1024*j}\ns_add_u32 s24, s21, {(192*sg+16*j)*9216}')
                        ins = f'buffer_load_dwordx4 v{V_DGH}, s[{40+4*mat}:{43+4*mat}], s24 offen lds'
                    o.f(lambda ins=ins: dmai(ins, ('u', S)), DMAC)
        else:
            for n, b in enumerate(st[1]):
                pre = ''
                if b[0] == 'F':
                    if b[1] != dg['g']:
                        back = dg['g'] is not None and b[1] < dg['g']
                        pre = ''.join(f's_{"sub" if back else "add"}_u32 s{r}, s{r}, s{SC+(dg["g"] if back else b[1])}\n' for r in range(4, 8))
                        dg['g'] = b[1]
                    r, c = rowbase(b[2])
                    pre += f's_add_u32 s24, s{r}, {c}\n'
                    vo = V_DD
                else:
                    r, c = rowbase(b[1])
                    if r >= 6: pre = 's_mov_b32 s24, s8\n'
                    else: pre = f's_add_u32 s24, s{(3, 58)[r-4]}, {c}\n'
                    vo = V_DH
                pre = f's_add_u32 m0, s28, {slot+4096*n}\n' + pre
                o.e(pre)
                o.f(lambda vo=vo: dmai(f'buffer_load_dwordx4 v{vo}, s[48:51], s24 offen lds', ('u', S)), DMAC)
        return o
    def hc_ops(g):
        o = COps(a)
        if g >= 6: return o
        for mh in range(2):
            for j in range(3):
                if j == 0: o.e(f's_add_u32 m0, s22, {(g%3)*24576+mh*12288}\ns_add_u32 s24, s30, {12288*g+73728*mh}')
                o.f(lambda j=j: dmai(f'buffer_load_dwordx4 v{V_L16}, s[12:15], s24 offen offset:{j*1024} sc1 lds', ('dma', g)), DMAC)
        return o
    a(f"""s_mul_i32 s30, s18, {2*73728}
    s_add_u32 s30, s30, s22
    s_add_u32 s30, s30, {WS_HC}
    s_lshl_b32 s31, s18, 1
    s_add_u32 s31, s31, s54
    s_mul_i32 s27, s31, {NSSQ*256}
    s_add_u32 s27, s27, {WS_SSQ}
    v_lshlrev_b32 v8, 2, v9
    s_lshl_b32 s28, s16, 10
    s_mul_i32 s23, s17, {576*1152}
    s_mul_i32 s24, s19, {320*1152}
    s_add_u32 s4, s23, s24
    s_sub_u32 s5, s23, s24
    s_add_u32 s5, s5, {320*1152}
    s_mul_i32 s24, s19, {32*1152}
    s_add_u32 s6, s23, s24
    s_add_u32 s6, s6, {256*1152}
    s_sub_u32 s7, s23, s24
    s_add_u32 s7, s7, {288*1152}
    s_lshl_b32 s9, s19, 6
    s_add_u32 s9, s9, 512
    s_sub_u32 s23, s7, {32*1152}
    s_cmp_eq_u32 s54, 0
    s_cselect_b32 s8, s6, s23
    s_add_u32 s8, s8, s9
    s_lshr_b32 s3, s17, 1
    s_mul_i32 s23, s19, 640""")
    for g in range(4):
        a(f's_add_u32 s24, s3, {g+1}\ns_and_b32 s24, s24, 3\ns_lshl_b32 s24, s24, 7\ns_add_u32 s{SC+g}, s24, s23')
    a(f's_mov_b32 s29, s{SC+3}')
    for g in (3, 2, 1): a(f's_sub_u32 s{SC+g}, s{SC+g}, s{SC+g-1}')
    a('s_add_u32 s3, s4, s9')
    a(f"""s_lshl_b32 s23, s16, 3
    v_add_u32 v26, s23, v30
    v_mul_u32_u24 v26, 1152, v26
    v_lshl_add_u32 v{V_DD}, v31, 4, v26
    v_lshrrev_b32 v25, 2, v9
    v_and_b32 v27, 3, v9
    s_lshl_b32 s23, s16, 4
    v_add_u32 v26, s23, v25
    v_mul_u32_u24 v26, 1152, v26
    v_lshl_add_u32 v{V_DH}, v27, 4, v26
    s_mul_i32 s23, s16, 48
    v_add_u32 v26, s23, v25
    v_mul_u32_u24 v26, 9216, v26
    v_lshl_add_u32 v{V_DGH}, v27, 4, v26
    v_and_b32 v29, 15, v9
    v_lshrrev_b32 v25, 4, v9
    v_lshlrev_b32 v{V_B1}, 10, v25
    v_lshl_add_u32 v{V_B1}, v29, 4, v{V_B1}
    s_lshl_b32 s23, s55, 9
    v_add_u32 v{V_B1}, s23, v{V_B1}
    v_lshl_add_u32 v{V_B2}, v25, 10, v{V_B1}
    s_mul_i32 s23, s54, 12288
    v_add_u32 v{V_B1}, s23, v{V_B1}
    v_xor_b32 v{V_B1x}, 512, v{V_B1}
    s_lshl_b32 s23, s54, 10
    v_add_u32 v{V_B2}, s23, v{V_B2}
    s_lshl_b32 s24, s55, 13
    v_add_u32 v{V_ACTW}, s24, v{V_B2}
    s_lshl_b32 s24, s18, 3
    s_add_u32 s24, s24, s17
    s_lshl_b32 s24, s24, 1
    s_add_u32 s25, s24, s19
    s_xor_b32 s24, s25, 1
    s_mul_i32 s10, s25, 73728
    s_add_u32 s10, s10, {WS_X}
    s_mul_i32 s11, s24, 73728
    s_add_u32 s11, s11, {WS_X}
    s_lshl_b32 s52, s25, 10
    s_lshl_b32 s23, s16, 6
    s_add_u32 s52, s52, s23
    s_add_u32 s52, s52, {FLX}
    s_lshl_b32 s53, s24, 10
    s_lshl_b32 s23, s54, 7
    s_add_u32 s53, s53, s23
    s_add_u32 s53, s53, {FLX}""")
    a(f"""v_bfe_u32 v24, v9, 2, 2
    v_lshl_add_u32 v25, v25, 3, v24
    v_lshlrev_b32 v27, 4, v27
    v_lshl_add_u32 v{V_RH}, v25, 6, v27
    v_lshl_add_u32 v{V_RF}, v25, 7, v27
    v_bfe_u32 v24, v9, 3, 1
    v_xor_b32 v24, s55, v24
    v_lshl_add_u32 v{V_RF}, v24, 6, v{V_RF}
""")
    if P.get('CFHACK'):
        a(f"""v_lshrrev_b32 v27, 1, v27
        v_bfe_u32 v26, v9, 4, 1
        v_lshl_add_u32 v27, v26, 5, v27
        v_lshl_add_u32 v{V_RH}, v25, 6, v27
        v_lshl_add_u32 v{V_RF}, v25, 7, v27
        v_lshl_add_u32 v{V_RF}, v24, 6, v{V_RF}""")
    a(f"""s_lshl_b32 s26, s18, 12
    s_add_u32 s26, s26, {FL3}
    s_mov_b32 s96, 0x3ffff
    s_mov_b32 s97, 0x3ffff
    s_mov_b64 s[98:99], 3""")
    LATEF = P.get('LATEF', 1)
    def f3flag():
        a.wait(vm='pre'); flag_store0(58, None, 255); a('s_add_u32 s58, s5, s9')
    if not LATEF: f3flag()
    else: a('s_cmp_lg_u32 s16, 3\ns_cbranch_scc1 L_w3\ns_waitcnt vmcnt(0)\nL_w3:')
    stamp(a, 8, diag)
    HSEN = P.get('HSEN', 1)
    a('s_cmp_lg_u32 s16, 3\ns_cbranch_scc1 L_c3skip')
    vm0 = list(a.vm)
    if not HSEN:
        chk_issue(26, V_CK, 'c3', 96); chk_verify(26, V_CK, 'c3', 96, 2)
    else:
        a(f's_cmp_ge_u32 s2, 64\ns_cbranch_scc1 L_c3skip\ns_mov_b32 s23, {mega.FLC}')
        chk_verify(23, V_CK, 'ct', None, 8)
        if HF:
            a(f's_lshl_b32 s23, s18, 10\ns_add_u32 s23, s23, {mega.FL1}\ns_bfm_b64 s[100:101], 12, 0')
            chk_issue(23, V_CK, 'hf', 100); chk_verify(23, V_CK, 'hf', 100, 4)
            if P.get('HFD'): a(f's_sleep {P["HFD"]}')
        else:
            a(f"""v_and_b32 v24, 15, v9
            v_min_u32 v24, 8, v24
            v_lshlrev_b32 v24, 12, v24
            v_bfe_u32 v25, v9, 4, 1
            v_lshl_add_u32 v24, v25, 9, v24
            v_lshrrev_b32 v25, 5, v9
            v_mul_u32_u24 v25, {73728//16}, v25
            v_lshl_add_u32 v24, v25, 4, v24
            s_sub_u32 s23, s30, s22
            s_mov_b32 s59, {mega.SPIN}
            L_hprobe:
            s_sleep 3
            buffer_load_dword v25, v24, s[12:15], s23 offen offset:1024 sc1
            s_waitcnt vmcnt(0)
            v_cmp_eq_u32 vcc, -1, v25
            s_sub_u32 s59, s59, 1
            s_cbranch_scc1 L_c3skip
            s_cmp_eq_u64 vcc, 0
            s_cbranch_scc0 L_hprobe""")
    a.vm = vm0
    a('L_c3skip:')
    if P.get('HD'): a(f's_cmp_lt_u32 s2, 64\ns_cbranch_scc1 L_nohd\ns_sleep {P["HD"]}\nL_nohd:')
    a('s_barrier')
    stamp(a, 9, diag); P['mark']('f0')
    for _, f in hc_ops(0) + hc_ops(1): f()
    if LATEF: f3flag()
    a(f'v_add_u32 v247, s22, v{V_L16}')
    HT = 112
    def hread(g):
        for n in range(6): a.lds(f'ds_read_b128 {vr(HT+4*n)}, v247 offset:{(g%3)*24576+(n//3)*12288+(n%3)*1024}', ('hr', g))
    def hcheck(g): P['sentinel'](HT, 24, ('hr', g), lambda: [f() for _, f in (hc_ops(g) + hc_ops(1) if g == 0 else hc_ops(g))], HT+24, lambda: hread(g), g > 0, g == 0)

    Qa = [48, 80, 112, 144]
    PACC = [(Qa[0], Qa[1]), (Qa[2],), (Qa[3], Qa[0]), (Qa[1], Qa[2]), (Qa[3], Qa[0])]
    GACC = {0: Qa[1], 'H': Qa[2], 1: Qa[3], 2: Qa[0], 3: Qa[1]}
    mfs = []; frs = []; fid = {}; srange = []; grp_of = {}
    started = set()
    def addfr(S, key, reg, off, hstep):
        if P.get('CFHACK') and off & 8: off = (off - 8) ^ hstep*2 if False else off - 8
        fid[key] = len(fid); frs[S].append((key, reg, off, hstep)); return key
    def group(S, specs, dsts):
        ks = [addfr(S, *s[:4]) for s in specs]
        for k in ks: grp_of[k] = ks
        for x, (pos, d) in enumerate(dsts):
            seq = list(zip(ks, specs))
            if P.get('SNK', 1) and S >= 6 and x % 2 == 0: seq = seq[::-1]
            for k, s in seq:
                first = d not in started; started.add(d)
                bi = 4*s[4] + pos
                mfs.append((S, k, bi, lambda A, d=d, bi=bi, first=first: f'v_mfma_f32_16x16x32_bf16 {vr(d)}, {A}, {breg(bi)}, {"0" if first else vr(d)}'))
    def g2stage(S, blks, dpos=None):
        F = [(n, b) for n, b in enumerate(blks) if b[0] == 'F']; H = [(n, b) for n, b in enumerate(blks) if b[0] == 'H']
        L = 3 if len(F) == 6 else len(F)
        if len(F) == 4 and P.get('L2', 1): L = 2
        for i in range(0, len(F), L):
            g = F[i][1][1]
            for tau in range(2):
                group(S, [((S, n, tau), V_RF, n*4096+8*tau, 512, b[2]) for n, b in F[i:i+L]],
                      [(pos, GACC[g]+8*pos+4*tau) for pos in (dpos or range(4))])
        for tau in range(2):
            if H: group(S, [((S, n, tau, e), V_RH, n*4096+e*2048+8*tau, 256, b[1+e]) for n, b in H for e in range(2)],
                        [(pos, GACC['H']+8*pos+4*tau) for pos in range(2)])
    for S, st in enumerate(stages):
        frs.append([]); m0 = len(mfs)
        if st[0] == 'g1':
            p, sg = st[1], st[2]
            if sg == 0: started.clear()
            for mat in range(2):
                if p != 1:
                    for tau in range(2):
                        group(S, [((S, mat, tau, j), V_RF, mat*12288+j*4096+8*tau, 512, 3*sg+j) for j in range(3)],
                              [(pos, PACC[p][pos >> 1]+16*(pos & 1)+8*mat+4*tau) for pos in range(4)])
                else:
                    for h3 in range(2):
                        for tau in range(2):
                            group(S, [((S, mat, tau, j), V_RH, mat*12288+j*2048+8*tau, 256, 6*sg+j) for j in range(3*h3, 3*h3+3)],
                                  [(pos, PACC[p][0]+16*pos+8*mat+4*tau) for pos in range(2)])
        else:
            if S == G2 or S == NS-3: started.clear()
            g2stage(S, st[1], (0, 1) if S >= NS-3 else None)
        srange.append((m0, len(mfs)))
    for k3 in range(3):
        S = NS+k3; frs.append([]); m0 = len(mfs); slotb[S] = slotb[NS-3+k3]
        g2stage(S, stages[NS-3+k3][1], (2, 3))
        srange.append((m0, len(mfs)))
    NM = len(mfs)
    lastuse = {}; firstuse = {}
    for i, m in enumerate(mfs):
        lastuse[m[1]] = i; firstuse.setdefault(m[1], i)
    keys = sorted(fid, key=lambda k: fid[k])
    GW = P.get('GW', 1); fu0 = dict(firstuse)
    if GW:
        for k in keys:
            if k[0]: firstuse[k] = min(fu0[q] for q in grp_of[k])
    slots = [[] for _ in range(NM+1)]
    load = [0]*(NM+1); nld = [0]*(NM+1); nsal = [0]*(NM+1); excl = [0]*(NM+1)
    def at(i, c, f):
        i = max(0, min(NM, int(i))); slots[i].append(f)
        if c == LD: nld[i] += 1; c = 4
        if c == DMAC: c = 8; excl[i] = 1
        if c == 0: nsal[i] += 1
        load[i] += c
        return i
    def fits(i, c, cap=8):
        if c == 0: return nsal[i] < 2
        if c == LD: return nld[i] == 0 and load[i] + 4 <= cap
        if c > 8: return load[i] == 0
        return load[i] + c <= cap
    def near(i, c, f, span=8):
        i = int(i)
        for j in range(i, min(i+span, NM)):
            if fits(j, c): return at(j, c, f)
        return at(min(range(i, min(i+span, NM+1)), key=lambda j: load[j] + 4*nld[j]), c, f)
    def put(ops, lo, hi):
        n = len(ops); prev = int(lo)
        for k, (c, f) in enumerate(ops):
            i = max(prev, int(lo + (hi-lo)*k/n))
            prev = near(i, c, f, max(1, min(6, int(hi)-i)))
    place_mem = put
    def fill(ops, lo, hi, W=1):
        lo, hi = int(lo), int(hi)
        info = [regs(f.txt) if hasattr(f, 'txt') else None for c, f in ops]
        def attempt(extra, commit):
            L = load[:]; D = nld[:]; SA = nsal[:]
            todo = list(range(len(ops))); when = {}; credit = 0.0; plan = []
            for i in range(lo, hi):
                credit += extra
                while todo:
                    room = 8 - L[i] + (0 if excl[i] else (int(credit)//4)*4)
                    pick = None
                    for x in range(min(W, len(todo))):
                        k = todo[x]; c = ops[k][0]
                        if info[k] is None and x: break
                        ok = True
                        if x:
                            r, w = info[k]
                            for y in todo[:x]:
                                r2, w2 = info[y]
                                if r & w2 or w & r2 or w & w2: ok = False; break
                        if ok and info[k] and W > 1 and any(when.get(q) == i for q in info[k][0]): ok = False
                        cc = 4 if c == LD else min(c, 8)
                        if ok and (SA[i] < 2 if c == 0 else cc <= room and not (c == LD and D[i])):
                            if pick is None or (cc > min(ops[pick][0], 8) and cc == room): pick = k
                        if info[k] is None: break
                    if pick is None: break
                    c = ops[pick][0]; cc = 4 if c == LD else c
                    over = max(0, L[i] + min(cc, 8) - 8) - max(0, L[i] - 8)
                    credit -= over
                    L[i] += cc; D[i] += c == LD; SA[i] += c == 0
                    if info[pick]:
                        for q in info[pick][1]: when[q] = i
                    todo.remove(pick); plan.append((i, pick))
            if todo: return False
            for i, k in plan: at(i, *ops[k])
            return True
        extra = 0.0
        while not attempt(extra, True): extra += 0.25
    def frac(S, x):
        m0, m1 = srange[S]; return m0 + x*(m1-m0)
    bpos = {}; xwait = {}
    awn = {p: 0 for p in range(5)}; vis = set(); bl = {}
    def barrier(S):
        def f():
            lg = [('f', k[0]) for k in frs[S-1]] if S else []
            if S <= 6 or S == FREEA or S == G2: lg += [('b', k) for k in range(72)]
            if S == G2: assert all(bl[4*sl[('o', k)]+e] == 2 for k in range(3) for e in range(4))
            if S == FREEA: assert all(bl[4*k+e] == 2 for k in range(18) if KS[k][0] == 'o' for e in range(4))
            a.wait(vm=[('u', S)] + xwait.get(S, []), lg=lg)
            for p in range(5):
                if awn[p] == (2 if p == 1 else 4) and ('aw', p) not in a.lg: vis.add(p)
            if not P.get('NOBAR'): a('s_barrier')
            if P.get('SLW') and 9 <= S < 27: a(f's_sleep {P["SLW"]}')
        return f
    def bread1(bi):
        s, pos = bi >> 2, bi & 3; g = s//3
        off = (g % 3)*24576 + (s % 3)*4096 + (pos & 1)*256
        def f():
            bl[bi] = 1; a.lds(f'ds_read_b128 {breg(bi)}, v{(V_B1, V_B1x)[pos >> 1]} offset:{off}', ('b', bi))
        return (5, f)
    prev = 0; cur = {}; leads = []
    for S in range(NS+3):
        m0, m1 = srange[S]
        b = max(prev + (P.get('BG', 5) if S < NS else 0), m0 - SH) if S else 0
        b = min(b, m0)
        bpos[S] = b
        if HSEN and S == 0: at(0, 0, lambda: (a.wait(vm=[('dma', 0)]), hread(0)))
        if HSEN and S < 6: at(b, 0, lambda S=S: hcheck(S))
        if S < NS: at(b, 0, barrier(S))
        for reg in sorted(set(k[1] for k in frs[S])):
            dlt = slotb[S] - cur.get(reg, 0); cur[reg] = slotb[S]
            if dlt: at(b, 4, lambda reg=reg, dlt=dlt: a(f'v_add_u32 v{reg}, {dlt & 0xffffffff}, v{reg}'))
        n = len(frs[S])
        for j, (key, reg, off, hstep) in enumerate(frs[S]):
            i = fid[key]
            r = FR + 4*(i % NFR)
            for hf in range(2):
                pos = max(b, min(int(max(0, m0-SH) + (m1-m0)*(2*j+hf)/(2*n)*RDN/24.0), firstuse[key] - P.get('LM', 10)))
                if i >= NFR: pos = max(pos, lastuse[keys[i-NFR]] + 1)
                pos = max(pos, prev)
                while not fits(pos, LD) and pos < firstuse[key] - P.get('LX', 7): pos += 1
                while nld[pos] >= 2 and pos < firstuse[key] - 2: pos += 1
                assert pos <= firstuse[key], (S, j, pos, firstuse[key])
                pp = prev = pos
                if P.get('NOTR') and 9 <= S < 21: continue
                if P.get('NODUP') and (reg == V_RH or S >= NS-3) and (off & 8): continue
                at(pp, LD, lambda key=key, reg=reg, off=off, hf=hf, r=r, hstep=hstep: a.lds(f'ds_read_b64_tr_b16 {vr(r+2*hf,2)}, v{reg} offset:{off+hstep*hf}', ('f', key)))
            leads.append(firstuse[key]-pp)
            if S < 6 and j == 2:
                q = b
                for x, bi in enumerate(4*(3*S+jj)+pos_ for pos_ in range(4) for jj in range(3)):
                    while not fits(q, LD) and q < m0 + x - 4: q += 1
                    at(q, *bread1(bi))
            prev = pp
    nxt = 3; queue = []
    M1 = P.get('M1', 0.65); dmaend = {}
    for S in range(NS):
        mem = list(hc_ops(S+2)) if S < 4 else []
        while nxt < NS and rel[nxt] <= S:
            queue += [(nxt, x) for x in dma_ops(nxt)]; nxt += 1
        w = bpos[S+1]-bpos[S]
        lim = int(P.get('RATE', 8)*w/48); k = 0; nd = 0
        while k < len(queue) and (queue[k][0] <= S+2 or nd < lim or queue[k][1][0] == DMAC and k and queue[k-1][1][0] != DMAC or (stages[queue[k][0]][0] == 'g1' and k and queue[k][0] == queue[k-1][0])):
            nd += queue[k][1][0] == DMAC; k += 1
        mem += [q[1] for q in queue[:k]]; queue = queue[k:]
        hi = bpos[S] + 1 + (M1 if sum(1 for c, _ in mem if c == DMAC) <= 6 else 0.8)*w
        place_mem(mem, bpos[S]+1, hi)
        dmaend[S] = int(hi)
    assert not queue

    xok = {'i': -1, 'v': -1, 'c3': 0}; s25o = {'k': None}
    def bread2(ks):
        kind, i = KS[ks]; o = COps(a)
        for pos in range(4):
            bi = 4*ks+pos
            if kind == 'o':
                def g(bi=bi, pos=pos):
                    assert (1 if i == 8 else PG.index(i//2)) in vis, (ks, vis)
                    off = LC[i]*2048 + (pos & 1)*256
                    r = (V_B2, V_B2x)[pos >> 1] if off < 65536 else (V_B1, V_B1x)[pos >> 1]
                    bl[bi] = 2; a.lds(f'ds_read_b128 {breg(bi)}, v{r} offset:{off % 65536}', ('b', bi))
                o.f(g, 5)
            else:
                def f(bi=bi, pos=pos):
                    assert xok['v'] >= {0: 0, 1: 0, 8: 0, 2: 1, 3: 1}.get(i, 2), (ks, xok)
                    assert pos == 0 or s25o['k'] == ks
                    s25o['k'] = ks
                    bl[bi] = 2
                    if pos == 0: a(f's_add_u32 s25, s11, {LC[i]*2048}')
                    a.vmem(f'buffer_load_dwordx4 {breg(bi)}, v{(V_B2, V_B2x)[pos >> 1]}, s[12:15], s25 offen offset:{(pos & 1)*256} sc1', ('b', bi))
                o.f(f, DMAC)
        return o
    for g in range(6):
        xwait[g] = [('dma', g)]
        if HSEN and g:
            o = COps(a)
            o.f(lambda g=g: a.wait(vm=[('dma', g)]))
            for n in range(6): o.f(lambda n=n, g=g: a.lds(f'ds_read_b128 {vr(HT+4*n)}, v247 offset:{(g%3)*24576+(n//3)*12288+(n%3)*1024}', ('hr', g)), LD)
            put(o, bpos[g]-P.get('HC0', 24), bpos[g]-12)
            o = COps(a)
            o.f(lambda g=g: a.wait(lg=[('hr', g)])); o.e(P['maxchain'](HT, 24, HT+24))
            fill(o, bpos[g]-9, bpos[g]-1)
    K0 = -2.0*math.log2(math.e)*math.sqrt(2.0/math.pi)
    o = COps(a)
    for j in range(NSSQ): o.f(lambda j=j: (need(xok['c3'] == 2 or not HSEN), a.vmem(f'buffer_load_dword v{V_T+j}, v8, s[12:15], s27 offen offset:{j*256} sc1', 'ssq')), DMAC)
    place_mem(o, frac(4, 0.0), frac(4, 0.7))
    if HSEN:
        near(frac(2, 0.5), DMAC, lambda: (chk_issue(26, V_CK, 'c3', 96), xok.__setitem__('c3', 1)))
        near(frac(3, 0.8), DMAC, lambda: (need(xok['c3'] == 1), chk_verify(26, V_CK, 'c3', 96, 2), xok.__setitem__('c3', 2)))
    o = COps(a)
    o.f(lambda: a.wait(vm='ssq'))
    for j in range(1, NSSQ): o.e(f'v_add_f32 v{V_T}, v{V_T}, v{V_T+j}')
    o.e(f'v_mov_b32 v{V_T+1}, {hexf(1e-5)}\nv_fmac_f32 v{V_T+1}, {hexf(1.0/576)}, v{V_T}\nv_and_b32 v{V_T+2}, 15, v9\nv_lshlrev_b32 v{V_T+2}, 2, v{V_T+2}')
    o.f(lambda: a(f's_lshl_b32 s23, s55, 7\nv_add_u32 v{V_T+2}, s23, v{V_T+2}'), 4)
    o.e(f'v_xor_b32 v{V_T+3}, 128, v{V_T+2}')
    for pos in range(4): o.f(lambda pos=pos: a.lds(f'ds_bpermute_b32 v{V_IR+pos}, v{V_T+2+(pos>>1)}, v{V_T+1} offset:{64*(pos&1)}', 'bp'), LD)
    for q in range(5): o.f(lambda: None, 8)
    o.f(lambda: a.wait(lg='bp'))
    for mt in range(4): o.e(f'v_rsq_f32 v{V_T+4+mt}, v{V_IR+mt}')
    for mt in range(4): o.e(f'v_mul_f32 v{V_C0+mt}, {hexf(K0)}, v{V_T+4+mt}')
    for mt in range(4): o.e(f'v_mul_f32 v{V_T+8+mt}, v{V_T+4+mt}, v{V_T+4+mt}')
    for mt in range(4): o.e(f'v_mul_f32 v{V_C1+mt}, {hexf(0.044715)}, v{V_C0+mt}')
    for mt in range(4): o.e(f'v_mul_f32 v{V_C1+mt}, v{V_C1+mt}, v{V_T+8+mt}')
    fill(o, frac(5, 0.45), frac(6, 0.2))

    aw = {'pi': 0}; xsn = {}
    def gelu_ops(p, pi):
        o = COps(a); acc = PACC[p][pi]
        cb = 2048*LC[8 if p == 1 else 2*PG[p]]
        if pi != aw['pi']: o.e(f'v_xor_b32 v{V_ACTW}, 512, v{V_ACTW}'); aw['pi'] = pi
        if p == 1: o.f(lambda: a(f's_lshl_b32 s23, s55, 13\nv_subrev_u32 v{V_ACTW}, s23, v{V_ACTW}'), 4)
        if p == 2 and pi == 0: o.f(lambda: a(f's_lshl_b32 s23, s55, 13\nv_add_u32 v{V_ACTW}, s23, v{V_ACTW}'), 4)
        if pi == 0: o.e(f's_add_u32 s31, s10, {cb}')
        for grp in range(4):
            mt = grp >> 1; c = 2*pi + mt
            if P.get('NOGELU'): o.e = lambda s: None
            g = [acc + 16*mt + 4*(grp & 1) + i for i in range(4)]
            u = [x + 8 for x in g]
            oo = V_T + 16 + 4*mt + 2*(grp & 1)
            T = [V_T + 8*(grp & 1) + i for i in range(4)]
            Qr = [x + 4 for x in T]
            for i in range(4): o.e(f'v_mul_f32 v{T[i]}, v{g[i]}, v{g[i]}')
            for i in range(4): o.e(f'v_fma_f32 v{T[i]}, v{T[i]}, v{V_C1+c}, v{V_C0+c}')
            for i in range(4): o.e(f'v_mul_f32 v{T[i]}, v{T[i]}, v{g[i]}')
            for i in range(4): o.e(f'v_exp_f32 v{T[i]}, v{T[i]}')
            for i in range(4): o.e(f'v_mul_f32 v{Qr[i]}, v{g[i]}, v{u[i]}')
            for i in range(4): o.e(f'v_fma_f32 v{T[i]}, v{T[i]}, v{V_IR+c}, v{V_IR+c}')
            for i in range(4): o.e(f'v_rcp_f32 v{T[i]}, v{T[i]}')
            for i in range(4): o.e(f'v_mul_f32 v{Qr[i]}, v{Qr[i]}, v{T[i]}')
            o.e(f'v_cvt_pk_bf16_f32 v{oo}, v{Qr[0]}, v{Qr[1]}\nv_cvt_pk_bf16_f32 v{oo+1}, v{Qr[2]}, v{Qr[3]}')
            if grp & 1:
                t1 = f'ds_write_b128 v{V_ACTW}, {vr(V_T+16+4*mt)} offset:{cb+256*mt}'
                t2 = f'buffer_store_dwordx4 {vr(V_T+16+4*mt)}, v{V_ACTW}, s[12:15], s31 offen offset:{256*mt} sc1'
                o.f(lambda t1=t1: (awn.__setitem__(p, awn[p]+1), a.lds(t1, ('aw', p))), 8, t1)
                o.f(lambda t2=t2: (xsn.__setitem__(p, xsn.get(p, 0)+1), a.vmem(t2, ('xs', p))), 8, t2)
        return o
    pH, p1, p2, p3 = pstart[1:5]
    def xflag(p, ck):
        def f():
            assert all(xsn.get(q) == (2 if q == 1 else 4) for q in range(p+1))
            assert ck == 0 or 'clr' not in a.vm
            a.wait(vm=[('xs', p)]); a(f's_add_u32 s23, s52, {256*ck}'); flag_store0(23)
        return f
    def xchk_i(ck):
        def f():
            assert xok['v'] == ck-1
            a(f's_add_u32 s26, s53, {256*ck}'); chk_issue(26, V_CK, ('cx', ck), 98); xok['i'] = ck
        return f
    def xchk_v(ck):
        def f():
            assert xok['i'] == ck
            chk_verify(26, V_CK, ('cx', ck), 98, 1); xok['v'] = ck
        return f
    o = COps(a)
    o.e(f"""s_and_b32 s23, s17, 1
    s_xor_b32 s27, s23, s55
    s_lshl_b32 s23, s23, 9
    v_xor_b32 v{V_B2}, s23, v{V_B2}
    v_xor_b32 v{V_B2x}, 512, v{V_B2}
    v_add_u32 v{V_B1}, 0x10000, v{V_B2}
    v_add_u32 v{V_B1x}, 0x10000, v{V_B2x}""")
    fill(o, frac(p2, 0.0), frac(p2, 0.2))
    o = COps(a)
    o.e(f"""v_mov_b32 v244, -1
    v_mov_b32 v245, -1
    v_mov_b32 v246, -1
    v_mov_b32 v247, -1
    s_lshl_b32 s26, s16, 12
    s_add_u32 s26, s26, s10
    s_add_u32 s26, s26, {2048*28}
    s_lshl_b32 s25, s18, 1
    s_add_u32 s25, s25, s19
    s_mul_i32 s25, s25, 9
    s_lshl_b32 s25, s25, 3
    s_add_u32 s25, s25, s17
    s_lshl_b32 s25, s25, 2
    s_add_u32 s25, s25, s16
    s_lshl_b32 s25, s25, 11
    s_add_u32 s25, s25, {WS_P}
    s_add_u32 s27, s17, 6
    s_and_b32 s27, s27, 6
    s_lshl_b32 s27, s27, 16
    s_add_u32 s100, s25, s27
    s_add_u32 s101, s100, 65536
    s_xor_b32 s27, s17, 1
    s_lshl_b32 s27, s27, 16
    s_add_u32 s25, s25, s27""")
    fill(o, frac(p1, 0.0), frac(p1, 0.3))
    cl = [(V_L16, 26, 1024*q) for q in range(4)] + [(V_L16, sr, off) for sr in (25, 100, 101) for off in (0, 1024)]
    for q, (vo, sr, off) in enumerate(cl if not P.get('NOCLR') else []):
        near(dmaend[p1 + (q*6)//10] + 5*(q & 1), DMAC, lambda vo=vo, sr=sr, off=off: a.vmem(f'buffer_store_dwordx4 v[244:247], v{vo}, s[12:15], s{sr} offen offset:{off} sc1', 'clr'))
    assert dmaend[p1] >= frac(p1, 0.3) and dmaend[p1+5] + 13 < frac(p2, 0.0)
    near(frac(p2+2, 0.5), DMAC, xflag(1, 0))
    near(frac(p2+5, 0.5), DMAC, xchk_i(0))
    put([(8, xchk_v(0))] + bread2(0) + bread2(1) + bread2(2), frac(p3+1, 0.0), frac(p3+4, 0.1))
    near(frac(p3+1, P.get('X2', 0.7)), DMAC, xflag(2, 1))
    near(frac(p3+3, 0.3), DMAC, xchk_i(1))
    put([(8, xchk_v(1))] + bread2(3) + bread2(4), frac(p3+4, 0.2), frac(G2, 0.5))
    put(bread2(5) + bread2(6) + bread2(7) + bread2(8), frac(p3+3, 0.05), frac(p3+4, 0.7))
    put(bread2(9), frac(p3+5, 0.05), frac(p3+5, 0.5))
    put(bread2(10) + bread2(11), frac(G2+1, 0.0), frac(G2+1, 0.6))
    near(frac(G2, P.get('X3', 0.8)), DMAC, xflag(3, 2))
    near(frac(G2+1, 0.7), DMAC, xchk_i(2))
    put([(8, xchk_v(2))] + bread2(12) + bread2(13), frac(G2+2, 0.3), frac(G2+2, 0.75))
    late = bread2(16) + bread2(17)
    place_mem(late, frac(SL, 0) - P.get('LL', 80), frac(SL, 0) - P.get('LL', 80) + 24)
    for x, op in enumerate(y for z in zip(bread2(14), bread2(15)) for y in z): at(bpos[G2+3] + 2*x, *op)
    o = COps(a)
    o.f(lambda: a.wait(vm=[('b', 71)])); o.e(P['maxchain'](BX, 32, V_T))
    fill(o, frac(SL, 0)-16, frac(SL, 0)-1)
    at(frac(SL, 0.0), 0, lambda: P['sentinel'](BX, 32, ('b', 71), lambda: [g() for _, g in late], V_T, None, True))
    o = COps(a)
    o.e(f"""s_lshl_b32 s23, s18, 1
    s_add_u32 s23, s23, s19
    s_mul_i32 s20, s23, {9*65536}
    s_add_u32 s20, s20, {WS_P}
    s_mul_i32 s21, s23, {9*2048}
    s_add_u32 s21, s21, {FL4}
    s_lshl_b32 s23, s16, 11
    s_add_u32 s40, s20, s23
    s_lshl_b32 s23, s16, 9
    s_add_u32 s41, s21, s23
    s_lshl_b32 s23, s17, 13
    s_add_u32 s42, s40, s23
    s_add_u32 s20, s20, s23
    s_lshl_b32 s23, s17, 6
    s_add_u32 s44, s41, s23
    s_add_u32 s21, s21, s23
    s_lshl_b32 s23, s54, 1
    s_add_u32 s23, s23, s27
    s_lshl_b32 s45, s23, 11
    s_add_u32 s20, s20, s45
    s_add_u32 s20, s20, {8*65536}
    s_lshl_b32 s45, s23, 9
    s_add_u32 s21, s21, s45
    s_add_u32 s21, s21, {8*2048}""")
    fill(o, frac(G2+2, 0.8), frac(G2+3, 0.5))
    ocnt = {'n': 0}; stn = {}
    def owner(g, pos, dst, sh, base, hreg):
        if g == 'H': return f's_mov_b32 s{dst}, s{hreg}'
        t = (f's_xor_b32 s{dst}, s17, 1\n' if pos == 0 else f's_mov_b32 s{dst}, s17\n')
        if g != 3: t += f's_add_u32 s{dst}, s{dst}, {2*(g+1)}\ns_and_b32 s{dst}, s{dst}, 7\n'
        return t + f's_lshl_b32 s{dst}, s{dst}, {sh}\ns_add_u32 s{dst}, s{dst}, s{base}'
    def out_ops(g, pos):
        o = COps(a); acc = GACC[g] + 16*pos
        oo = V_T + 8*(ocnt['n'] % 2); ocnt['n'] += 1
        o.e(owner(g, pos, 31, 16, 42, 20))
        for hf in range(2):
            for i in range(4): o.e(f'v_cvt_pk_bf16_f32 v{oo+4*hf+i}, v{acc+8*hf+2*i}, v{acc+8*hf+2*i+1}')
            o.f(lambda hf=hf: (stn.__setitem__((g, pos), stn.get((g, pos), 0)+1), a.vmem(f'buffer_store_dwordx4 {vr(oo+4*hf)}, v{V_L16}, s[12:15], s31 offen offset:{hf*1024} sc1', ('st', g, pos))), 8)
        return o
    def oflag(g, pos):
        def f():
            assert stn.get((g, pos)) == 2
            a.wait(vm=[('st', g, pos)]); a(owner(g, pos, 23, 11, 44, 21)); flag_store0(23)
        return (DMAC, f)
    fill(gelu_ops(0, 0), frac(pH, 0.25), frac(p1, 0.0), P.get('GWIN', 40))
    fill(gelu_ops(0, 1) + gelu_ops(1, 0), frac(p1, 0.0), frac(p2, 0.0), P.get('GWIN', 40))
    fill(gelu_ops(2, 0) + gelu_ops(2, 1), frac(p2, 0.2), frac(p2+5, 0.95), P.get('GWIN', 40))
    fill(gelu_ops(3, 0) + gelu_ops(3, 1), frac(p3, 0.2), frac(p3+5, P.get('GE3', 0.95)), P.get('GWIN', 40))
    fill(gelu_ops(4, 0) + gelu_ops(4, 1), frac(G2, 0.2), frac(G2+P.get('GE4', 2), P.get('GE4f', 0.3)), P.get('GWIN', 40))
    if P.get('OS', 0) == 0:
        fill(out_ops(0, 0) + out_ops(0, 1) + out_ops('H', 0), frac(SB, 0.2), frac(SB, 0.95))
        put([oflag(0, 0), oflag(0, 1), oflag('H', 0)], frac(SCn+1, 0.0), frac(SCn+1, 0.28))
        fill(out_ops(1, 0) + out_ops(1, 1), frac(SCn, 0.22), frac(SCn, 0.7))
        put([oflag(1, 0), oflag(1, 1)], frac(SCn+2, 0.78), frac(SCn+2, 0.95))
    else:
        put(out_ops(0, 0) + out_ops(0, 1) + out_ops('H', 0), frac(SB, 0.2), frac(SB+1, 0.95))
        put(out_ops(1, 0) + out_ops(1, 1), frac(SCn, 0.22), frac(SCn+1, 0.25))
        put([oflag(0, 0), oflag(0, 1), oflag('H', 0)], frac(SCn+2, 0.78), frac(SCn+2, 0.98))
        put([oflag(1, 0), oflag(1, 1)], frac(SD+P['OS'], 0.1), frac(SD+P['OS'], 0.4))
    fill(out_ops(2, 0) + out_ops(2, 1), frac(SD, 0.5), frac(SD+1, 0.5))
    fill(out_ops(3, 0), frac(SO, 0.35), frac(SO, 0.7))
    RES = V_T+16; MU = 10; CS = 14; CR = 13
    V_OUT, V_OUTC, V_CL = V_B1, V_B1x, 246
    o = COps(a)
    o.e(f"""s_lshl_b32 s23, s18, 1
    s_add_u32 s23, s23, s54
    s_mul_i32 s30, s23, 73728
    s_add_u32 s30, s30, {WS_HC}
    s_lshl_b32 s22, s23, 8
    s_add_u32 s22, s22, {WS_MU}
    s_mul_i32 s10, s23, 2304
    s_xor_b32 s27, s27, 1
    s_lshl_b32 s23, s55, 6
    s_add_u32 s52, s23, s29
    v_and_b32 v16, 15, v9
    v_lshrrev_b32 v17, 4, v9
    v_lshlrev_b32 v18, 10, v17
    v_lshl_add_u32 v18, v16, 4, v18
    v_lshlrev_b32 v8, 2, v16
    s_lshl_b32 s23, s52, 6
    s_add_u32 s23, s23, s30
    s_lshl_b32 s25, s27, 9
    s_add_u32 s23, s23, s25""")
    for hf in range(2): o.f(lambda hf=hf: a.vmem(f'buffer_load_dwordx4 {vr(RES+4*hf)}, v18, s[12:15], s23 offen offset:{hf*256} sc1', 'res'), DMAC)
    o.e(f's_lshl_b32 s25, s27, 7\ns_add_u32 s23, s22, s25')
    for hf in range(2): o.f(lambda hf=hf: a.vmem(f'buffer_load_dword v{MU+hf}, v8, s[12:15], s23 offen offset:{64*hf} sc1', 'res'), DMAC)
    o.e(f"""v_and_b32 v19, 3, v9
    v_bfe_u32 v20, v9, 2, 2
    v_lshlrev_b32 v8, 2, v19
    s_lshl_b32 s25, s55, 7
    s_add_u32 s23, s22, s25
    s_lshl_b32 s25, s17, 4
    s_add_u32 s23, s23, s25""")
    o.f(lambda: a.vmem(f'buffer_load_dword v{MU+2}, v8, s[12:15], s23 offen sc1', 'res'), DMAC)
    o.e(f"""v_lshlrev_b32 v18, 10, v20
    v_lshl_add_u32 v18, v19, 4, v18
    v_lshl_add_u32 v18, v17, 2, v18
    s_lshl_b32 s23, s9, 6
    s_add_u32 s23, s23, s30
    s_lshl_b32 s25, s55, 9
    s_add_u32 s23, s23, s25
    s_lshl_b32 s25, s17, 6
    s_add_u32 s23, s23, s25""")
    o.f(lambda: a.vmem(f'buffer_load_dword v{CR}, v18, s[12:15], s23 offen sc1', 'res'), DMAC)
    o.e(f"""v_lshlrev_b32 v{V_CL}, 13, v17
    v_lshl_add_u32 v{V_CL}, v20, 8, v{V_CL}
    v_lshl_add_u32 v{V_CL}, v19, 4, v{V_CL}
    s_lshr_b32 s25, s17, 2
    s_lshl_b32 s25, s25, 10
    s_and_b32 s23, s17, 3
    s_lshl_b32 s23, s23, 6
    s_add_u32 s25, s25, s23
    s_add_u32 s11, s40, s25
    s_add_u32 s11, s11, {8*65536}
    s_mov_b32 s23, 73728
    v_mul_lo_u32 v{V_OUT}, v16, s23
    v_lshl_add_u32 v{V_OUT}, v17, 4, v{V_OUT}
    v_mul_lo_u32 v{V_OUTC}, v19, s23
    v_lshl_add_u32 v{V_OUTC}, v20, 4, v{V_OUTC}
    v_lshl_add_u32 v{V_OUTC}, v17, 2, v{V_OUTC}
    s_mul_i32 s23, s27, 1152
    s_add_u32 s52, s52, s23
    s_add_u32 s52, s52, s10
    s_mul_i32 s23, s55, 1152
    s_add_u32 s53, s23, s10
    s_add_u32 s53, s53, s9
    s_mul_i32 s23, s17, {4*73728}
    s_add_u32 s53, s53, s23
    s_add_u32 s30, s41, {8*2048}
    s_lshl_b32 s23, s17, 16
    s_add_u32 s40, s40, s23
    s_lshl_b32 s23, s17, 11
    s_add_u32 s41, s41, s23
    s_and_b32 s23, s17, 6
    s_lshl_b32 s25, 0x0303, s23
    s_lshr_b32 s96, s25, 2
    s_and_b32 s96, s96, 0xff
    s_mov_b32 s97, 0
    s_lshr_b32 s98, s25, 4
    s_and_b32 s98, s98, 0xff
    s_or_b32 s96, s96, s98
    s_lshr_b32 s98, s25, 6
    s_and_b32 s98, s98, 0xff
    s_mov_b32 s99, 0
    s_mov_b32 s100, 0x3f80
    s_mov_b32 s101, 0x3f800000
    s_mov_b64 s[46:47], 0xff""")
    fill(o, frac(SCn+1, 0.3), frac(SCn+2, 0.75))
    def accum(o, dst, src, n, plain=False):
        for i in range(n):
            if plain:
                o.e(f'v_lshlrev_b32 v{V_B2}, 16, v{src+i}\nv_and_b32 v{V_ACTW}, 0xffff0000, v{src+i}\nv_add_f32 v{dst+2*i}, v{V_B2}, v{plain}\nv_add_f32 v{dst+2*i+1}, v{V_ACTW}, v{plain}')
                continue
            o.e(f'v_dot2c_f32_bf16 v{dst+2*i}, s100, v{src+i}\nv_dot2c_f32_bf16 v{dst+2*i+1}, s101, v{src+i}')
    def pops(x, reg):
        o = COps(a)
        if x == 1: o.e('s_xor_b32 s23, s17, 1')
        else: o.e(f's_and_b32 s23, s17, 6\ns_add_u32 s23, s23, {x}\ns_and_b32 s23, s23, 7')
        o.e('s_lshl_b32 s23, s23, 13\ns_add_u32 s23, s23, s40')
        for hf in range(2):
            o.f(lambda hf=hf: a.vmem(f'buffer_load_dwordx4 {vr(reg+4*hf)}, v{V_L16}, s[12:15], s23 offen offset:{hf*1024} sc1', ('p', x)), DMAC)
        return o
    def pload(x, reg):
        for _, g in pops(x, reg): g()
    SUM = Qa[2]+16; CL = Qa[2]; PL = Qa[3]
    o = COps(a)
    o.f(lambda: a.wait(vm='res'))
    accum(o, SUM, RES, 4, MU); accum(o, SUM+8, RES+4, 4, MU+1)
    accum(o, CS, CR, 1, MU+2)
    for i in range(8): o.e(f'v_mov_b32 v{CL+8+i}, 0')
    fill(o, frac(SD+1, 0.55), frac(SO, 0.3))
    PD = Qa[0]
    put([(DMAC, lambda: chk_issue(41, V_CK, 'cA', 96)), (DMAC, lambda: chk_issue(30, 244, 'cC', 46))], frac(SO, P.get('CI', 0.0)), frac(SO, P.get('CI', 0.0))+4)
    o = COps(a)
    o.f(lambda: chk_verify(41, V_CK, 'cA', 96, 1), 8)
    for n, x in enumerate((6, 7, 4, 5)): o += pops(x, PL+8*n)
    o.f(lambda: chk_verify(30, 244, 'cC', 46, 1), 8)
    for p in range(2):
        o.f(lambda p=p: (a.vmem(f'buffer_load_dwordx4 {vr(CL+4*p)}, v{V_CL}, s[12:15], s11 offen sc1', 'cl'), a('s_add_u32 s11, s11, 32768')), DMAC)
    o += pops(2, PD+8) + pops(3, PD+16)
    put(o, frac(SO+1, P.get('CV', 0.6)), frac(SO+2, 0.95))
    if P.get('SHOW'): print('load', load); print('leads', leads); print('bpos', [srange[S][0]-bpos[S] for S in range(NS+3)]); print([(S, slotb[S]//1024, rel[S]) for S in range(NS)])
    for i in range(NM):
        for f in slots[i]: f()
        S, key, bi, mk = mfs[i]
        if diag and P.get('ST'):
            for q, SS in enumerate(P['ST']):
                if i == srange[SS][0]: stamp(a, 1+q, True)
        if diag and P.get('RT'):
            r0, r1 = (9, 21) if P['RT'] == 1 else P['RT']
            if i == srange[r0][0]: a('s_memtime s[62:63]\ns_memrealtime s[64:65]')
            if i == srange[r1][0]: a('s_memtime s[66:67]\ns_memrealtime s[68:69]')
        if diag and i == srange[6][0]: stamp(a, 10, True)
        if diag and i == srange[G2][0]: stamp(a, 11, True)
        if i == srange[G2][0]: P['mark']('g2')
        if i == srange[6][0]: P['mark']('f1')
        assert bl.get(bi) == (1 if S < G2 else 2), (i, S, bi)
        a.wait(vm=[('b', bi)], lg=[('f', k) for k in (grp_of[key] if GW and S else [key])] + [('b', bi)])
        a(mk(vr(FR + 4*(fid[key] % NFR))))
    for f in slots[NM]: f()
    stamp(a, 12, diag); P['mark']('mend')
    pload(1, PD)
    o = COps(a)
    OWN = GACC[3]+16
    for n, x in enumerate((6, 7, 4, 5)):
        o.f(lambda x=x: a.wait(vm=[('p', x)])); accum(o, SUM, PL+8*n, 8)
    o.f(lambda: a.wait(vm='cl'))
    C8 = CL+8
    for p in range(2): accum(o, C8, CL+4*p, 4)
    for i in range(16): o.e(f'v_add_f32 v{SUM+i}, v{SUM+i}, v{OWN+i}')
    for i in range(4): o.e(f'v_permlane32_swap_b32 v{C8+i}, v{C8+4+i}')
    for i in range(4): o.e(f'v_add_f32 v{C8+i}, v{C8+i}, v{C8+4+i}')
    o.e('s_nop 1')
    for i in range(2): o.e(f'v_permlane16_swap_b32 v{C8+i}, v{C8+2+i}')
    o.e('s_nop 1')
    for i in range(2): o.e(f'v_add_f32 v{CS+i}, v{CS+i}, v{C8+i}')
    for i in range(2): o.e(f'v_add_f32 v{CS+i}, v{CS+i}, v{C8+2+i}')
    o.e(f'v_cvt_pk_bf16_f32 v{CR}, v{CS}, v{CS+1}')
    for _, g in o: g()
    if not P.get('NOC'): a.vmem(f'buffer_store_dword v{CR}, v{V_OUTC}, s[32:35], s53 offen', 'out')
    a(f's_add_u32 s53, s52, {16*73728}')
    P['sentinel'](PD, 24, ('p', 1), lambda: (pload(2, PD+8), pload(3, PD+16), pload(1, PD)), V_T, inline=True)
    stamp(a, 13, diag)
    o = COps(a)
    for hf in range(2):
        for n in range(3): accum(o, SUM+8*hf, PD+8*n+4*hf, 4)
    for _, g in o: g()
    for hf in range(2):
        if hf: a('s_nop 0')
        for i in range(4): a(f'v_cvt_pk_bf16_f32 v{RES+4*hf+i}, v{SUM+8*hf+2*i}, v{SUM+8*hf+2*i+1}')
        if P.get('OH'):
            a(f's_lshl_b32 s23, s2, 2\ns_add_u32 s23, s23, s16\ns_lshl_b32 s23, s23, 11')
            a.vmem(f'buffer_store_dwordx4 {vr(RES+4*hf)}, v{V_L16}, s[32:35], s23 offen offset:{1024*hf} {P["OH"].strip()}', 'out')
        else: a.vmem(f'buffer_store_dwordx4 {vr(RES+4*hf)}, v{V_OUT}, s[32:35], s{52+hf} offen', 'out')
```

```python
from asmlib import *
from layout import *
import math

KNAME = 'sequential_preLN__spectral_gfnet__geglu_ffn__prompt_kernel'
FLB = 0x2E00000
FL1 = FLB
FL2 = FL1 + 9*4096
FL3 = FL2 + 9*4096
FLW = FL3 + 32*2048
FLC = FLW
FLC2 = FLW + 16384
FLCx = FLW + 24*4096
FL4 = FLCx + 4096
TKC = 0x2F80000
FLX = 0x2F00000
WS_WP = WS_H
LDS_G = 36864
LDS_HS = 147456
LDS_ST = 159744
LDS_SY = LDS_ST + 1536
LDS_ID = LDS_SY + 16
LDS_TOTAL = LDS_SY + 64
LDS_W = 110592
LDS_BN = 147456
WS_JUNK = 0x09C0000
TOK = 56
SPIN = 50000

def stamp(a, idx, on):
    if on: a(f's_memtime s[{60+2*idx}:{61+2*idx}]')
def rstamp(a, idx, on):
    if on: a(f's_memrealtime s[{60+2*idx}:{61+2*idx}]')

def srd(a, d, lo, size):
    a(f's_mov_b32 s{d}, s{lo}\ns_mov_b32 s{d+1}, s{lo+1}\ns_mov_b32 s{d+2}, {size}\ns_mov_b32 s{d+3}, 0x20000')

def spread(a, mf, fillers, lo=0, hi=None):
    n = len(mf)
    if hi is None: hi = n
    span = max(hi - lo, 1); done = 0
    for i, m in enumerate(mf):
        m()
        if i >= lo:
            want = min(len(fillers), -(-len(fillers)*(i-lo+1)//span))
            while done < want:
                fillers[done](); done += 1
    while done < len(fillers):
        fillers[done](); done += 1

class Ops(list):
    def __init__(self, a): super().__init__(); self.a = a
    def e(self, s):
        for line in s.split('\n'):
            if line.strip(): self.append(lambda line=line: self.a(line))
    def f(self, fn): self.append(fn)

def gen_mega(diag=False, R=26, FPX=2, UP=12, RATE0=2, WSC='sc1', NOSHUF=False, SLEEP=0, FE=False, PACE=1, PRE=16, G1=18, G2S=False, NT='nt', G0=2, GPK=True, NTX='nt', NTW='', G1W=2, NTX2='', P128=4, PF=True, **kw):
    a = Asm()
    name = KNAME
    MK = kw.get('MK')
    _stamp = globals()['stamp']
    PROBE = kw.get('PROBE')
    def stamp(a_, idx, on):
        if MK is None or idx == 14: _stamp(a_, idx, on)
    def mark(nm):
        if diag and MK and nm in MK: _stamp(a, 1 + MK.index(nm), True)
        if PROBE == nm: a('s_memrealtime s[62:63]')
    lbl = {'n': 0}
    def L(p):
        lbl['n'] += 1; return f'L_{p}{lbl["n"]}'
    V_L8 = 250
    V_F0 = 251
    V_TK = 252
    V_MU = 254
    V_CK = 248

    cold = []
    class outline:
        def __enter__(self): self.n = len(a.L); self.vm = list(a.vm); self.lg = list(a.lg)
        def __exit__(self, *e):
            cold.extend(a.L[self.n:]); del a.L[self.n:]; a.vm = self.vm; a.lg = self.lg
    def chk_ld(soff, vdst, smask):
        ld = f'buffer_load_dwordx2 {vr(vdst,2)}, v{V_L8}, s[12:15], s{soff} offen sc1'
        if smask is None: return ld
        return f's_mov_b64 exec, s[{smask}:{smask+1}]\n{ld}\ns_mov_b64 exec, -1'
    def chk_issue(soff, vdst, tag, smask=None):
        a(chk_ld(soff, vdst, smask)); a.vm.append(tag)
    def chk_verify(soff, vdst, tag, smask, sleep=None):
        a.wait(vm=[tag])
        ok, lp = L('ok'), L('lp')
        test = f'v_cmp_eq_u64 vcc, s[{TOK}:{TOK+1}], {vr(vdst,2)}\ns_nop 1\n'
        test += (f's_orn2_b64 vcc, vcc, s[{smask}:{smask+1}]\n' if smask is not None else '') + 's_cmp_eq_u64 vcc, -1\n'
        a(test + f's_cbranch_scc0 {lp}s\n{ok}:')
        with outline():
            a(f'{lp}s:\ns_mov_b32 s59, {SPIN}\n{lp}:')
            sl = SLEEP if sleep is None else sleep
            if sl: a(f's_sleep {sl}')
            a(chk_ld(soff, vdst, smask) + f'\ns_waitcnt vmcnt(0)\ns_sub_u32 s59, s59, 1\ns_cbranch_scc1 {ok}')
            a(test + f's_cbranch_scc0 {lp}\ns_branch {ok}')
    def flag_store(soff, vt=None, vf=None):
        if vf is None and kw.get('FX', 1):
            a('s_mov_b64 exec, 1'); a.vmem(f'buffer_store_dwordx2 {vr(V_TK,2)}, off, s[12:15], s{soff} sc1', 'fl'); a('s_mov_b64 exec, -1')
        else: a.vmem(f'buffer_store_dwordx2 {vr(vt or V_TK,2)}, v{vf or V_F0}, s[12:15], s{soff} offen sc1', 'fl')
    def tok_issue(off=0):
        a.vmem(f'buffer_load_dwordx2 {vr(V_TK,2)}, off, s[36:39], 0 offset:{off} sc1', 'tok')
    def tok_verify(off=0):
        a.wait(vm='tok')
        ok, lp = L('ok'), L('lp')
        rd = f'v_readfirstlane_b32 s{TOK}, v{V_TK}\nv_readfirstlane_b32 s{TOK+1}, v{V_TK+1}\ns_nop 1\ns_cmp_lg_u32 s{TOK}, 0\n'
        a(rd + f's_cbranch_scc1 {ok}\ns_mov_b32 s59, {SPIN}\n{lp}:')
        a(f's_sleep 4\nbuffer_load_dwordx2 {vr(V_TK,2)}, off, s[36:39], 0 offset:{off} sc1\ns_waitcnt vmcnt(0)\ns_sub_u32 s59, s59, 1\ns_cbranch_scc1 {ok}')
        a(rd + f's_cbranch_scc0 {lp}\n{ok}:')
    def lds_arrive(k, vt):
        a.waitall(vm=False)
        a(f'v_mov_b32 v{vt}, {LDS_SY+4*k}\nv_mov_b32 v{vt+1}, 1')
        a.lds(f'ds_add_u32 v{vt}, v{vt+1}', 'arr')
    def lds_wait(k, vt, n=192, slp=False):
        lp = L('ls')
        a(f'v_mov_b32 v{vt}, {LDS_SY+4*k}\ns_branch {lp}b\n{lp}:\ns_sleep 1\n{lp}b:\nds_read_b32 v{vt+1}, v{vt}\ns_waitcnt lgkmcnt(0)\nv_readfirstlane_b32 s59, v{vt+1}\ns_nop 1\ns_cmp_ge_u32 s59, {n}\ns_cbranch_scc0 {lp}' if slp else
          f'v_mov_b32 v{vt}, {LDS_SY+4*k}\n{lp}:\nds_read_b32 v{vt+1}, v{vt}\ns_waitcnt lgkmcnt(0)\nv_readfirstlane_b32 s59, v{vt+1}\ns_nop 1\ns_cmp_ge_u32 s59, {n}\ns_cbranch_scc0 {lp}')
        a.lg = []

    a.raw(kernel_header(name))
    a(f'''s_cmp_ge_u32 s2, 256
    s_cbranch_scc1 L_end
    s_getpc_b64 s[44:45]
    L_pc:
    s_load_dwordx2 s[4:5], s[0:1], 0
    s_load_dwordx4 s[48:51], s[0:1], 8
    s_load_dwordx4 s[36:39], s[0:1], 64''')
    if PROBE: a('s_memrealtime s[60:61]\ns_mov_b64 s[62:63], 0')
    if diag:
        for i in range(1, 16): a(f's_mov_b64 s[{60+2*i}:{61+2*i}], 0')
        a('s_memtime s[60:61]\ns_memrealtime s[92:93]')
    a(f'''v_lshrrev_b32 v8, 6, v0
    v_and_b32 v9, 63, v0
    v_readfirstlane_b32 s16, v8
    v_lshlrev_b32 v{V_L8}, 6, v9
    s_cmp_ge_u32 s2, 64
    s_cbranch_scc1 L_fftwg
    s_mov_b32 s46, L_codeend - L_pc
    s_mov_b32 s47, 0x20000
    s_lshl_b32 s23, s16, 13
    v_lshl_add_u32 v11, v9, 7, s23
    buffer_load_dword v254, v11, s[44:47], 0 offen {kw.get('CF', '')}
    s_branch L_pure
    L_fftwg:
    v_mov_b32 v10, {LDS_SY}
    v_mov_b32 v12, 0
    v_mov_b32 v13, 0
    v_mov_b32 v14, 0
    v_mov_b32 v15, 0
    ds_write_b128 v10, v[12:15]
    s_and_b32 s33, s2, 7
    s_lshr_b32 s34, s2, 3
    s_sub_u32 s34, s34, 8
    s_cmp_eq_u32 s16, 3
    s_cbranch_scc1 L_he''')
    def ws_srd():
        a(f'''s_waitcnt lgkmcnt(0)
        s_mov_b32 s12, s38
        s_mov_b32 s13, s39
        s_mov_b32 s14, {WS_SIZE}
        s_mov_b32 s15, 0x20000
        s_mov_b32 s38, 256
        s_mov_b32 s39, 0x20000
        v_min_u32 v{V_F0}, 1, v9
        v_lshlrev_b32 v{V_F0}, 31, v{V_F0}''')

    def ticket(cap, off, base):
        lp = L('tk')
        a(f'''s_getreg_b32 s30, hwreg(HW_REG_XCC_ID)
        s_mov_b32 s28, 7
        {lp}:
        s_and_b32 s30, s30, 7
        s_lshl_b32 s31, s30, 7
        s_add_u32 s31, s31, {TKC+off}
        s_mov_b32 s35, 1
        s_atomic_add s35, s[12:13], s31 glc
        s_waitcnt lgkmcnt(0)
        s_add_u32 s30, s30, 1
        s_cmp_lt_u32 s35, {cap}
        s_cbranch_scc1 {lp}x
        s_sub_u32 s28, s28, 1
        s_cbranch_scc0 {lp}
        s_lshr_b32 s35, s2, 3
        s_and_b32 s30, s2, 7
        s_add_u32 s30, s30, 1
        {lp}x:
        s_sub_u32 s30, s30, 1
        s_add_u32 s35, s35, {base}
        s_lshl_b32 s35, s35, 3
        s_add_u32 s35, s35, s30
        v_mov_b32 v10, {LDS_ID}
        v_mov_b32 v11, s35
        ds_write_b32 v10, v11
        s_waitcnt lgkmcnt(0)''')
    def get_id(vt, tok=False):
        a(f'v_mov_b32 v{vt}, {LDS_ID}')
        if tok: a(f'ds_read_b64 {vr(V_TK,2)}, v{vt} offset:8')
        a(f'ds_read_b32 v{vt}, v{vt}\ns_waitcnt lgkmcnt(0)\nv_readfirstlane_b32 s35, v{vt}')
        if tok: a(f'v_readfirstlane_b32 s{TOK}, v{V_TK}\nv_readfirstlane_b32 s{TOK+1}, v{V_TK+1}')
        a('s_nop 1')
        a.lg = []
    XV = 16; TB = 64; ACC = [136, 168]; XB = 200; TW = 216; ST = 222; TMP = 230
    def xreg(t, s): return vr(36*t + 4*s, 4, 'a')
    a(f'''s_mul_i32 s17, s34, 43
    s_lshr_b32 s17, s17, 7
    s_mul_i32 s18, s17, 3
    s_sub_u32 s18, s34, s18
    s_lshl_b32 s23, s33, 3
    s_add_u32 s17, s17, s23
    v_and_b32 v1, 31, v9
    v_lshrrev_b32 v2, 5, v9
    v_lshrrev_b32 v3, 2, v1
    s_mov_b32 s23, 73728
    v_mul_lo_u32 v4, v3, s23
    v_and_b32 v5, 3, v9
    v_lshl_add_u32 v4, v5, 4, v4
    v_lshl_add_u32 v4, v2, 6, v4
    s_mul_i32 s20, s17, 1152''')
    a('s_mul_i32 s23, s16, 384\ns_add_u32 s25, s20, s23')
    def rot_setup():
        a('s_mul_i32 s19, s18, 3\ns_add_u32 s19, s19, s16')
        for g in range(3):
            a(f'''s_add_u32 s23, s16, {g}
            s_cmp_ge_u32 s23, 3
            s_cselect_b32 s24, 3, 0
            s_sub_u32 s{28+g}, s23, s24''')
    V_L16 = 247
    def xload(t, s):
        a.lds(f'ds_read_b128 {xreg(t,s)}, v{V_L16} offset:{(s*4+t)*1024}', ('x', t, s))
    a(f's_mov_b32 s10, {NB}\ns_mov_b32 s11, 0x20000\ns_mul_i32 s24, s16, 12288')
    mark('t0'); a('s_waitcnt lgkmcnt(0)\ns_mov_b32 s8, s4\ns_mov_b32 s9, s5'); mark('karg')
    for t in range(4):
        for q in range(3):
            a(f's_add_u32 m0, s24, {(q*4+t)*1024}\ns_add_u32 s23, s25, {t*8*73728+128*q}')
            a.vmem(f'buffer_load_dwordx4 v4, s[8:11], s23 offen {NTX} lds', ('xd', t))
    mark('xiss')
    EB = '' if kw.get('XB', 1) else 's_barrier'
    a(f'''{EB}
    s_branch L_p1
    L_he:
    s_waitcnt lgkmcnt(0)
    {EB}
    s_branch L_help
''')
    if kw.get('PAD', 1): a.raw('.p2align 12')
    a('L_p1:')
    rot_setup()
    ws_srd()
    a(f'v_lshlrev_b32 v{V_L16}, 4, v9')
    a(f'''s_lshl_b32 s23, s19, 5
    s_add_u32 s23, s23, 1
    v_add_u32 v6, s23, v1
    v_cvt_f32_u32 v6, v6
    v_mul_f32 v7, {hexf(1.0/576)}, v6
    v_mul_f32 v10, {hexf(1.0/18)}, v6
    v_cvt_f32_u32 v11, v2''')
    PM = 'op_sel:[0,0] op_sel_hi:[0,1]'; PF_ = 'op_sel:[1,1,0] op_sel_hi:[1,0,1]'
    OFS = 136
    for q in range(4): a(f'v_mul_f32 v12, {hexf(q+0.5)}, v7\nv_cos_f32 v{OFS+2*q}, v12\nv_sin_f32 v{OFS+2*q+1}, v12')
    a(f'v_mul_f32 v7, {hexf(3.5)}, v7')
    for q in range(8): a(f'v_mul_f32 v{OFS+q}, {hexf(2.0**-55)}, v{OFS+q}')
    E = lambda e: 152 + 2*e
    for s in range(9):
        a(f'''v_add_f32 v12, {hexf(2.0*s)}, v11
        v_mul_f32 v12, v12, v10
        v_fract_f32 v12, v12
        v_add_f32 v12, v12, v7
        v_cos_f32 v14, v12
        v_sin_f32 v15, v12
        s_nop 0''')
        for q in range(4): a(f'v_pk_mul_f32 {vr(E(4+q),2)}, {vr(OFS+2*q,2)}, v[14:15] {PM}')
        for q in range(4): a(f'v_pk_fma_f32 {vr(E(3-q),2)}, {vr(OFS+2*q,2)}, v[14:15], {vr(E(4+q),2)} {PF_} neg_hi:[1,0,0]')
        for q in range(4): a(f'v_pk_fma_f32 {vr(E(4+q),2)}, {vr(OFS+2*q,2)}, v[14:15], {vr(E(4+q),2)} {PF_} neg_lo:[1,0,0]')
        for e in range(0, 8, 2):
            a(f'v_cvt_pk_bf16_f32 v{TB+8*s+e//2}, v{E(e)}, v{E(e+1)}\nv_cvt_pk_bf16_f32 v{TB+8*s+4+e//2}, -v{E(e)+1}, -v{E(e+1)+1}')
    mark('tb7')
    SC = 2.0/(2048*576)
    ABR, ABI = 176, 192
    def p3_consts():
        a(f'''v_lshl_add_u32 v10, v1, 6, s17
        v_cvt_f32_u32 v10, v10
        v_mul_f32 v10, {hexf(1.0/2048)}, v10
        v_cvt_f32_u32 v11, v2
        v_mul_f32 v11, 4.0, v11
        v_mul_f32 v11, v11, v10
        v_mul_f32 v12, {hexf(5.0)}, v10''')
        for n in range(16):
            c = 222 + 4*(n & 1)
            a(f'''v_cos_f32 v{c}, v11
            v_sin_f32 v{c+1}, v11
            v_add_f32 v11, v11, v{10 if (n & 3) < 3 else 12}
            v_cvt_pk_bf16_f32 v{c+2}, v{c}, -v{c+1}
            v_cvt_pk_bf16_f32 v{c+3}, v{c+1}, v{c}
            v_accvgpr_write_b32 a{ABR+n}, v{c+2}
            v_accvgpr_write_b32 a{ABI+n}, v{c+3}''')
    goff = lambda n: 16*(n >> 3) + ((n >> 2) & 1) + 2*(n & 3)
    gpos = [n for n in range(16) if goff(n) > 11]
    gmir = {n: [q for q in range(16) if goff(q) == 23 - goff(n)][0] for n in gpos}
    def g_body(O, T, B, F, sink):
        for half in range(2):
            ns = gpos[4*half:4*half+4]
            for n in ns: a(f'v_pk_mul_f32 {vr(T+2*n,2)}, {vr(O+2*n,2)}, {vr(B,2)} {PM}')
            for n in ns: a(f'v_pk_fma_f32 {vr(T+2*gmir[n],2)}, {vr(O+2*n,2)}, {vr(B,2)}, {vr(T+2*n,2)} {PF_} neg_hi:[1,0,0]')
            for n in ns: a(f'v_pk_fma_f32 {vr(T+2*n,2)}, {vr(O+2*n,2)}, {vr(B,2)}, {vr(T+2*n,2)} {PF_} neg_lo:[1,0,0]')
            if half and F is not None: a(f'v_mul_f32 v{T+30}, v{T+30}, v{F}\nv_mul_f32 v{T+31}, v{T+31}, v{F}')
            for j in (gmir[ns[0]] >> 2, ns[0] >> 2): sink(j)
    def own_g():
        a(f'''v_and_b32 v10, 3, v9
        v_bfe_u32 v11, v9, 2, 1
        v_lshl_add_u32 v10, v11, 4, v10
        v_bfe_u32 v11, v9, 3, 2
        v_lshl_add_u32 v10, v11, 2, v10
        s_lshl_b32 s23, s19, 5
        v_add_u32 v10, s23, v10
        v_cvt_f32_u32 v10, v10
        v_mul_f32 v10, {hexf(1.0/576)}, v10
        s_mul_i32 s23, s30, 96
        v_lshl_add_u32 v11, v2, 3, s23
        v_cvt_f32_u32 v11, v11
        v_add_f32 v11, {hexf(12.5)}, v11
        v_cvt_f32_u32 v13, v2
        s_cmp_eq_u32 s30, 2
        s_cselect_b32 s23, -0.5, 0
        v_fma_f32 v13, v13, s23, 1.0''')
        for n in gpos: a(f'v_mul_f32 v12, {hexf(goff(n)-11.5)}, v10\nv_cos_f32 v{120+2*n}, v12\nv_sin_f32 v{121+2*n}, v12')
        for q in range(3):
            a(f'v_mul_f32 v12, v11, v10\nv_cos_f32 v14, v12\nv_sin_f32 v15, v12\nv_add_f32 v11, {hexf(32.0)}, v11')
            def sink(j, q=q):
                for n in range(4*j, 4*j+4): a(f'v_cvt_pk_bf16_f32 v{184+n}, v{152+2*n}, -v{153+2*n}')
                for n in range(4*j, 4*j+4): a(f'v_accvgpr_write_b32 a{96+16*q+n}, v{184+n}')
            g_body(120, 152, 14, 13 if q == 2 else None, sink)
    a(f'v_mul_f32 v12, {hexf(1.0/72)}, v6\nv_add_f32 v13, v12, v12\nv_add_f32 v14, v13, v12')
    for c in range(3):
        a(f'v_cos_f32 v{TW+2*c}, v{12+c}\nv_sin_f32 v{TW+2*c+1}, -v{12+c}')
    if kw.get('PC', 4) == 1: p3_consts()
    stamp(a, 1, diag); mark('tb')
    TE0 = kw.get('TE0', 1)
    pre_x = []
    a.raw('@@PREX@@')
    a.wait(vm=[('xd', 3)])
    mark('dot')
    if kw.get('XB', 1): a('s_barrier')
    else:
        a(f'v_mov_b32 v12, {LDS_SY}\nv_mov_b32 v13, 1')
        a.lds('ds_add_u32 v12, v13', 'arr')
        lds_wait(0, 12)
    for q in range(9): xload(0, q)
    mark('bar')

    def tile_mf(t):
        acc = ACC[t & 1]; mf = []
        for s in range(9):
            for cs in range(2):
                d = vr(acc+16*cs, 16)
                def f(s=s, cs=cs, d=d):
                    a.wait(lg=[('x', t, s)])
                    a(f'v_mfma_f32_32x32x16_bf16 {d}, {xreg(t,s)}, {vr(TB+8*s+4*cs)}, {"0" if s == 0 else d}')
                mf.append(f)
        return mf
    def combine(t):
        acc = ACC[t & 1]; o = Ops(a)
        for c in range(1, 4):
            tr, ti = TW+2*(c-1), TW+2*(c-1)+1
            for j in range(4):
                o.e(f'v_fmac_f32 v{acc+4*j}, v{tr}, v{acc+4*j+c}\nv_fmac_f32 v{acc+16+4*j}, v{tr}, v{acc+16+4*j+c}')
            for j in range(4):
                o.e(f'v_fma_f32 v{acc+4*j}, -v{ti}, v{acc+16+4*j+c}, v{acc+4*j}\nv_fmac_f32 v{acc+16+4*j}, v{ti}, v{acc+4*j+c}')
        for j in range(4): o.e(f'v_cvt_pk_bf16_f32 v{XB+4*t+j}, v{acc+4*j}, v{acc+16+4*j}')
        return o
    A1R, A1I, CSR = TMP, 48, 16
    def trig_ops():
        o = Ops(a)
        o.e(f'''v_lshl_add_u32 v12, v2, 6, s17
        v_mul_u32_u24 v12, v12, v1
        v_cvt_f32_u32 v12, v12
        v_mul_f32 v12, {hexf(1.0/2048)}, v12
        v_cvt_f32_u32 v13, v1
        v_mul_f32 v13, {hexf(1.0/16)}, v13''')
        for n in range(16): o.e(f'v_cos_f32 v{CSR+2*n}, v12\nv_sin_f32 v{CSR+2*n+1}, v12\nv_add_f32 v12, v12, v13')
        return o
    def rs_ops():
        o = Ops(a)
        o.f(lambda: lds_wait(3, 12, 64))
        o.e(f'v_lshlrev_b32 v12, 6, v2\nv_add_u32 v12, {LDS_ST}, v12\nv_lshlrev_b32 v13, 2, v1\nv_add_u32 v13, {LDS_ST+128}, v13')
        for q in range(4): o.f(lambda q=q: a.lds(f'ds_read_b128 {vr(A1I+4*q)}, v12 offset:{16*q}', 'rs'))
        o.f(lambda: a.lds(f'ds_read_b32 v{V_MU}, v13', 'rs'))
        o.e(f'v_mov_b32 v12, {LDS_ID}')
        o.f(lambda: a.lds(f'ds_read_b64 {vr(V_TK,2)}, v12 offset:8', 'rs'))
        return o
    def a1_ops(lo, hi):
        o = Ops(a)
        if lo == 0: o.f(lambda: a.wait(lg='rs'))
        for n in range(lo, hi): o.e(f'v_mul_f32 v{CSR+2*n}, v{CSR+2*n}, v{A1I+n}\nv_mul_f32 v{CSR+2*n+1}, v{CSR+2*n+1}, v{A1I+n}')
        for n in range(lo, hi): o.e(f'v_cvt_pk_bf16_f32 v{A1R+n}, v{CSR+2*n}, v{CSR+2*n+1}\nv_cvt_pk_bf16_f32 v{A1I+n}, -v{CSR+2*n+1}, v{CSR+2*n}')
        return o
    TAGM = 0x70007000
    def tag_ops(dst, c):
        return f'v_mad_u32_u24 v{dst}, v{c}, v14, v{V_TK}\nv_mul_lo_u32 v{dst}, v{dst}, s31\nv_alignbit_b32 v13, v{dst}, v{dst}, 13\nv_xor_b32 v{dst}, v{dst}, v13\nv_and_b32 v{dst}, {TAGM}, v{dst}'
    def ptags():
        o = Ops(a)
        o.e(f's_mov_b32 s31, 0x9e3779b1\nv_mov_b32 v14, 0x5bd1e9\nv_and_b32 v15, 3, v9\nv_lshlrev_b32 v15, 2, v15')
        for i in range(4): o.e(tag_ops(222+i, 15) + '\nv_add_u32 v15, 1, v15')
        return o
    xl = lambda t: [lambda q=q: xload(t, q) for q in range(9)]
    if TE0:
        n0 = len(a.L)
        for f in trig_ops(): f()
        pre_x = a.L[n0:]; del a.L[n0:]
    k = a.L.index('@@PREX@@'); a.L[k:k+1] = pre_x
    pc = []
    if kw.get('PC', 4) == 4:
        n0 = len(a.L); p3_consts(); lines = a.L[n0:]; del a.L[n0:]
        pc = [lambda l=l: a.raw(l) for l in lines]
    PCS = kw.get('PCS', 70)
    spread(a, tile_mf(0), xl(1) + ([] if TE0 else trig_ops()) + pc[:PCS] + xl(2), 0); mark('m0')
    o1 = Ops(a)
    o1.e(f'''v_lshrrev_b32 v5, 3, v1
    v_lshlrev_b32 v5, 10, v5
    v_and_b32 v4, 7, v1
    v_lshl_add_u32 v5, v4, 6, v5
    v_lshl_add_u32 v5, v2, 5, v5
    s_lshr_b32 s23, s19, 1
    s_lshl_b32 s23, s23, 12
    s_and_b32 s24, s19, 1
    s_lshl_b32 s24, s24, 9
    s_add_u32 s23, s23, s24
    v_add_u32 v4, s23, v5
    s_add_u32 s24, s19, 9
    s_lshr_b32 s23, s24, 1
    s_lshl_b32 s23, s23, 12
    s_and_b32 s24, s24, 1
    s_lshl_b32 s24, s24, 9
    s_add_u32 s23, s23, s24
    v_add_u32 v5, s23, v5''')
    for q in range(4):
        o1.f(lambda q=q: a.lds(f'ds_read_b128 {vr(240+4*q,4,"a")}, v{4+(q>>1)} offset:{(q&1)*16}', 'x3'))
    spread(a, tile_mf(1), xl(3) + o1 + combine(0), 0); mark('m1')
    spread(a, tile_mf(2), pc[PCS:] + combine(1), 0 if pc else 4); mark('m2')
    c2 = combine(2)
    spread(a, tile_mf(3), rs_ops() + c2 + a1_ops(0, 8), 0); mark('m3')
    O = ACC[0]
    def st2(t):
        return [lambda: a(f'v_mfma_f32_32x32x16_bf16 {vr(O,16)}, {vr(A1R+4*t)}, {vr(XB+4*t)}, {"0" if t == 0 else vr(O,16)}'),
                lambda: a(f'v_mfma_f32_32x32x16_bf16 {vr(O+16,16)}, {vr(A1I+4*t)}, {vr(XB+4*t)}, {"0" if t == 0 else vr(O+16,16)}')]
    a('s_nop 1')
    m = st2(0) + st2(1)
    spread(a, m, a1_ops(8, 16), 0)
    pt = ptags()
    c3 = combine(3)
    for f in c3[:20]: f()
    spread(a, st2(2), c3[20:], 0)
    a('s_nop 1')
    for f in st2(3): f()
    for f in pt: f()
    a(f'''s_mov_b32 s23, 294912
    v_mul_lo_u32 v12, v2, s23
    v_lshl_add_u32 v12, v1, 4, v12
    s_lshl_b32 s22, s19, 6
    s_add_u32 s22, s22, s17
    s_lshl_b32 s23, s22, 9
    s_add_u32 s23, s23, {WS_Z1}''')
    mark('s2'); mark('cc')
    for j in range(4):
        for i in range(4): a(f'v_cvt_pk_bf16_f32 v{XB+4*j+i}, v{O+4*j+i}, v{O+16+4*j+i}')
        for i in range(4): a(f'v_xor_b32 v{XB+4*j+i}, v{XB+4*j+i}, v{222+i}')
        a.vmem(f'buffer_store_dwordx4 {vr(XB+4*j)}, v12, s[12:15], s23 offen sc1', 'st1')
        if j < 3: a(f's_add_u32 s23, s23, {2*294912}')
    stamp(a, 2, diag); mark('p1')
    a('v_and_b32 v15, 15, v9\n' + tag_ops(246, 15))

    if kw.get('PC', 4) == 3: p3_consts()
    if kw.get('OG', 2) == 1: own_g()
    Z = 16; WR = 32; WI = 48; XR = 64; XI = 80; Y = 96; AT = 112; TI = 32
    def areg(mt, v, sg): return AT + ((mt*2 + v)*4 + sg)*4
    a(f'''s_mul_i32 s24, s34, 3
    s_add_u32 s24, s24, s16
    s_lshr_b32 s20, s24, 3
    s_and_b32 s21, s24, 7
    v_and_b32 v3, 15, v9
    v_lshrrev_b32 v4, 4, v9
    v_mov_b32 v14, v{V_L16}
    v_lshlrev_b32 v8, 9, v4
    v_and_b32 v6, 3, v9
    v_lshl_add_u32 v8, v6, 5, v8
    v_and_b32 v6, 1, v9
    v_lshlrev_b32 v6, 1, v6
    v_sub_u32 v8, v8, v6
    v_bfe_u32 v6, v9, 2, 2
    v_lshl_add_u32 v8, v6, 1, v8
    s_lshl_b32 s23, s16, 3
    s_add_u32 s23, s23, {LDS_W + 2}
    v_add_u32 v8, s23, v8''')
    for i in range(32): a(f'v_mov_b32 v{WR+i}, 0')
    lds_wait(2, 10, 64, True)
    wrd = [(r, arr) for r in range(16) for arr in range(2)]
    ZP = kw.get('ZP', 16)
    a(f'''v_lshlrev_b32 v240, 11, v4
    v_lshl_add_u32 v240, v3, 2, v240
    s_mul_i32 s22, s33, 9
    s_add_u32 s22, s22, s20
    s_lshl_b32 s22, s22, 15
    s_lshl_b32 s23, s21, 6
    s_add_u32 s22, s22, s23
    s_add_u32 s22, s22, {WS_Z1}''')
    a('s_add_u32 s24, s22, 8192\ns_add_u32 s25, s22, 16384\ns_add_u32 s26, s22, 24576\ns_mov_b32 s27, s22')
    stamp(a, 3, diag)
    def zloads():
        for sg in range(4):
            for j in range(4):
                a.vmem(f'buffer_load_dword v{Z+4*sg+j}, v240, s[12:15], s{(27,24,25,26)[sg]} offen offset:{j*512} sc1', 'z')
    def maxchain(base, n, t0):
        t = f'v_max3_u32 v{t0}, v{base}, v{base+1}, v{base+2}\nv_max3_u32 v{t0+1}, v{base+3}, v{base+4}, v{base+5}\n'
        i = 6
        while i < n:
            t += f'v_max3_u32 v{t0+(i//2+1)%2}, v{t0+(i//2+1)%2}, v{base+i}, v{base+i+1}\n'; i += 2
        return t + f'v_max_u32 v{t0}, v{t0}, v{t0+1}\nv_cmp_eq_u32 vcc, -1, v{t0}\n'
    def sentinel(base, n, tag, reload, t0, after=None, pre=False, inline=False):
        a.wait(vm=[tag], lg=[tag]); mark(('w', tag))
        ok, lp = L('ok'), L('lp')
        t = maxchain(base, n, t0) + 's_nop 1\ns_cmp_eq_u64 vcc, 0\n'
        OL = kw.get('OL', 1) if not inline else 0
        if OL: a(('s_cmp_eq_u64 vcc, 0\n' if pre else t) + f's_cbranch_scc0 {lp}s\n{ok}:')
        else: a(('s_cmp_eq_u64 vcc, 0\n' if pre else t) + f's_cbranch_scc1 {ok}')
        n0 = len(cold)
        with outline():
            a(f'{lp}s:\ns_mov_b32 s59, {SPIN}\n{lp}:')
            reload()
            a(f's_waitcnt vmcnt(0)')
            if after: after(); a('s_waitcnt lgkmcnt(0)')
            a(f's_sub_u32 s59, s59, 1\ns_cbranch_scc1 {ok}')
            a(t + f's_cbranch_scc0 {lp}' + (f'\ns_branch {ok}' if OL else f'\n{ok}:'))
        if not OL:
            a.L.extend(cold[n0:]); del cold[n0:]
    a(f'''v_cvt_f32_u32 v5, v3
    v_mul_f32 v5, {hexf(1.0/64)}, v5
    v_cvt_f32_u32 v6, v4
    v_mul_f32 v6, 4.0, v6
    v_mul_f32 v6, v6, v5
    v_mul_f32 v7, {hexf(13.0)}, v5''')
    rot = lambda n, c, s: [(f'v{c}', f'v{s}'), (f'-v{s}', f'v{c}'), (f'-v{c}', f'-v{s}'), (f'v{s}', f'-v{c}')][n % 4]
    for sg in range(4):
        for j in range(4):
            if 4*sg+j == ZP: zloads()
            for (r, arr) in wrd[4*(4*sg+j):4*(4*sg+j)+4]:
                a.lds(f'ds_read_u16_d16_hi v{(WR,WI)[arr]+r}, v8 offset:{arr*8192+(r>>2)*2048+(r&3)*128}', 'w')
            c = 10 + 2*(j & 1)
            a(f'v_cos_f32 v{c}, v6\nv_sin_f32 v{c+1}, v6')
            a(f'v_add_f32 v6, v6, v{5 if j < 3 else 7}')
            for mt in range(4):
                for v in range(2):
                    p = rot(j*mt + v, c, c+1)
                    a(f'v_cvt_pk_bf16_f32 v{areg(mt,v,sg)+j}, {p[0]}, {p[1]}')
    mark('p2t')
    if ZP == 16: zloads()
    a(f'''s_mov_b32 s23, 36864
    v_lshrrev_b32 v6, 2, v9
    v_mul_lo_u32 v6, v6, s23
    v_and_b32 v7, 3, v9
    v_lshl_add_u32 v6, v7, 4, v6
    s_lshl_b32 s23, s16, 12
    s_add_u32 s23, s23, {LDS_BN}
    v_lshlrev_b32 v7, 6, v3
    v_lshl_add_u32 v7, v4, 4, v7
    v_add_u32 v7, s23, v7
    v_add_u32 v15, s23, v14
    s_lshl_b32 s22, s20, 12
    s_lshl_b32 s23, s33, 9
    s_add_u32 s22, s22, s23
    s_lshl_b32 s23, s21, 6
    s_add_u32 s22, s22, s23
    s_add_u32 s22, s22, {WS_T}''')
    def fwd(mt):
        mf = []
        for v in range(2):
            d = vr((XR, XI)[v] + 4*mt)
            for sg in range(4):
                def f(v=v, sg=sg, d=d):
                    a(f'v_mfma_f32_16x16x32_bf16 {d}, {vr(areg(mt,v,sg))}, {vr(Z+4*sg)}, {"0" if sg == 0 else d}')
                mf.append(f)
        return mf
    def filt(mt):
        o = Ops(a)
        for i in range(4): o.e(f'v_mul_f32 v{10+i}, v{XR+4*mt+i}, v{WR+4*mt+i}')
        for i in range(4): o.e(f'v_mul_f32 v{XR+4*mt+i}, v{XR+4*mt+i}, v{WI+4*mt+i}')
        for i in range(4): o.e(f'v_fma_f32 v{10+i}, -v{XI+4*mt+i}, v{WI+4*mt+i}, v{10+i}')
        for i in range(4): o.e(f'v_fmac_f32 v{XR+4*mt+i}, v{XI+4*mt+i}, v{WR+4*mt+i}')
        for i in range(4): o.e(f'v_cvt_pk_bf16_f32 v{Y+4*mt+i}, v{10+i}, -v{XR+4*mt+i}')
        return o
    a.wait(lg='w')
    for i in range(32): a(f'v_mul_f32 v{WR+i}, {hexf(SC*2.0**110)}, v{WR+i}')
    lds_wait(2, 10, 128, True); mark('p2w')
    a.wait(vm='z'); mark(('w', 'z'))
    ok, lp = L('ok'), L('lp')
    t = ''.join(f'v_xor_b32 v{Z+i}, v{Z+i}, v246\n' for i in range(16))
    t += f'v_or3_b32 v10, v{Z}, v{Z+1}, v{Z+2}\nv_or3_b32 v11, v{Z+3}, v{Z+4}, v{Z+5}\n'
    t += ''.join(f'v_or3_b32 v{10+(i//2+1)%2}, v{10+(i//2+1)%2}, v{Z+i}, v{Z+i+1}\n' for i in range(6, 16, 2))
    t += f'v_or_b32 v10, v10, v11\nv_and_b32 v10, {TAGM}, v10\nv_cmp_ne_u32 vcc, 0, v10\ns_nop 1\ns_cmp_eq_u64 vcc, 0\n'
    a(t + f's_cbranch_scc1 {ok}\ns_mov_b32 s59, {SPIN}\n{lp}:')
    zloads(); a.vm = []
    a(f's_waitcnt vmcnt(0)\n' + t + f's_cbranch_scc1 {ok}\ns_sub_u32 s59, s59, 1\ns_cbranch_scc0 {lp}\n{ok}:')
    stamp(a, 4, diag); mark('z')
    for f in fwd(0) + fwd(1): f()
    spread(a, fwd(2), filt(0))
    spread(a, fwd(3), filt(1))
    TRr = lambda mt: Z + 4*mt
    TIr = lambda mt: (XR, XR+4, XI, XI+4)[mt]
    def inv(sg):
        mf = []
        for mt in range(4):
            for v in range(2):
                d = vr(TRr(mt) if v == 0 else TIr(mt))
                mf.append(lambda v=v, mt=mt, d=d: a(f'v_mfma_f32_16x16x32_bf16 {d}, {vr(Y+4*sg)}, {vr(areg(mt,v,sg))}, {"0" if sg == 0 else d}'))
        return mf
    spread(a, inv(0), filt(2))
    spread(a, inv(1), filt(3))
    a('s_nop 1')
    for f in inv(2): f()
    for f in inv(3): f()
    a('s_nop 1')
    for mt in range(4):
        if mt == 3: a('s_nop 0')
        for i in range(4): a(f'v_cvt_pk_bf16_f32 v{WR+4*mt+i}, v{TRr(mt)+i}, -v{TIr(mt)+i}')
        a.lds(f'ds_write_b128 v7, {vr(WR+4*mt)} offset:{1024*mt}', 'tw')
        a.lds(f'ds_read_b128 {vr(WI+4*mt)}, v15 offset:{1024*mt}', ('tr', mt))
    for mt in range(4):
        a.wait(lg=[('tr', mt)])
        a.vmem(f'buffer_store_dwordx4 {vr(WI+4*mt)}, v6, s[12:15], s22 offen sc1', 'st2')
        if mt < 3: a(f's_add_u32 s22, s22, {16*36864}')
    stamp(a, 5, diag); mark('p2')
    lds_arrive(3, 10)

    TT = 48; BR = 96; BI = 112; AC3 = [128, 160]; PK = 192; XX = 208; ZB = 16
    if kw.get('PC', 4) == 0: p3_consts()
    a(f'''v_and_b32 v4, 7, v1
    v_lshlrev_b32 v4, 1, v4
    v_bfe_u32 v5, v1, 3, 1
    v_add_u32 v4, v4, v5
    v_and_b32 v5, 16, v1
    v_add_u32 v4, v4, v5
    v_lshlrev_b32 v4, 4, v4
    v_lshl_add_u32 v4, v2, 9, v4
    s_mul_i32 s20, s17, 9
    s_mul_i32 s23, s16, 3
    s_add_u32 s20, s20, s23
    s_lshl_b32 s20, s20, 12
    s_add_u32 s20, s20, {WS_T}
    s_add_u32 s21, s20, 4096
    s_add_u32 s22, s20, 8192
    s_mul_i32 s23, s16, 12288
    v_add_u32 v7, s23, v14''')
    AO, AE = 192, 208
    LO = AC3[0]; HI = AC3[0]+16
    def tloads(kt):
        for tau in range(4):
            a.vmem(f'buffer_load_dwordx4 {vr(TT+16*kt+4*tau)}, v4, s[12:15], s{(20,21,22)[kt]} offen offset:{tau*1024} sc1', ('t', kt))
    if kw.get('OG', 2) == 2: own_g(); a(f'v_mov_b32 v14, v{V_L16}')
    if kw.get('TE', 1) == 0:
        for kt in range(3): tloads(kt)
    for i in range(16): a(f'v_accvgpr_read_b32 v{16+i}, a{240+i}')
    for r in range(16):
        x0 = 16 + r//2; x1 = 24 + r//2
        if r % 2 == 0: a(f'v_lshlrev_b32 v12, 16, v{x0}\nv_lshlrev_b32 v13, 16, v{x1}')
        else: a(f'v_and_b32 v12, 0xffff0000, v{x0}\nv_and_b32 v13, 0xffff0000, v{x1}')
        a(f'v_sub_f32 v{AO+r}, v12, v13\nv_mul_f32 v{AO+r}, 0.5, v{AO+r}\nv_sub_f32 v12, v12, v{V_MU}\nv_sub_f32 v{AE+r}, v12, v{AO+r}')
    if kw.get('TE', 1) == 1:
        for kt in range(3): tloads(kt)
    mark('tiss'); lds_wait(2, 10, 192, True); mark('gw')
    a(f's_mul_i32 s24, s16, 24576\ns_add_u32 s24, s24, {LDS_G}\nv_add_u32 v5, s24, v14')
    for n in range(24): a.lds(f'ds_read_b128 {vr(4*n,4,"a")}, v5 offset:{1024*n}', 'g')
    if kw.get('TE', 1) == 3:
        for kt in range(3): tloads(kt)
    for g in range(1, 3): a(f's_mul_i32 s23, s{28+g}, 12288\nv_add_u32 v{224+g}, s23, v14')
    a(f'''v_lshlrev_b32 v8, 11, v2
    v_lshl_add_u32 v8, v1, 4, v8
    s_lshr_b32 s23, s17, 1
    s_mul_i32 s24, s23, 73728
    s_and_b32 s26, s17, 1
    s_lshl_b32 s27, s26, 9
    s_add_u32 s24, s24, s27
    s_lshl_b32 s27, s19, 12
    s_add_u32 s24, s24, s27
    s_add_u32 s24, s24, {WS_HC}
    s_add_u32 s27, s24, 36864
    s_mul_i32 s25, s26, 9
    s_add_u32 s25, s25, s19
    s_lshl_b32 s25, s25, 6
    s_lshl_b32 s31, s23, 11
    s_add_u32 s25, s25, s31
    s_add_u32 s58, s25, {FL3}
    s_mul_i32 s23, s23, {NSSQ}
    s_add_u32 s23, s23, s19
    s_lshl_b32 s23, s23, 8
    s_lshl_b32 s26, s26, 7
    s_add_u32 s23, s23, s26
    s_add_u32 s23, s23, {WS_SSQ}
    v_lshlrev_b32 v6, 2, v1
    v_mov_b32 v255, v{V_F0}''')
    lds_wait(3, 10, 256); get_id(10, True); mark('gr')
    if kw.get('TE', 1) == 2:
        for kt in range(3): tloads(kt)
    def chk(kt): return lambda: sentinel(TT+16*kt, 16, ('t', kt), lambda: [tloads(q) for q in range(kt, 3)], 10, inline=(kt == 0))
    def s1_mf(kt):
        acc = AC3[kt & 1]; mf = []
        for tau in range(4):
            for v in range(2):
                d = vr(acc+16*v, 16)
                mf.append(lambda tau=tau, v=v, d=d: a(f'v_mfma_f32_32x32x16_bf16 {d}, {vr(TT+16*kt+4*tau)}, {vr((ABR,ABI)[v]+4*tau,4,"a")}, {"0" if tau == 0 else d}'))
        return mf
    def s1_out(kt):
        acc = AC3[kt & 1]; o = Ops(a)
        for j in range(4):
            for i in range(4): o.e(f'v_cvt_pk_bf16_f32 v{TT+16*kt+4*j+i}, v{acc+4*j+i}, v{acc+16+4*j+i}')
            o.f(lambda j=j: a.lds(f'ds_write_b128 v7, {vr(TT+16*kt+4*j)} offset:{(4*kt+j)*1024}', 'zw'))
        return o
    def mmf(n, B):
        d = vr(AO if n % 2 == 0 else AE, 16)
        a(f'v_mfma_f32_32x32x16_bf16 {d}, {vr(4*n,4,"a")}, {B}, {d}')
    chk(0)()
    spread(a, s1_mf(0), [chk(1)], 2, 3)
    stamp(a, 6, diag); mark('k0')
    m = s1_mf(1)
    m[0](); chk(2)()
    if kw.get('PT', 0):
        a(f'v_mov_b32 v10, {LDS_SY}\nv_mov_b32 v11, 1'); a.lds('ds_add_u32 v10, v11', 'arr')
    spread(a, m[1:], s1_out(0), 0, 6); mark('k1')
    m = s1_mf(2)
    for f in m[:3]: f()
    a('s_nop 7')
    spread(a, m[3:], s1_out(1)); mark('k2')
    own = [lambda n=n: mmf(n, vr(TT+4*n)) for n in range(12)]
    for f in own[:3]: f()
    a('s_nop 7')
    spread(a, own[3:8], s1_out(2))
    lds_arrive(1, 10); mark('za')
    for f in own[8:11]: f()
    lds_wait(1, 10); mark('zw')
    zl = {'n': 12}
    def zload():
        n = zl['n']
        if n >= 36: return
        a.lds(f'ds_read_b128 {vr(ZB+4*(n%8))}, v{224+n//12} offset:{(n%12)*1024}', ('zf', n)); zl['n'] += 1
    for i in range(7): zload()
    own[11]()
    for n in range(12, 36):
        a.wait(lg=[('zf', n)])
        mmf(n, vr(ZB+4*(n%8)))
        zload()
    mark('mm')
    a('s_nop 7\ns_nop 3')
    PK = 48
    for q in range(4):
        dst = (LO, HI)[q >> 1] + 8*(q & 1)
        for r in range(8): a(f'v_{"add" if q < 2 else "sub"}_f32 v{dst+r}, v{AE+8*(q&1)+r}, v{AO+8*(q&1)+r}')
        for i in range(4): a(f'v_cvt_pk_bf16_f32 v{PK+4*q+i}, v{dst+2*i}, v{dst+2*i+1}')
        a.vmem(f'buffer_store_dwordx4 {vr(PK+4*q)}, v8, s[12:15], s{24 if q < 2 else 27} offen offset:{(q&1)*1024} sc1', 'st3')
    a(f'v_mul_f32 v11, v{LO}, v{LO}\nv_mul_f32 v12, v{HI}, v{HI}')
    for r in range(1, 16): a(f'v_fmac_f32 v11, v{LO+r}, v{LO+r}\nv_fmac_f32 v12, v{HI+r}, v{HI+r}')
    a(f'''v_add_f32 v11, v11, v12
    v_mov_b32 v12, v11
    s_nop 1
    v_permlane32_swap_b32 v11, v12
    s_nop 1
    v_add_f32 v11, v11, v12''')
    a.vmem(f'buffer_store_dword v11, v6, s[12:15], s23 offen sc1', 'st3')
    a(f's_lshl_b32 s23, s17, 7\ns_add_u32 s23, s23, {WS_MU}\ns_cmp_eq_u32 s19, 0\ns_cselect_b32 s24, 0, 0x80000000\nv_or_b32 v6, s24, v6')
    a.vmem(f'buffer_store_dword v{V_MU}, v6, s[12:15], s23 offen sc1', 'st3')
    stamp(a, 7, diag); mark('p3')
    a('s_branch L_ffn')
    a.L.extend(cold); del cold[:]

    gst = {'it': 0}
    def gen_g(cnt):
        cnt = min(cnt, 18 - gst['it'])
        while cnt > 0:
            it = gst['it']; w, r = it//6, it % 6
            kt = (3*w + r) % 9
            if r == 0:
                a(f'v_add_u32 v21, {32*w}, v18\nv_cvt_f32_u32 v21, v21\nv_mul_f32 v21, {hexf(1.0/576)}, v21')
                for n in gpos: a(f'v_mul_f32 v23, {hexf(goff(n)-11.5)}, v21\nv_cos_f32 v{180+2*n}, v23\nv_sin_f32 v{181+2*n}, v23')
            m = min(cnt, 6 - r, 9 - kt)
            lp = L('gg')
            a(f'''v_add_f32 v22, {hexf(32.0*kt + 11.5)}, v19
            s_mov_b32 s31, {kt}
            {lp}:
            v_mul_f32 v23, v22, v21
            v_cos_f32 v24, v23
            v_sin_f32 v25, v23
            v_add_f32 v22, {hexf(32.0)}, v22
            s_cmp_eq_u32 s31, 8
            s_cselect_b64 vcc, -1, 0
            v_cndmask_b32 v26, 1.0, v17, vcc''')
            def sink(j):
                for n in range(4*j, 4*j+4): a(f'v_cvt_pk_bf16_f32 v{212+n}, v{136+2*n}, -v{137+2*n}')
                a(f'ds_write_b128 v20, {vr(212+4*j)} offset:{1024*j}')
            g_body(180, 136, 24, 26, sink)
            a(f'''v_add_u32 v20, 4096, v20
            s_add_u32 s31, s31, 1
            s_cmp_lt_u32 s31, {kt+m}
            s_cbranch_scc1 {lp}''')
            a.lg.append('gw')
            gst['it'] += m; cnt -= m
    a.vm = [None]*9; a.lg = []
    a(f'''L_help:
    s_mov_b32 s58, 0
    v_bfrev_b32 v255, 1''')
    srd(a, 40, 48, 2048*578); srd(a, 44, 50, 2048*578)
    a(f'''v_lshrrev_b32 v4, 3, v9
    v_lshlrev_b32 v4, 5, v4
    v_bfe_u32 v5, v9, 1, 2
    v_add_u32 v4, v4, v5
    v_mul_u32_u24 v4, 578, v4
    v_and_b32 v5, 2, v9
    v_add_u32 v4, v4, v5
    v_and_b32 v5, 1, v9
    v_lshl_add_u32 v4, v5, 4, v4
    s_mul_i32 s22, s33, {4*578}
    s_mul_i32 s23, s34, 24
    s_add_u32 s22, s22, s23''')
    if kw.get('WT', 2):
        a(f'''v_mul_u32_u24 v5, 13, v9
        v_lshrrev_b32 v5, 8, v5
        v_mul_u32_u24 v6, 20, v5
        v_sub_u32 v6, v9, v6
        s_mul_i32 s23, s34, 3
        v_add_u32 v5, s23, v5
        v_mul_u32_u24 v5, {32*578}, v5
        s_mul_i32 s23, s33, {4*578}
        v_add_u32 v5, s23, v5
        v_and_b32 v5, 0xffffff80, v5
        v_lshl_add_u32 v5, v6, 7, v5
''')
    def wtouch():
        a(f'''s_bfm_b64 exec, 60, 0
        buffer_load_dword v254, v5, s[40:43], 0 offen {kw.get('WTF', 'nt')}
        buffer_load_dword v254, v5, s[44:47], 0 offen {kw.get('WTF', 'nt')}
        s_mov_b64 exec, -1''')
    if kw.get('WT', 2) == 1: wtouch()
    HP = kw.get('HP', 0)
    if HP: a('s_load_dwordx2 s[8:9], s[0:1], 48')
    def hpf():
        a(f'''s_mov_b32 s10, {576*9216}
        s_mov_b32 s11, 0x20000
        s_sub_u32 s24, s2, 64
        s_mul_i32 s24, s24, {132*128}
        v_lshl_add_u32 v6, v9, 7, s24
        s_bfm_b64 exec, 44, 0''')
        for i in range(3):
            a.vmem(f'buffer_load_dword v254, v6, s[8:11], 0 offen', 'hp'); a(f'v_add_u32 v6, {44*128}, v6')
        a('s_mov_b64 exec, -1')
    def wdma(lo, hi):
        for i in range(lo, hi):
            for arr in range(2):
                a(f's_mov_b32 m0, {LDS_W+arr*8192+i*1024}\ns_add_u32 s23, s22, {i*8*32*578}')
                a.vmem(f'buffer_load_dwordx4 v4, s[{40+4*arr}:{43+4*arr}], s23 offen {NTW} lds', 'wd')
    ws_srd()
    a(f'''v_and_b32 v18, 3, v9
    v_bfe_u32 v19, v9, 2, 1
    v_lshl_add_u32 v18, v19, 4, v18
    v_bfe_u32 v19, v9, 3, 2
    v_lshl_add_u32 v18, v19, 2, v18
    s_mul_i32 s24, s34, 43
    s_lshr_b32 s24, s24, 7
    s_mul_i32 s24, s24, 3
    s_sub_u32 s23, s34, s24
    s_mul_i32 s23, s23, 96
    v_add_u32 v18, s23, v18
    v_lshrrev_b32 v19, 5, v9
    v_cvt_f32_u32 v17, v19
    v_fma_f32 v17, v17, -0.5, 1.0
    v_lshl_add_u32 v19, v19, 3, 1
    v_cvt_f32_u32 v19, v19
    v_lshlrev_b32 v20, 4, v9
    v_add_u32 v20, {LDS_G}, v20
    s_mov_b32 s27, {FLC}''')
    def clr(n, sreg):
        for i in range(n):
            if i and i % 4 == 0: a(f's_add_u32 s{sreg}, s{sreg}, 4096')
            a.vmem(f'buffer_store_dwordx4 v[12:15], v1, s[12:15], s{sreg} offen offset:{(i%4)*1024} sc1', 'clr')
    TKA = kw.get('TKA', 1); GA = kw.get('GA', 4)
    if HP == 3: hpf()
    if HP == 4: gen_g(2); hpf()
    gen_g(GA)
    tok_issue()
    wtouch()
    WN = kw.get('WN', 8)
    XH = 32; SH_ = 228
    a(f'v_lshlrev_b32 v28, 4, v9\nv_mov_b32 v29, 0x3f803f80')
    for i in range(8): a(f'v_mov_b32 v{SH_+i}, 0')
    if kw.get('XB', 1): a('s_barrier')
    else: lds_wait(0, 10)
    for n in range(36): a.lds(f'ds_read_b128 {vr(XH+4*n)}, v28 offset:{1024*n}', ('hx', n))
    if HP == 5: hpf()
    for q in range(9):
        WQ = kw.get('WQ', 2)
        if WQ == 0 and q < WN: wdma(q, q+1)
        if WQ == 1 and q >= 5: wdma(2*(q-5), 2*(q-5)+2)
        a.wait(lg=[('hx', 4*q+3)])
        for i in range(4):
            for t in range(4):
                x = XH + 16*q + 4*t + i
                a(f'v_dot2c_f32_bf16 v{SH_+2*t}, v{x}, v29\nv_dot2c_f32_bf16 v{SH_+2*t+1}, v{x}, v{x}')
    a('s_nop 2')
    for perm in ('[1,0,3,2]', '[2,3,0,1]'):
        for i in range(8): a(f'v_add_f32_dpp v{SH_+i}, v{SH_+i}, v{SH_+i} quad_perm:{perm} row_mask:0xf bank_mask:0xf')
    a('s_nop 0')
    for i in range(4): a(f'v_permlane32_swap_b32 v{SH_+i}, v{SH_+4+i}')
    a('s_nop 0')
    for i in range(4): a(f'v_add_f32 v{SH_+i}, v{SH_+i}, v{SH_+4+i}')
    for t in range(2):
        a(f'''v_mul_f32 v{SH_+2*t}, {hexf(1.0/576)}, v{SH_+2*t}
        v_mov_b32 v{SH_+4+t}, {hexf(1e-5)}
        v_fmac_f32 v{SH_+4+t}, {hexf(1.0/576)}, v{SH_+2*t+1}
        v_fma_f32 v{SH_+4+t}, -v{SH_+2*t}, v{SH_+2*t}, v{SH_+4+t}
        v_max_f32 v{SH_+4+t}, {hexf(1e-5)}, v{SH_+4+t}
        v_rsq_f32 v{SH_+4+t}, v{SH_+4+t}''')
    a(f'''v_lshrrev_b32 v28, 5, v9
    v_bfe_u32 v29, v9, 2, 3
    v_lshl_add_u32 v30, v28, 4, v29
    v_lshlrev_b32 v30, 2, v30
    v_add_u32 v30, {LDS_ST+128}, v30
    v_bfe_u32 v29, v9, 3, 2
    v_lshl_add_u32 v28, v28, 3, v29
    v_bfe_u32 v29, v9, 2, 1
    v_lshl_add_u32 v28, v29, 4, v28
    v_lshlrev_b32 v28, 2, v28
    v_add_u32 v28, {LDS_ST}, v28
    v_mul_f32 v{SH_+4}, {hexf(2.0**-55)}, v{SH_+4}
    v_mul_f32 v{SH_+5}, {hexf(2.0**-55)}, v{SH_+5}''')
    for t in range(2): a(f'ds_write_b32 v28, v{SH_+4+t} offset:{16*t}\nds_write_b32 v30, v{SH_+2*t} offset:{32*t}')
    tok_verify()
    a(f'v_mov_b32 v10, {LDS_ID}\nds_write_b64 v10, {vr(V_TK,2)} offset:8')
    lds_arrive(3, 10); stamp(a, 3, diag)
    if WQ == 2: wdma(0, 8)
    if HP == 6: hpf()
    if kw.get('PAD', 1): a('s_mov_b64 exec, 0\ns_branch L_qad0\nL_qad_end:\ns_mov_b64 exec, -1')
    gen_g(kw.get('GC', 2))
    a.wait(vm='wd'); lds_arrive(2, 10); stamp(a, 7, diag)
    gen_g(kw.get('GD', 0))
    chk_issue(27, 240, 'cc')
    gen_g(2)
    chk_verify(27, 240, 'cc', None, kw.get('HS', 8))
    lds_arrive(2, 10); stamp(a, 4, diag)
    if TKA:
        a(f'''s_waitcnt lgkmcnt(0)
        s_getreg_b32 s30, hwreg(HW_REG_XCC_ID)
        s_and_b32 s30, s30, 7
        s_lshl_b32 s29, s30, 7
        s_add_u32 s29, s29, {TKC}
        s_mov_b32 s35, 1
        s_atomic_add s35, s[12:13], s29 glc''')
    gen_g(2)
    if TKA:
        a(f'''s_waitcnt lgkmcnt(0)
        s_mov_b32 s28, 7
        s_branch L_tkc
        L_tkl:
        s_add_u32 s30, s30, 1
        s_and_b32 s30, s30, 7
        s_lshl_b32 s29, s30, 7
        s_add_u32 s29, s29, {TKC}
        s_mov_b32 s35, 1
        s_atomic_add s35, s[12:13], s29 glc
        s_waitcnt lgkmcnt(0)
        L_tkc:
        s_cmp_lt_u32 s35, 24
        s_cbranch_scc1 L_tkx
        s_sub_u32 s28, s28, 1
        s_cbranch_scc0 L_tkl
        s_mov_b32 s35, s34
        s_mov_b32 s30, s33
        L_tkx:
        s_add_u32 s35, s35, 8
        s_lshl_b32 s35, s35, 3
        s_add_u32 s35, s35, s30''')
    else: a('s_mov_b32 s35, s2')
    a(f'v_mov_b32 v10, {LDS_ID}\nv_mov_b32 v11, s35\nds_write_b32 v10, v11')
    gen_g(18); lds_arrive(2, 10); stamp(a, 6, diag)
    a('s_branch L_ffn')
    a.vm = []; a.lg = []
    a(f'''L_pure:
    s_add_u32 s23, s2, s16
    s_cmp_lg_u32 s23, 0
    s_cbranch_scc1 L_notok
    s_memrealtime s[40:41]
    v_lshlrev_b32 v2, 7, v9
    v_add_u32 v2, {TKC}, v2
    v_mov_b32 v3, 0
    s_waitcnt lgkmcnt(0)
    s_or_b32 s40, s40, 1
    v_mov_b32 v4, s40
    v_mov_b32 v5, s41
    s_mov_b64 exec, 1
    global_store_dwordx2 v3, v[4:5], s[36:37] sc1
    s_mov_b64 exec, 0xffff
    global_store_dword v2, v3, s[38:39] sc1
    s_mov_b64 exec, -1
    L_notok:
    s_mov_b32 s58, 0
    v_bfrev_b32 v255, 1''')
    ws_srd()
    a(f'''s_lshl_b32 s17, s2, 2
    s_add_u32 s17, s17, s16
    v_lshlrev_b32 v1, 4, v9
    v_mov_b32 v12, -1
    v_mov_b32 v13, -1
    v_mov_b32 v14, -1
    v_mov_b32 v15, -1
    s_lshl_b32 s27, s2, 6
    s_add_u32 s27, s27, {FLC}
    s_cmp_eq_u32 s16, 0
    s_cselect_b32 s23, 0, 0x80000000
    v_or_b32 v5, s23, v{V_F0}''')
    def wgflag(off, n=0):
        a(f's_waitcnt vmcnt({n})\ns_barrier\ns_add_u32 s23, s27, {off}'); flag_store(23, None, 5)
    if kw.get('WPF', 0):
        srd(a, 40, 48, 2048*578); srd(a, 44, 50, 2048*578)
        a(f's_mul_i32 s23, s17, 4736\nv_lshl_add_u32 v2, v9, 7, s23\ns_bfm_b64 exec, 37, 0')
        for arr in range(2): a(f'buffer_load_dword v254, v2, s[{40+4*arr}:{43+4*arr}], 0 offen')
        a('s_mov_b64 exec, -1')
    a(f's_mul_i32 s26, s17, 9216\ns_add_u32 s25, s26, {WS_T}')
    assert WS_HC == WS_T + NB
    if kw.get('CD', 1): tok_issue(); tok_verify()
    clr(9, 25)
    if not kw.get('CD', 1): tok_issue(); tok_verify()
    a(f's_add_u32 s25, s26, {WS_HC}')
    clr(9, 25)
    wgflag(0); stamp(a, 5, diag)
    PF0 = 0
    a(f'''v_add_u32 v11, 32768, v11
    buffer_load_dword v254, v11, s[44:47], 0 offen
    v_add_u32 v11, 32768, v11
    buffer_load_dword v254, v11, s[44:47], 0 offen''')
    PFE = kw.get('PFE', 1)
    def fin2(n):
        if TKA:
            a('s_cmp_lg_u32 s16, 3\ns_cbranch_scc1 L_ntk')
            a(f's_mov_b32 s23, {FLC}\ns_mov_b64 s[20:21], 1'); chk_issue(23, V_CK, 'c0', 20); chk_verify(23, V_CK, 'c0', 20, 8)
            ticket(8, 1024, 0)
            a('L_ntk:')
    if not PFE: fin2(0)
    if PF:
        PFS = kw.get('PFS', 128); PFF = kw.get('PFF', '')
        a(f'''s_load_dwordx4 s[4:7], s[0:1], 32
        s_load_dwordx2 s[8:9], s[0:1], 48
        s_mul_i32 s23, s17, 20736
        v_mul_u32_u24 v2, {PFS}, v9
        v_add_u32 v2, s23, v2
        s_waitcnt lgkmcnt(0)''')
        srd(a, 40, 4, 576*9216); srd(a, 44, 6, 576*9216); srd(a, 48, 8, 576*9216)
        nl = 20736//PFS
        for r in range(kw.get('PFM', 2)):
            for i in range(64*PF0 if r == 1 else 0, nl, 64):
                a(f'v_add_u32 v3, {PFS*i}, v2')
                if nl - i < 64: a(f's_bfm_b64 exec, {nl-i}, 0')
                if kw.get('NOPF'): a('v_bfrev_b32 v3, 1')
                a(f'buffer_load_dword v254, v3, s[{40+4*r}:{43+4*r}], 0 offen {PFF}')
                if nl - i < 64: a('s_mov_b64 exec, -1')
                if PFE and r == 0 and i == 64: fin2(3)
                if kw.get('PFW1'): a(f's_waitcnt vmcnt({kw["PFW1"]-1})')
    stamp(a, 6, diag)
    if TKA: a('s_barrier'); get_id(2)
    else: a('s_mov_b32 s35, s2')
    stamp(a, 7, diag); mark('pend')

    a.vm = ['pre']; a.lg = []
    from ffn import emit_ffn
    if P128:
        from ffn2 import emit_ffn2 as emit_ffn
        if P128 == 3:
            from ffn3 import emit_ffn3 as emit_ffn
        if P128 == 4:
            from ffn4 import emit_ffn4 as emit_ffn
    nv = emit_ffn(a, dict(kw, mark=mark, sentinel=sentinel, maxchain=maxchain, lds_wait=lds_wait, diag=diag, G2S=G2S, FE=FE, PRE=PRE, R=R, FPX=FPX, UP=UP, RATE0=RATE0, WSC=WSC, chk_issue=chk_issue, chk_verify=chk_verify,
                          flag_store=flag_store, V_L8=V_L8, V_F0=V_F0, V_TK=V_TK, V_CK=V_CK, stamp=stamp, rstamp=rstamp, Ops=Ops))
    if diag:
        vt = 24
        a.waitall()
        stamp(a, 14, True)
        a('s_memrealtime s[94:95]\ns_waitcnt lgkmcnt(0)')
        for i in range(1, 15):
            if kw.get('RT') and i in (2, 4): a(f'v_mov_b32 v{vt+i}, s{60+2*i}'); continue
            a(f's_cmp_eq_u32 s{60+2*i}, 0\ns_cselect_b32 s23, 0, s60\ns_sub_u32 s{60+2*i}, s{60+2*i}, s23\nv_mov_b32 v{vt+i}, s{60+2*i}')
        a(f'v_mov_b32 v{vt}, s92\nv_mov_b32 v{vt+15}, s94')
        a(f'''s_lshl_b32 s23, s2, 2
        s_add_u32 s23, s23, s16
        s_lshl_b32 s23, s23, 6
        s_add_u32 s23, s23, {WS_DBG}
        v_mov_b32 v{vt+16}, 0
        s_mov_b64 exec, 1''')
        for i in range(4): a(f'buffer_store_dwordx4 {vr(vt+4*i)}, v{vt+16}, s[12:15], s23 offen offset:{16*i}')
    if PROBE:
        a('s_waitcnt vmcnt(0)'); mark('end')
        if PROBE == 'tok': a(f's_mov_b32 s62, s{TOK}')
        a('''s_waitcnt lgkmcnt(0)
        s_cmp_eq_u32 s62, 0
        s_cselect_b32 s62, s60, s62
        s_add_u32 s62, s62, 8000
        L_probe:
        s_memrealtime s[64:65]
        s_waitcnt lgkmcnt(0)
        s_sub_u32 s64, s64, s62
        s_cmp_lt_i32 s64, 0
        s_cbranch_scc1 L_probe''')
    a('L_end:\ns_endpgm')
    a.L.extend(cold)
    a('L_codeend:')
    hdr = f'; @launch grid=(256,1,1) block=(256,1,1) lds={LDS_TOTAL}\n.amdgcn_target "amdgcn-amd-amdhsa--gfx950"\n.text\n'
    tail = '.section .rodata,"a"\n' + kernel_desc(name, 256, 256, 102)
    if kw.get('PAD', 1): add_pads(a, hdr, tail, kw.get('PADN', 1))
    return hdr + a.text() + tail

def add_pads(a, hdr, tail, per):
    import subprocess, re, os
    tmp = '_pad_%d' % os.getpid()
    open(tmp + '.s', 'w').write(hdr + a.text() + 'L_pad0:\nL_qad0:\n' + tail)
    subprocess.run(['clang', '-x', 'assembler', '-target', 'amdgcn-amd-amdhsa', '-mcpu=gfx950', '-c', tmp + '.s', '-o', tmp + '.o'], check=True)
    dis = subprocess.run(['llvm-objdump', '-d', '--mcpu=gfx950', tmp + '.o'], capture_output=True, text=True).stdout
    dis = dis[dis.index('<L_p1>:'):]
    sizes = [4*len(m.group(1).split()) for m in re.finditer(r'// [0-9A-F]{12}: ([0-9A-F ]+)', dis)]
    i0 = a.L.index('L_p1:')
    out = a.L[:i0+1]; addr = 0; k = 0
    n = {'q': 0, 'p': 0}
    targets = sorted(p*4096 + q*64 for p in range(1, 24) for q in range(per))
    ch = 'q'
    for line in a.L[i0+1:]:
        if line == 'L_help:':
            out += [f'L_qad{n["q"]}:', '  s_branch L_qad_end']; addr += 4; ch = None
        if line == 'L_pad_end:': ch = 'p'
        if line.endswith(':'): out.append(line); continue
        while addr >= targets[0]:
            targets.pop(0)
            if ch and not out[-1].strip().startswith(('s_mov_b64 exec', 's_bfm_b64 exec', 's_add_u32 m0', 's_cmp', 's_sub_u32 s59')):
                out += [f'L_{ch}ad{n[ch]}:', f'  s_cbranch_execz L_{ch}ad{n[ch]+1}']; n[ch] += 1; addr += 4
            elif ch:
                targets.insert(0, addr + 1); break
        out.append(line); addr += sizes[k]; k += 1
    j = out.index('L_codeend:')
    out[j:j] = [f'L_pad{n["p"]}:', '  s_branch L_pad_end']
    a.L = out

if __name__ == '__main__':
    import sys
    out = sys.argv[1] if len(sys.argv) > 1 else 'sequential_preLN__spectral_gfnet__geglu_ffn__prompt.s'
    open(out, 'w').write(gen_mega())
```

```python
from asmlib import *
from layout import *
import math

KNAME = 'sequential_preLN__spectral_gfnet__geglu_ffn__prompt_kernel'
FLB = 0x2E00000
FL1 = FLB
FL2 = FL1 + 9*4096
FL3 = FL2 + 9*4096
FLW = FL3 + 32*2048
FLC = FLW
FLC2 = FLW + 16384
FLCx = FLW + 24*4096
FL4 = FLCx + 4096
TKC = 0x2F80000
FLX = 0x2F00000
WS_WP = WS_H
LDS_G = 36864
LDS_HS = 147456
LDS_ST = 159744
LDS_SY = LDS_ST + 1536
LDS_ID = LDS_SY + 16
LDS_TOTAL = LDS_SY + 64
LDS_W = 110592
LDS_BN = 147456
WS_JUNK = 0x09C0000
TOK = 56
SPIN = 50000

HEADER = """; pre-LN GFNet spectral block + GEGLU FFN, one persistent kernel (256 workgroups, one per CU). Generated by my own script.
; Hand-offs use write-through stores plus per-launch token flags / tags or pre-cleared sentinel words; all spins are bounded.
"""
def stamp(a, idx, on):
    if on: a(f's_memtime s[{60+2*idx}:{61+2*idx}]')
def rstamp(a, idx, on):
    if on: a(f's_memrealtime s[{60+2*idx}:{61+2*idx}]')

def srd(a, d, lo, size):
    a(f's_mov_b32 s{d}, s{lo}\ns_mov_b32 s{d+1}, s{lo+1}\ns_mov_b32 s{d+2}, {size}\ns_mov_b32 s{d+3}, 0x20000')

def spread(a, mf, fillers, lo=0, hi=None):
    n = len(mf)
    if hi is None: hi = n
    span = max(hi - lo, 1); done = 0
    for i, m in enumerate(mf):
        m()
        if i >= lo:
            want = min(len(fillers), -(-len(fillers)*(i-lo+1)//span))
            while done < want:
                fillers[done](); done += 1
    while done < len(fillers):
        fillers[done](); done += 1

class Ops(list):
    def __init__(self, a): super().__init__(); self.a = a
    def e(self, s):
        for line in s.split('\n'):
            if line.strip(): self.append(lambda line=line: self.a(line))
    def f(self, fn): self.append(fn)

def gen_mega(diag=False, R=26, FPX=2, UP=12, RATE0=2, WSC='sc1', NOSHUF=False, SLEEP=0, FE=False, PACE=1, PRE=16, G1=18, G2S=False, NT='nt', G0=2, GPK=True, NTX='nt', NTW='', G1W=2, NTX2='', P128=4, PF=True, **kw):
    a = Asm()
    name = KNAME
    MK = kw.get('MK')
    _stamp = globals()['stamp']
    PROBE = kw.get('PROBE')
    def stamp(a_, idx, on):
        if MK is None or idx == 14: _stamp(a_, idx, on)
    def mark(nm):
        if diag and MK and nm in MK: _stamp(a, 1 + MK.index(nm), True)
        if PROBE == nm: a('s_memrealtime s[62:63]')
    lbl = {'n': 0}
    def L(p):
        lbl['n'] += 1; return f'L_{p}{lbl["n"]}'
    V_L8 = 250
    V_F0 = 251
    V_TK = 252
    V_MU = 254
    V_CK = 248

    cold = []
    class outline:
        def __enter__(self): self.n = len(a.L); self.vm = list(a.vm); self.lg = list(a.lg)
        def __exit__(self, *e):
            cold.extend(a.L[self.n:]); del a.L[self.n:]; a.vm = self.vm; a.lg = self.lg
    def chk_ld(soff, vdst, smask):
        ld = f'buffer_load_dwordx2 {vr(vdst,2)}, v{V_L8}, s[12:15], s{soff} offen sc1'
        if smask is None: return ld
        return f's_mov_b64 exec, s[{smask}:{smask+1}]\n{ld}\ns_mov_b64 exec, -1'
    def chk_issue(soff, vdst, tag, smask=None):
        a(chk_ld(soff, vdst, smask)); a.vm.append(tag)
    def chk_verify(soff, vdst, tag, smask, sleep=None):
        a.wait(vm=[tag])
        ok, lp = L('ok'), L('lp')
        test = f'v_cmp_eq_u64 vcc, s[{TOK}:{TOK+1}], {vr(vdst,2)}\ns_nop 1\n'
        test += (f's_orn2_b64 vcc, vcc, s[{smask}:{smask+1}]\n' if smask is not None else '') + 's_cmp_eq_u64 vcc, -1\n'
        a(test + f's_cbranch_scc0 {lp}s\n{ok}:')
        with outline():
            a(f'{lp}s:\ns_mov_b32 s59, {SPIN}\n{lp}:')
            sl = SLEEP if sleep is None else sleep
            if sl: a(f's_sleep {sl}')
            a(chk_ld(soff, vdst, smask) + f'\ns_waitcnt vmcnt(0)\ns_sub_u32 s59, s59, 1\ns_cbranch_scc1 {ok}')
            a(test + f's_cbranch_scc0 {lp}\ns_branch {ok}')
    def flag_store(soff, vt=None, vf=None):
        if vf is None and kw.get('FX', 1):
            a('s_mov_b64 exec, 1'); a.vmem(f'buffer_store_dwordx2 {vr(V_TK,2)}, off, s[12:15], s{soff} sc1', 'fl'); a('s_mov_b64 exec, -1')
        else: a.vmem(f'buffer_store_dwordx2 {vr(vt or V_TK,2)}, v{vf or V_F0}, s[12:15], s{soff} offen sc1', 'fl')
    def tok_issue(off=0):
        a.vmem(f'buffer_load_dwordx2 {vr(V_TK,2)}, off, s[36:39], 0 offset:{off} sc1', 'tok')
    def tok_verify(off=0):
        a.wait(vm='tok')
        ok, lp = L('ok'), L('lp')
        rd = f'v_readfirstlane_b32 s{TOK}, v{V_TK}\nv_readfirstlane_b32 s{TOK+1}, v{V_TK+1}\ns_nop 1\ns_cmp_lg_u32 s{TOK}, 0\n'
        a(rd + f's_cbranch_scc1 {ok}\ns_mov_b32 s59, {SPIN}\n{lp}:')
        a(f's_sleep 4\nbuffer_load_dwordx2 {vr(V_TK,2)}, off, s[36:39], 0 offset:{off} sc1\ns_waitcnt vmcnt(0)\ns_sub_u32 s59, s59, 1\ns_cbranch_scc1 {ok}')
        a(rd + f's_cbranch_scc0 {lp}\n{ok}:')
    def lds_arrive(k, vt):
        a.waitall(vm=False)
        a(f'v_mov_b32 v{vt}, {LDS_SY+4*k}\nv_mov_b32 v{vt+1}, 1')
        a.lds(f'ds_add_u32 v{vt}, v{vt+1}', 'arr')
    def lds_wait(k, vt, n=192, slp=False):
        lp = L('ls')
        a(f'v_mov_b32 v{vt}, {LDS_SY+4*k}\ns_branch {lp}b\n{lp}:\ns_sleep 1\n{lp}b:\nds_read_b32 v{vt+1}, v{vt}\ns_waitcnt lgkmcnt(0)\nv_readfirstlane_b32 s59, v{vt+1}\ns_nop 1\ns_cmp_ge_u32 s59, {n}\ns_cbranch_scc0 {lp}' if slp else
          f'v_mov_b32 v{vt}, {LDS_SY+4*k}\n{lp}:\nds_read_b32 v{vt+1}, v{vt}\ns_waitcnt lgkmcnt(0)\nv_readfirstlane_b32 s59, v{vt+1}\ns_nop 1\ns_cmp_ge_u32 s59, {n}\ns_cbranch_scc0 {lp}')
        a.lg = []

    a.raw(kernel_header(name))
    a(f'''s_cmp_ge_u32 s2, 256
    s_cbranch_scc1 L_end
    s_getpc_b64 s[44:45]
    L_pc:
    s_load_dwordx2 s[4:5], s[0:1], 0
    s_load_dwordx4 s[48:51], s[0:1], 8
    s_load_dwordx4 s[36:39], s[0:1], 64''')
    if PROBE: a('s_memrealtime s[60:61]\ns_mov_b64 s[62:63], 0')
    if diag:
        for i in range(1, 16): a(f's_mov_b64 s[{60+2*i}:{61+2*i}], 0')
        a('s_memtime s[60:61]\ns_memrealtime s[92:93]')
    a(f'''v_lshrrev_b32 v8, 6, v0
    v_and_b32 v9, 63, v0
    v_readfirstlane_b32 s16, v8
    v_lshlrev_b32 v{V_L8}, 6, v9
    s_cmp_ge_u32 s2, 64
    s_cbranch_scc1 L_fftwg
    s_mov_b32 s46, L_codeend - L_pc
    s_mov_b32 s47, 0x20000
    s_lshl_b32 s23, s16, 13
    v_lshl_add_u32 v11, v9, 7, s23
    buffer_load_dword v254, v11, s[44:47], 0 offen {kw.get('CF', '')}
    s_branch L_pure
    L_fftwg:
    v_mov_b32 v10, {LDS_SY}
    v_mov_b32 v12, 0
    v_mov_b32 v13, 0
    v_mov_b32 v14, 0
    v_mov_b32 v15, 0
    ds_write_b128 v10, v[12:15]
    s_and_b32 s33, s2, 7
    s_lshr_b32 s34, s2, 3
    s_sub_u32 s34, s34, 8
    s_cmp_eq_u32 s16, 3
    s_cbranch_scc1 L_he''')
    def ws_srd():
        a(f'''s_waitcnt lgkmcnt(0)
        s_mov_b32 s12, s38
        s_mov_b32 s13, s39
        s_mov_b32 s14, {WS_SIZE}
        s_mov_b32 s15, 0x20000
        s_mov_b32 s38, 256
        s_mov_b32 s39, 0x20000
        v_min_u32 v{V_F0}, 1, v9
        v_lshlrev_b32 v{V_F0}, 31, v{V_F0}''')

    def ticket(cap, off, base):
        lp = L('tk')
        a(f'''s_getreg_b32 s30, hwreg(HW_REG_XCC_ID)
        s_mov_b32 s28, 7
        {lp}:
        s_and_b32 s30, s30, 7
        s_lshl_b32 s31, s30, 7
        s_add_u32 s31, s31, {TKC+off}
        s_mov_b32 s35, 1
        s_atomic_add s35, s[12:13], s31 glc
        s_waitcnt lgkmcnt(0)
        s_add_u32 s30, s30, 1
        s_cmp_lt_u32 s35, {cap}
        s_cbranch_scc1 {lp}x
        s_sub_u32 s28, s28, 1
        s_cbranch_scc0 {lp}
        s_lshr_b32 s35, s2, 3
        s_and_b32 s30, s2, 7
        s_add_u32 s30, s30, 1
        {lp}x:
        s_sub_u32 s30, s30, 1
        s_add_u32 s35, s35, {base}
        s_lshl_b32 s35, s35, 3
        s_add_u32 s35, s35, s30
        v_mov_b32 v10, {LDS_ID}
        v_mov_b32 v11, s35
        ds_write_b32 v10, v11
        s_waitcnt lgkmcnt(0)''')
    def get_id(vt, tok=False):
        a(f'v_mov_b32 v{vt}, {LDS_ID}')
        if tok: a(f'ds_read_b64 {vr(V_TK,2)}, v{vt} offset:8')
        a(f'ds_read_b32 v{vt}, v{vt}\ns_waitcnt lgkmcnt(0)\nv_readfirstlane_b32 s35, v{vt}')
        if tok: a(f'v_readfirstlane_b32 s{TOK}, v{V_TK}\nv_readfirstlane_b32 s{TOK+1}, v{V_TK+1}')
        a('s_nop 1')
        a.lg = []
    XV = 16; TB = 64; ACC = [136, 168]; XB = 200; TW = 216; ST = 222; TMP = 230
    def xreg(t, s): return vr(36*t + 4*s, 4, 'a')
    a(f'''s_mul_i32 s17, s34, 43
    s_lshr_b32 s17, s17, 7
    s_mul_i32 s18, s17, 3
    s_sub_u32 s18, s34, s18
    s_lshl_b32 s23, s33, 3
    s_add_u32 s17, s17, s23
    v_and_b32 v1, 31, v9
    v_lshrrev_b32 v2, 5, v9
    v_lshrrev_b32 v3, 2, v1
    s_mov_b32 s23, 73728
    v_mul_lo_u32 v4, v3, s23
    v_and_b32 v5, 3, v9
    v_lshl_add_u32 v4, v5, 4, v4
    v_lshl_add_u32 v4, v2, 6, v4
    s_mul_i32 s20, s17, 1152''')
    a('s_mul_i32 s23, s16, 384\ns_add_u32 s25, s20, s23')
    def rot_setup():
        a('s_mul_i32 s19, s18, 3\ns_add_u32 s19, s19, s16')
        for g in range(3):
            a(f'''s_add_u32 s23, s16, {g}
            s_cmp_ge_u32 s23, 3
            s_cselect_b32 s24, 3, 0
            s_sub_u32 s{28+g}, s23, s24''')
    V_L16 = 247
    def xload(t, s):
        a.lds(f'ds_read_b128 {xreg(t,s)}, v{V_L16} offset:{(s*4+t)*1024}', ('x', t, s))
    a(f's_mov_b32 s10, {NB}\ns_mov_b32 s11, 0x20000\ns_mul_i32 s24, s16, 12288')
    mark('t0'); a('s_waitcnt lgkmcnt(0)\ns_mov_b32 s8, s4\ns_mov_b32 s9, s5'); mark('karg')
    for t in range(4):
        for q in range(3):
            a(f's_add_u32 m0, s24, {(q*4+t)*1024}\ns_add_u32 s23, s25, {t*8*73728+128*q}')
            a.vmem(f'buffer_load_dwordx4 v4, s[8:11], s23 offen {NTX} lds', ('xd', t))
    mark('xiss')
    EB = '' if kw.get('XB', 1) else 's_barrier'
    a(f'''{EB}
    s_branch L_p1
    L_he:
    s_waitcnt lgkmcnt(0)
    {EB}
    s_branch L_help
''')
    a.raw('@@PURE@@')
    if kw.get('PAD', 1): a.raw('.p2align 12')
    a('L_p1:')
    rot_setup()
    ws_srd()
    a(f'v_lshlrev_b32 v{V_L16}, 4, v9')
    a(f'''s_lshl_b32 s23, s19, 5
    s_add_u32 s23, s23, 1
    v_add_u32 v6, s23, v1
    v_cvt_f32_u32 v6, v6
    v_mul_f32 v7, {hexf(1.0/576)}, v6
    v_mul_f32 v10, {hexf(1.0/18)}, v6
    v_cvt_f32_u32 v11, v2''')
    PM = 'op_sel:[0,0] op_sel_hi:[0,1]'; PF_ = 'op_sel:[1,1,0] op_sel_hi:[1,0,1]'
    OFS = 136
    for q in range(4): a(f'v_mul_f32 v12, {hexf(q+0.5)}, v7\nv_cos_f32 v{OFS+2*q}, v12\nv_sin_f32 v{OFS+2*q+1}, v12')
    a(f'v_mul_f32 v7, {hexf(3.5)}, v7')
    for q in range(8): a(f'v_mul_f32 v{OFS+q}, {hexf(2.0**-55)}, v{OFS+q}')
    E = lambda e: 152 + 2*e
    for s in range(9):
        a(f'''v_add_f32 v12, {hexf(2.0*s)}, v11
        v_mul_f32 v12, v12, v10
        v_fract_f32 v12, v12
        v_add_f32 v12, v12, v7
        v_cos_f32 v14, v12
        v_sin_f32 v15, v12
        s_nop 0''')
        for q in range(4): a(f'v_pk_mul_f32 {vr(E(4+q),2)}, {vr(OFS+2*q,2)}, v[14:15] {PM}')
        for q in range(4): a(f'v_pk_fma_f32 {vr(E(3-q),2)}, {vr(OFS+2*q,2)}, v[14:15], {vr(E(4+q),2)} {PF_} neg_hi:[1,0,0]')
        for q in range(4): a(f'v_pk_fma_f32 {vr(E(4+q),2)}, {vr(OFS+2*q,2)}, v[14:15], {vr(E(4+q),2)} {PF_} neg_lo:[1,0,0]')
        for e in range(0, 8, 2):
            a(f'v_cvt_pk_bf16_f32 v{TB+8*s+e//2}, v{E(e)}, v{E(e+1)}\nv_cvt_pk_bf16_f32 v{TB+8*s+4+e//2}, -v{E(e)+1}, -v{E(e+1)+1}')
    mark('tb7')
    SC = 2.0/(2048*576)
    ABR, ABI = 176, 192
    def p3_consts():
        a(f'''v_lshl_add_u32 v10, v1, 6, s17
        v_cvt_f32_u32 v10, v10
        v_mul_f32 v10, {hexf(1.0/2048)}, v10
        v_cvt_f32_u32 v11, v2
        v_mul_f32 v11, 4.0, v11
        v_mul_f32 v11, v11, v10
        v_mul_f32 v12, {hexf(5.0)}, v10''')
        for n in range(16):
            c = 222 + 4*(n & 1)
            a(f'''v_cos_f32 v{c}, v11
            v_sin_f32 v{c+1}, v11
            v_add_f32 v11, v11, v{10 if (n & 3) < 3 else 12}
            v_cvt_pk_bf16_f32 v{c+2}, v{c}, -v{c+1}
            v_cvt_pk_bf16_f32 v{c+3}, v{c+1}, v{c}
            v_accvgpr_write_b32 a{ABR+n}, v{c+2}
            v_accvgpr_write_b32 a{ABI+n}, v{c+3}''')
    goff = lambda n: 16*(n >> 3) + ((n >> 2) & 1) + 2*(n & 3)
    gpos = [n for n in range(16) if goff(n) > 11]
    gmir = {n: [q for q in range(16) if goff(q) == 23 - goff(n)][0] for n in gpos}
    def g_body(O, T, B, F, sink):
        for half in range(2):
            ns = gpos[4*half:4*half+4]
            for n in ns: a(f'v_pk_mul_f32 {vr(T+2*n,2)}, {vr(O+2*n,2)}, {vr(B,2)} {PM}')
            for n in ns: a(f'v_pk_fma_f32 {vr(T+2*gmir[n],2)}, {vr(O+2*n,2)}, {vr(B,2)}, {vr(T+2*n,2)} {PF_} neg_hi:[1,0,0]')
            for n in ns: a(f'v_pk_fma_f32 {vr(T+2*n,2)}, {vr(O+2*n,2)}, {vr(B,2)}, {vr(T+2*n,2)} {PF_} neg_lo:[1,0,0]')
            if half and F is not None: a(f'v_mul_f32 v{T+30}, v{T+30}, v{F}\nv_mul_f32 v{T+31}, v{T+31}, v{F}')
            for j in (gmir[ns[0]] >> 2, ns[0] >> 2): sink(j)
    def own_g():
        a(f'''v_and_b32 v10, 3, v9
        v_bfe_u32 v11, v9, 2, 1
        v_lshl_add_u32 v10, v11, 4, v10
        v_bfe_u32 v11, v9, 3, 2
        v_lshl_add_u32 v10, v11, 2, v10
        s_lshl_b32 s23, s19, 5
        v_add_u32 v10, s23, v10
        v_cvt_f32_u32 v10, v10
        v_mul_f32 v10, {hexf(1.0/576)}, v10
        s_mul_i32 s23, s30, 96
        v_lshl_add_u32 v11, v2, 3, s23
        v_cvt_f32_u32 v11, v11
        v_add_f32 v11, {hexf(12.5)}, v11
        v_cvt_f32_u32 v13, v2
        s_cmp_eq_u32 s30, 2
        s_cselect_b32 s23, -0.5, 0
        v_fma_f32 v13, v13, s23, 1.0''')
        for n in gpos: a(f'v_mul_f32 v12, {hexf(goff(n)-11.5)}, v10\nv_cos_f32 v{120+2*n}, v12\nv_sin_f32 v{121+2*n}, v12')
        for q in range(3):
            a(f'v_mul_f32 v12, v11, v10\nv_cos_f32 v14, v12\nv_sin_f32 v15, v12\nv_add_f32 v11, {hexf(32.0)}, v11')
            def sink(j, q=q):
                for n in range(4*j, 4*j+4): a(f'v_cvt_pk_bf16_f32 v{184+n}, v{152+2*n}, -v{153+2*n}')
                for n in range(4*j, 4*j+4): a(f'v_accvgpr_write_b32 a{96+16*q+n}, v{184+n}')
            g_body(120, 152, 14, 13 if q == 2 else None, sink)
    a(f'v_mul_f32 v12, {hexf(1.0/72)}, v6\nv_add_f32 v13, v12, v12\nv_add_f32 v14, v13, v12')
    for c in range(3):
        a(f'v_cos_f32 v{TW+2*c}, v{12+c}\nv_sin_f32 v{TW+2*c+1}, -v{12+c}')
    if kw.get('PC', 4) == 1: p3_consts()
    stamp(a, 1, diag); mark('tb')
    TE0 = kw.get('TE0', 1)
    pre_x = []
    a.raw('@@PREX@@')
    a.wait(vm=[('xd', 3)])
    mark('dot')
    if kw.get('XB', 1): a('s_barrier')
    else:
        a(f'v_mov_b32 v12, {LDS_SY}\nv_mov_b32 v13, 1')
        a.lds('ds_add_u32 v12, v13', 'arr')
        lds_wait(0, 12)
    for q in range(9): xload(0, q)
    mark('bar')

    def tile_mf(t):
        acc = ACC[t & 1]; mf = []
        for s in range(9):
            for cs in range(2):
                d = vr(acc+16*cs, 16)
                def f(s=s, cs=cs, d=d):
                    a.wait(lg=[('x', t, s)])
                    a(f'v_mfma_f32_32x32x16_bf16 {d}, {xreg(t,s)}, {vr(TB+8*s+4*cs)}, {"0" if s == 0 else d}')
                mf.append(f)
        return mf
    def combine(t):
        acc = ACC[t & 1]; o = Ops(a)
        for c in range(1, 4):
            tr, ti = TW+2*(c-1), TW+2*(c-1)+1
            for j in range(4):
                o.e(f'v_fmac_f32 v{acc+4*j}, v{tr}, v{acc+4*j+c}\nv_fmac_f32 v{acc+16+4*j}, v{tr}, v{acc+16+4*j+c}')
            for j in range(4):
                o.e(f'v_fma_f32 v{acc+4*j}, -v{ti}, v{acc+16+4*j+c}, v{acc+4*j}\nv_fmac_f32 v{acc+16+4*j}, v{ti}, v{acc+4*j+c}')
        for j in range(4): o.e(f'v_cvt_pk_bf16_f32 v{XB+4*t+j}, v{acc+4*j}, v{acc+16+4*j}')
        return o
    A1R, A1I, CSR = TMP, 48, 16
    def trig_ops():
        o = Ops(a)
        o.e(f'''v_lshl_add_u32 v12, v2, 6, s17
        v_mul_u32_u24 v12, v12, v1
        v_cvt_f32_u32 v12, v12
        v_mul_f32 v12, {hexf(1.0/2048)}, v12
        v_cvt_f32_u32 v13, v1
        v_mul_f32 v13, {hexf(1.0/16)}, v13''')
        for n in range(16): o.e(f'v_cos_f32 v{CSR+2*n}, v12\nv_sin_f32 v{CSR+2*n+1}, v12\nv_add_f32 v12, v12, v13')
        return o
    def rs_ops():
        o = Ops(a)
        o.f(lambda: lds_wait(3, 12, 64))
        o.e(f'v_lshlrev_b32 v12, 6, v2\nv_add_u32 v12, {LDS_ST}, v12\nv_lshlrev_b32 v13, 2, v1\nv_add_u32 v13, {LDS_ST+128}, v13')
        for q in range(4): o.f(lambda q=q: a.lds(f'ds_read_b128 {vr(A1I+4*q)}, v12 offset:{16*q}', 'rs'))
        o.f(lambda: a.lds(f'ds_read_b32 v{V_MU}, v13', 'rs'))
        return o
    def a1_ops(lo, hi):
        o = Ops(a)
        if lo == 0: o.f(lambda: a.wait(lg='rs'))
        for n in range(lo, hi): o.e(f'v_mul_f32 v{CSR+2*n}, v{CSR+2*n}, v{A1I+n}\nv_mul_f32 v{CSR+2*n+1}, v{CSR+2*n+1}, v{A1I+n}')
        for n in range(lo, hi): o.e(f'v_cvt_pk_bf16_f32 v{A1R+n}, v{CSR+2*n}, v{CSR+2*n+1}\nv_cvt_pk_bf16_f32 v{A1I+n}, -v{CSR+2*n+1}, v{CSR+2*n}')
        return o
    TAGM = 0x70007000
    def tag_ops(dst, c):
        return f'v_mad_u32_u24 v{dst}, v{c}, v14, v{V_TK}\nv_mul_lo_u32 v{dst}, v{dst}, s31\nv_alignbit_b32 v13, v{dst}, v{dst}, 13\nv_xor_b32 v{dst}, v{dst}, v13\nv_and_b32 v{dst}, {TAGM}, v{dst}'
    def ptags():
        o = Ops(a)
        o.e(f's_mov_b32 s31, 0x9e3779b1\nv_mov_b32 v14, 0x5bd1e9\nv_and_b32 v15, 3, v9\nv_lshlrev_b32 v15, 2, v15')
        for i in range(4): o.e(tag_ops(222+i, 15) + '\nv_add_u32 v15, 1, v15')
        return o
    xl = lambda t: [lambda q=q: xload(t, q) for q in range(9)]
    if TE0:
        n0 = len(a.L)
        for f in trig_ops(): f()
        pre_x = a.L[n0:]; del a.L[n0:]
    k = a.L.index('@@PREX@@'); a.L[k:k+1] = pre_x
    pc = []
    if kw.get('PC', 4) == 4:
        n0 = len(a.L); p3_consts(); lines = a.L[n0:]; del a.L[n0:]
        pc = [lambda l=l: a.raw(l) for l in lines]
    PCS = kw.get('PCS', 70)
    spread(a, tile_mf(0), xl(1) + ([] if TE0 else trig_ops()) + pc[:PCS] + xl(2), 0); mark('m0')
    o1 = Ops(a)
    o1.e(f'''v_lshrrev_b32 v5, 3, v1
    v_lshlrev_b32 v5, 10, v5
    v_and_b32 v4, 7, v1
    v_lshl_add_u32 v5, v4, 6, v5
    v_lshl_add_u32 v5, v2, 5, v5
    s_lshr_b32 s23, s19, 1
    s_lshl_b32 s23, s23, 12
    s_and_b32 s24, s19, 1
    s_lshl_b32 s24, s24, 9
    s_add_u32 s23, s23, s24
    v_add_u32 v4, s23, v5
    s_add_u32 s24, s19, 9
    s_lshr_b32 s23, s24, 1
    s_lshl_b32 s23, s23, 12
    s_and_b32 s24, s24, 1
    s_lshl_b32 s24, s24, 9
    s_add_u32 s23, s23, s24
    v_add_u32 v5, s23, v5''')
    for q in range(4):
        o1.f(lambda q=q: a.lds(f'ds_read_b128 {vr(240+4*q,4,"a")}, v{4+(q>>1)} offset:{(q&1)*16}', 'x3'))
    spread(a, tile_mf(1), xl(3) + o1 + combine(0), 0); mark('m1')
    spread(a, tile_mf(2), pc[PCS:] + combine(1), 0 if pc else 4); mark('m2')
    c2 = combine(2)
    spread(a, tile_mf(3), rs_ops() + c2 + a1_ops(0, 8), 0); mark('m3')
    O = ACC[0]
    def st2(t):
        return [lambda: a(f'v_mfma_f32_32x32x16_bf16 {vr(O,16)}, {vr(A1R+4*t)}, {vr(XB+4*t)}, {"0" if t == 0 else vr(O,16)}'),
                lambda: a(f'v_mfma_f32_32x32x16_bf16 {vr(O+16,16)}, {vr(A1I+4*t)}, {vr(XB+4*t)}, {"0" if t == 0 else vr(O+16,16)}')]
    a('s_nop 1')
    m = st2(0) + st2(1)
    spread(a, m, a1_ops(8, 16), 0)
    pt = ptags()
    c3 = combine(3)
    lds_wait(3, 12, 128)
    a(f'v_mov_b32 v12, {LDS_ID}'); a.lds(f'ds_read_b64 {vr(V_TK,2)}, v12 offset:8', 'tk')
    for f in c3[:20]: f()
    spread(a, st2(2), c3[20:], 0)
    a('s_nop 1')
    for f in st2(3): f()
    a.wait(lg='tk')
    for f in pt: f()
    a(f'''s_mov_b32 s23, 294912
    v_mul_lo_u32 v12, v2, s23
    v_lshl_add_u32 v12, v1, 4, v12
    s_lshl_b32 s22, s19, 6
    s_add_u32 s22, s22, s17
    s_lshl_b32 s23, s22, 9
    s_add_u32 s23, s23, {WS_Z1}''')
    mark('s2'); mark('cc')
    for j in range(4):
        for i in range(4): a(f'v_cvt_pk_bf16_f32 v{XB+4*j+i}, v{O+4*j+i}, v{O+16+4*j+i}')
        for i in range(4): a(f'v_xor_b32 v{XB+4*j+i}, v{XB+4*j+i}, v{222+i}')
        a.vmem(f'buffer_store_dwordx4 {vr(XB+4*j)}, v12, s[12:15], s23 offen sc1', 'st1')
        if j < 3: a(f's_add_u32 s23, s23, {2*294912}')
    stamp(a, 2, diag); mark('p1')
    a('v_and_b32 v15, 15, v9\n' + tag_ops(246, 15))

    if kw.get('PC', 4) == 3: p3_consts()
    if kw.get('OG', 2) == 1: own_g()
    Z = 16; WR = 32; WI = 48; XR = 64; XI = 80; Y = 96; AT = 112; TI = 32
    def areg(mt, v, sg): return AT + ((mt*2 + v)*4 + sg)*4
    a(f'''s_mul_i32 s24, s34, 3
    s_add_u32 s24, s24, s16
    s_lshr_b32 s20, s24, 3
    s_and_b32 s21, s24, 7
    v_and_b32 v3, 15, v9
    v_lshrrev_b32 v4, 4, v9
    v_mov_b32 v14, v{V_L16}
    v_lshlrev_b32 v8, 9, v4
    v_and_b32 v6, 3, v9
    v_lshl_add_u32 v8, v6, 5, v8
    v_and_b32 v6, 1, v9
    v_lshlrev_b32 v6, 1, v6
    v_sub_u32 v8, v8, v6
    v_bfe_u32 v6, v9, 2, 2
    v_lshl_add_u32 v8, v6, 1, v8
    s_lshl_b32 s23, s16, 3
    s_add_u32 s23, s23, {LDS_W + 2}
    v_add_u32 v8, s23, v8''')
    for i in range(32): a(f'v_mov_b32 v{WR+i}, 0')
    lds_wait(2, 10, 64, True)
    wrd = [(r, arr) for r in range(16) for arr in range(2)]
    ZP = kw.get('ZP', 16)
    a(f'''v_lshlrev_b32 v240, 11, v4
    v_lshl_add_u32 v240, v3, 2, v240
    s_mul_i32 s22, s33, 9
    s_add_u32 s22, s22, s20
    s_lshl_b32 s22, s22, 15
    s_lshl_b32 s23, s21, 6
    s_add_u32 s22, s22, s23
    s_add_u32 s22, s22, {WS_Z1}''')
    a('s_add_u32 s24, s22, 8192\ns_add_u32 s25, s22, 16384\ns_add_u32 s26, s22, 24576\ns_mov_b32 s27, s22')
    stamp(a, 3, diag)
    def zloads():
        for sg in range(4):
            for j in range(4):
                a.vmem(f'buffer_load_dword v{Z+4*sg+j}, v240, s[12:15], s{(27,24,25,26)[sg]} offen offset:{j*512} sc1', 'z')
    def maxchain(base, n, t0):
        t = f'v_max3_u32 v{t0}, v{base}, v{base+1}, v{base+2}\nv_max3_u32 v{t0+1}, v{base+3}, v{base+4}, v{base+5}\n'
        i = 6
        while i < n:
            t += f'v_max3_u32 v{t0+(i//2+1)%2}, v{t0+(i//2+1)%2}, v{base+i}, v{base+i+1}\n'; i += 2
        return t + f'v_max_u32 v{t0}, v{t0}, v{t0+1}\nv_cmp_eq_u32 vcc, -1, v{t0}\n'
    def sentinel(base, n, tag, reload, t0, after=None, pre=False, inline=False):
        a.wait(vm=[tag], lg=[tag]); mark(('w', tag))
        ok, lp = L('ok'), L('lp')
        t = maxchain(base, n, t0) + 's_nop 1\ns_cmp_eq_u64 vcc, 0\n'
        OL = kw.get('OL', 1) if not inline else 0
        if OL: a(('s_cmp_eq_u64 vcc, 0\n' if pre else t) + f's_cbranch_scc0 {lp}s\n{ok}:')
        else: a(('s_cmp_eq_u64 vcc, 0\n' if pre else t) + f's_cbranch_scc1 {ok}')
        n0 = len(cold)
        with outline():
            a(f'{lp}s:\ns_mov_b32 s59, {SPIN}\n{lp}:')
            reload()
            a(f's_waitcnt vmcnt(0)')
            if after: after(); a('s_waitcnt lgkmcnt(0)')
            a(f's_sub_u32 s59, s59, 1\ns_cbranch_scc1 {ok}')
            a(t + f's_cbranch_scc0 {lp}' + (f'\ns_branch {ok}' if OL else f'\n{ok}:'))
        if not OL:
            a.L.extend(cold[n0:]); del cold[n0:]
    a(f'''v_cvt_f32_u32 v5, v3
    v_mul_f32 v5, {hexf(1.0/64)}, v5
    v_cvt_f32_u32 v6, v4
    v_mul_f32 v6, 4.0, v6
    v_mul_f32 v6, v6, v5
    v_mul_f32 v7, {hexf(13.0)}, v5''')
    rot = lambda n, c, s: [(f'v{c}', f'v{s}'), (f'-v{s}', f'v{c}'), (f'-v{c}', f'-v{s}'), (f'v{s}', f'-v{c}')][n % 4]
    for sg in range(4):
        for j in range(4):
            if 4*sg+j == ZP: zloads()
            for (r, arr) in wrd[4*(4*sg+j):4*(4*sg+j)+4]:
                a.lds(f'ds_read_u16_d16_hi v{(WR,WI)[arr]+r}, v8 offset:{arr*8192+(r>>2)*2048+(r&3)*128}', 'w')
            c = 10 + 2*(j & 1)
            a(f'v_cos_f32 v{c}, v6\nv_sin_f32 v{c+1}, v6')
            a(f'v_add_f32 v6, v6, v{5 if j < 3 else 7}')
            for mt in range(4):
                for v in range(2):
                    p = rot(j*mt + v, c, c+1)
                    a(f'v_cvt_pk_bf16_f32 v{areg(mt,v,sg)+j}, {p[0]}, {p[1]}')
    mark('p2t')
    if ZP == 16: zloads()
    a(f'''s_mov_b32 s23, 36864
    v_lshrrev_b32 v6, 2, v9
    v_mul_lo_u32 v6, v6, s23
    v_and_b32 v7, 3, v9
    v_lshl_add_u32 v6, v7, 4, v6
    s_lshl_b32 s23, s16, 12
    s_add_u32 s23, s23, {LDS_BN}
    v_lshlrev_b32 v7, 6, v3
    v_lshl_add_u32 v7, v4, 4, v7
    v_add_u32 v7, s23, v7
    v_add_u32 v15, s23, v14
    s_lshl_b32 s22, s20, 12
    s_lshl_b32 s23, s33, 9
    s_add_u32 s22, s22, s23
    s_lshl_b32 s23, s21, 6
    s_add_u32 s22, s22, s23
    s_add_u32 s22, s22, {WS_T}''')
    def fwd(mt):
        mf = []
        for v in range(2):
            d = vr((XR, XI)[v] + 4*mt)
            for sg in range(4):
                def f(v=v, sg=sg, d=d):
                    a(f'v_mfma_f32_16x16x32_bf16 {d}, {vr(areg(mt,v,sg))}, {vr(Z+4*sg)}, {"0" if sg == 0 else d}')
                mf.append(f)
        return mf
    def filt(mt):
        o = Ops(a)
        for i in range(4): o.e(f'v_mul_f32 v{10+i}, v{XR+4*mt+i}, v{WR+4*mt+i}')
        for i in range(4): o.e(f'v_mul_f32 v{XR+4*mt+i}, v{XR+4*mt+i}, v{WI+4*mt+i}')
        for i in range(4): o.e(f'v_fma_f32 v{10+i}, -v{XI+4*mt+i}, v{WI+4*mt+i}, v{10+i}')
        for i in range(4): o.e(f'v_fmac_f32 v{XR+4*mt+i}, v{XI+4*mt+i}, v{WR+4*mt+i}')
        for i in range(4): o.e(f'v_cvt_pk_bf16_f32 v{Y+4*mt+i}, v{10+i}, -v{XR+4*mt+i}')
        return o
    a.wait(lg='w')
    for i in range(32): a(f'v_mul_f32 v{WR+i}, {hexf(SC*2.0**110)}, v{WR+i}')
    lds_wait(2, 10, 128, True); mark('p2w')
    a.wait(vm='z'); mark(('w', 'z'))
    ok, lp = L('ok'), L('lp')
    t = ''.join(f'v_xor_b32 v{Z+i}, v{Z+i}, v246\n' for i in range(16))
    t += f'v_or3_b32 v10, v{Z}, v{Z+1}, v{Z+2}\nv_or3_b32 v11, v{Z+3}, v{Z+4}, v{Z+5}\n'
    t += ''.join(f'v_or3_b32 v{10+(i//2+1)%2}, v{10+(i//2+1)%2}, v{Z+i}, v{Z+i+1}\n' for i in range(6, 16, 2))
    t += f'v_or_b32 v10, v10, v11\nv_and_b32 v10, {TAGM}, v10\nv_cmp_ne_u32 vcc, 0, v10\ns_nop 1\ns_cmp_eq_u64 vcc, 0\n'
    a(t + f's_cbranch_scc1 {ok}\ns_mov_b32 s59, {SPIN}\n{lp}:')
    zloads(); a.vm = []
    a(f's_waitcnt vmcnt(0)\n' + t + f's_cbranch_scc1 {ok}\ns_sub_u32 s59, s59, 1\ns_cbranch_scc0 {lp}\n{ok}:')
    stamp(a, 4, diag); mark('z')
    for f in fwd(0) + fwd(1): f()
    spread(a, fwd(2), filt(0))
    spread(a, fwd(3), filt(1))
    TRr = lambda mt: Z + 4*mt
    TIr = lambda mt: (XR, XR+4, XI, XI+4)[mt]
    def inv(sg):
        mf = []
        for mt in range(4):
            for v in range(2):
                d = vr(TRr(mt) if v == 0 else TIr(mt))
                mf.append(lambda v=v, mt=mt, d=d: a(f'v_mfma_f32_16x16x32_bf16 {d}, {vr(Y+4*sg)}, {vr(areg(mt,v,sg))}, {"0" if sg == 0 else d}'))
        return mf
    spread(a, inv(0), filt(2))
    spread(a, inv(1), filt(3))
    a('s_nop 1')
    for f in inv(2): f()
    for f in inv(3): f()
    a('s_nop 1')
    for mt in range(4):
        if mt == 3: a('s_nop 0')
        for i in range(4): a(f'v_cvt_pk_bf16_f32 v{WR+4*mt+i}, v{TRr(mt)+i}, -v{TIr(mt)+i}')
        a.lds(f'ds_write_b128 v7, {vr(WR+4*mt)} offset:{1024*mt}', 'tw')
        a.lds(f'ds_read_b128 {vr(WI+4*mt)}, v15 offset:{1024*mt}', ('tr', mt))
    for mt in range(4):
        a.wait(lg=[('tr', mt)])
        a.vmem(f'buffer_store_dwordx4 {vr(WI+4*mt)}, v6, s[12:15], s22 offen sc1', 'st2')
        if mt < 3: a(f's_add_u32 s22, s22, {16*36864}')
    stamp(a, 5, diag); mark('p2')
    lds_arrive(3, 10)

    TT = 48; BR = 96; BI = 112; AC3 = [128, 160]; PK = 192; XX = 208; ZB = 16
    if kw.get('PC', 4) == 0: p3_consts()
    a(f'''v_and_b32 v4, 7, v1
    v_lshlrev_b32 v4, 1, v4
    v_bfe_u32 v5, v1, 3, 1
    v_add_u32 v4, v4, v5
    v_and_b32 v5, 16, v1
    v_add_u32 v4, v4, v5
    v_lshlrev_b32 v4, 4, v4
    v_lshl_add_u32 v4, v2, 9, v4
    s_mul_i32 s20, s17, 9
    s_mul_i32 s23, s16, 3
    s_add_u32 s20, s20, s23
    s_lshl_b32 s20, s20, 12
    s_add_u32 s20, s20, {WS_T}
    s_add_u32 s21, s20, 4096
    s_add_u32 s22, s20, 8192
    s_mul_i32 s23, s16, 12288
    v_add_u32 v7, s23, v14''')
    AO, AE = 192, 208
    LO = AC3[0]; HI = AC3[0]+16
    def tloads(kt):
        for tau in range(4):
            a.vmem(f'buffer_load_dwordx4 {vr(TT+16*kt+4*tau)}, v4, s[12:15], s{(20,21,22)[kt]} offen offset:{tau*1024} sc1', ('t', kt))
    if kw.get('OG', 2) == 2: own_g(); a(f'v_mov_b32 v14, v{V_L16}')
    if kw.get('TE', 1) == 0:
        for kt in range(3): tloads(kt)
    for i in range(16): a(f'v_accvgpr_read_b32 v{16+i}, a{240+i}')
    for r in range(16):
        x0 = 16 + r//2; x1 = 24 + r//2
        if r % 2 == 0: a(f'v_lshlrev_b32 v12, 16, v{x0}\nv_lshlrev_b32 v13, 16, v{x1}')
        else: a(f'v_and_b32 v12, 0xffff0000, v{x0}\nv_and_b32 v13, 0xffff0000, v{x1}')
        a(f'v_sub_f32 v{AO+r}, v12, v13\nv_mul_f32 v{AO+r}, 0.5, v{AO+r}\nv_sub_f32 v12, v12, v{V_MU}\nv_sub_f32 v{AE+r}, v12, v{AO+r}')
    if kw.get('TE', 1) == 1:
        for kt in range(3): tloads(kt)
    mark('tiss'); lds_wait(2, 10, 192, True); mark('gw')
    a(f's_mul_i32 s24, s16, 24576\ns_add_u32 s24, s24, {LDS_G}\nv_add_u32 v5, s24, v14')
    for n in range(24): a.lds(f'ds_read_b128 {vr(4*n,4,"a")}, v5 offset:{1024*n}', 'g')
    if kw.get('TE', 1) == 3:
        for kt in range(3): tloads(kt)
    for g in range(1, 3): a(f's_mul_i32 s23, s{28+g}, 12288\nv_add_u32 v{224+g}, s23, v14')
    a(f'''v_lshlrev_b32 v8, 11, v2
    v_lshl_add_u32 v8, v1, 4, v8
    s_lshr_b32 s23, s17, 1
    s_mul_i32 s24, s23, 73728
    s_and_b32 s26, s17, 1
    s_lshl_b32 s27, s26, 9
    s_add_u32 s24, s24, s27
    s_lshl_b32 s27, s19, 12
    s_add_u32 s24, s24, s27
    s_add_u32 s24, s24, {WS_HC}
    s_add_u32 s27, s24, 36864
    s_mul_i32 s25, s26, 9
    s_add_u32 s25, s25, s19
    s_lshl_b32 s25, s25, 6
    s_lshl_b32 s31, s23, 11
    s_add_u32 s25, s25, s31
    s_add_u32 s58, s25, {FL3}
    s_mul_i32 s23, s23, {NSSQ}
    s_add_u32 s23, s23, s19
    s_lshl_b32 s23, s23, 8
    s_lshl_b32 s26, s26, 7
    s_add_u32 s23, s23, s26
    s_add_u32 s23, s23, {WS_SSQ}
    v_lshlrev_b32 v6, 2, v1
    v_mov_b32 v255, v{V_F0}''')
    lds_wait(3, 10, 320); get_id(10, True); mark('gr')
    if kw.get('TE', 1) == 2:
        for kt in range(3): tloads(kt)
    def chk(kt): return lambda: sentinel(TT+16*kt, 16, ('t', kt), lambda: [tloads(q) for q in range(kt, 3)], 10, inline=(kt == 0))
    def s1_mf(kt):
        acc = AC3[kt & 1]; mf = []
        for tau in range(4):
            for v in range(2):
                d = vr(acc+16*v, 16)
                mf.append(lambda tau=tau, v=v, d=d: a(f'v_mfma_f32_32x32x16_bf16 {d}, {vr(TT+16*kt+4*tau)}, {vr((ABR,ABI)[v]+4*tau,4,"a")}, {"0" if tau == 0 else d}'))
        return mf
    def s1_out(kt):
        acc = AC3[kt & 1]; o = Ops(a)
        for j in range(4):
            for i in range(4): o.e(f'v_cvt_pk_bf16_f32 v{TT+16*kt+4*j+i}, v{acc+4*j+i}, v{acc+16+4*j+i}')
            o.f(lambda j=j: a.lds(f'ds_write_b128 v7, {vr(TT+16*kt+4*j)} offset:{(4*kt+j)*1024}', 'zw'))
        return o
    def mmf(n, B):
        d = vr(AO if n % 2 == 0 else AE, 16)
        a(f'v_mfma_f32_32x32x16_bf16 {d}, {vr(4*n,4,"a")}, {B}, {d}')
    chk(0)()
    spread(a, s1_mf(0), [chk(1)], 2, 3)
    stamp(a, 6, diag); mark('k0')
    m = s1_mf(1)
    m[0](); chk(2)()
    if kw.get('PT', 0):
        a(f'v_mov_b32 v10, {LDS_SY}\nv_mov_b32 v11, 1'); a.lds('ds_add_u32 v10, v11', 'arr')
    spread(a, m[1:], s1_out(0), 0, 6); mark('k1')
    m = s1_mf(2)
    for f in m[:3]: f()
    a('s_nop 7')
    spread(a, m[3:], s1_out(1)); mark('k2')
    own = [lambda n=n: mmf(n, vr(TT+4*n)) for n in range(12)]
    for f in own[:3]: f()
    a('s_nop 7')
    spread(a, own[3:8], s1_out(2))
    lds_arrive(1, 10); mark('za')
    for f in own[8:11]: f()
    lds_wait(1, 10); mark('zw')
    zl = {'n': 12}
    def zload():
        n = zl['n']
        if n >= 36: return
        a.lds(f'ds_read_b128 {vr(ZB+4*(n%8))}, v{224+n//12} offset:{(n%12)*1024}', ('zf', n)); zl['n'] += 1
    for i in range(7): zload()
    own[11]()
    for n in range(12, 36):
        a.wait(lg=[('zf', n)])
        mmf(n, vr(ZB+4*(n%8)))
        zload()
    mark('mm')
    a('s_nop 7\ns_nop 3')
    PK = 48
    for q in range(4):
        dst = (LO, HI)[q >> 1] + 8*(q & 1)
        for r in range(8): a(f'v_{"add" if q < 2 else "sub"}_f32 v{dst+r}, v{AE+8*(q&1)+r}, v{AO+8*(q&1)+r}')
        for i in range(4): a(f'v_cvt_pk_bf16_f32 v{PK+4*q+i}, v{dst+2*i}, v{dst+2*i+1}')
        a.vmem(f'buffer_store_dwordx4 {vr(PK+4*q)}, v8, s[12:15], s{24 if q < 2 else 27} offen offset:{(q&1)*1024} sc1', 'st3')
    a(f'v_mul_f32 v11, v{LO}, v{LO}\nv_mul_f32 v12, v{HI}, v{HI}')
    for r in range(1, 16): a(f'v_fmac_f32 v11, v{LO+r}, v{LO+r}\nv_fmac_f32 v12, v{HI+r}, v{HI+r}')
    a(f'''v_add_f32 v11, v11, v12
    v_mov_b32 v12, v11
    s_nop 1
    v_permlane32_swap_b32 v11, v12
    s_nop 1
    v_add_f32 v11, v11, v12''')
    a.vmem(f'buffer_store_dword v11, v6, s[12:15], s23 offen sc1', 'st3')
    a(f's_lshl_b32 s23, s17, 7\ns_add_u32 s23, s23, {WS_MU}\ns_cmp_eq_u32 s19, 0\ns_cselect_b32 s24, 0, 0x80000000\nv_or_b32 v6, s24, v6')
    a.vmem(f'buffer_store_dword v{V_MU}, v6, s[12:15], s23 offen sc1', 'st3')
    stamp(a, 7, diag); mark('p3')
    a('s_branch L_ffn')
    a.L.extend(cold); del cold[:]

    gst = {'it': 0}
    def gen_g(cnt):
        cnt = min(cnt, 18 - gst['it'])
        while cnt > 0:
            it = gst['it']; w, r = it//6, it % 6
            kt = (3*w + r) % 9
            if r == 0:
                a(f'v_add_u32 v21, {32*w}, v18\nv_cvt_f32_u32 v21, v21\nv_mul_f32 v21, {hexf(1.0/576)}, v21')
                for n in gpos: a(f'v_mul_f32 v23, {hexf(goff(n)-11.5)}, v21\nv_cos_f32 v{180+2*n}, v23\nv_sin_f32 v{181+2*n}, v23')
            m = min(cnt, 6 - r, 9 - kt)
            lp = L('gg')
            a(f'''v_add_f32 v22, {hexf(32.0*kt + 11.5)}, v19
            s_mov_b32 s31, {kt}
            {lp}:
            v_mul_f32 v23, v22, v21
            v_cos_f32 v24, v23
            v_sin_f32 v25, v23
            v_add_f32 v22, {hexf(32.0)}, v22
            s_cmp_eq_u32 s31, 8
            s_cselect_b64 vcc, -1, 0
            v_cndmask_b32 v26, 1.0, v17, vcc''')
            def sink(j):
                for n in range(4*j, 4*j+4): a(f'v_cvt_pk_bf16_f32 v{212+n}, v{136+2*n}, -v{137+2*n}')
                a(f'ds_write_b128 v20, {vr(212+4*j)} offset:{1024*j}')
            g_body(180, 136, 24, 26, sink)
            a(f'''v_add_u32 v20, 4096, v20
            s_add_u32 s31, s31, 1
            s_cmp_lt_u32 s31, {kt+m}
            s_cbranch_scc1 {lp}''')
            a.lg.append('gw')
            gst['it'] += m; cnt -= m
    a.vm = [None]*9; a.lg = []
    a(f'''L_help:
    s_mov_b32 s58, 0
    v_bfrev_b32 v255, 1''')
    srd(a, 40, 48, 2048*578); srd(a, 44, 50, 2048*578)
    a(f'''v_lshrrev_b32 v4, 3, v9
    v_lshlrev_b32 v4, 5, v4
    v_bfe_u32 v5, v9, 1, 2
    v_add_u32 v4, v4, v5
    v_mul_u32_u24 v4, 578, v4
    v_and_b32 v5, 2, v9
    v_add_u32 v4, v4, v5
    v_and_b32 v5, 1, v9
    v_lshl_add_u32 v4, v5, 4, v4
    s_mul_i32 s22, s33, {4*578}
    s_mul_i32 s23, s34, 24
    s_add_u32 s22, s22, s23''')
    if kw.get('WT', 2):
        a(f'''v_mul_u32_u24 v5, 13, v9
        v_lshrrev_b32 v5, 8, v5
        v_mul_u32_u24 v6, 20, v5
        v_sub_u32 v6, v9, v6
        s_mul_i32 s23, s34, 3
        v_add_u32 v5, s23, v5
        v_mul_u32_u24 v5, {32*578}, v5
        s_mul_i32 s23, s33, {4*578}
        v_add_u32 v5, s23, v5
        v_and_b32 v5, 0xffffff80, v5
        v_lshl_add_u32 v5, v6, 7, v5
''')
    def wtouch():
        a(f'''s_bfm_b64 exec, 60, 0
        buffer_load_dword v254, v5, s[40:43], 0 offen {kw.get('WTF', 'nt')}
        buffer_load_dword v254, v5, s[44:47], 0 offen {kw.get('WTF', 'nt')}
        s_mov_b64 exec, -1''')
    if kw.get('WT', 2) == 1: wtouch()
    HP = kw.get('HP', 0)
    if HP: a('s_load_dwordx2 s[8:9], s[0:1], 48')
    def hpf():
        a(f'''s_mov_b32 s10, {576*9216}
        s_mov_b32 s11, 0x20000
        s_sub_u32 s24, s2, 64
        s_mul_i32 s24, s24, {132*128}
        v_lshl_add_u32 v6, v9, 7, s24
        s_bfm_b64 exec, 44, 0''')
        for i in range(3):
            a.vmem(f'buffer_load_dword v254, v6, s[8:11], 0 offen', 'hp'); a(f'v_add_u32 v6, {44*128}, v6')
        a('s_mov_b64 exec, -1')
    def wdma(lo, hi):
        for i in range(lo, hi):
            for arr in range(2):
                a(f's_mov_b32 m0, {LDS_W+arr*8192+i*1024}\ns_add_u32 s23, s22, {i*8*32*578}')
                a.vmem(f'buffer_load_dwordx4 v4, s[{40+4*arr}:{43+4*arr}], s23 offen {NTW} lds', 'wd')
    ws_srd()
    a(f'''v_and_b32 v18, 3, v9
    v_bfe_u32 v19, v9, 2, 1
    v_lshl_add_u32 v18, v19, 4, v18
    v_bfe_u32 v19, v9, 3, 2
    v_lshl_add_u32 v18, v19, 2, v18
    s_mul_i32 s24, s34, 43
    s_lshr_b32 s24, s24, 7
    s_mul_i32 s24, s24, 3
    s_sub_u32 s23, s34, s24
    s_mul_i32 s23, s23, 96
    v_add_u32 v18, s23, v18
    v_lshrrev_b32 v19, 5, v9
    v_cvt_f32_u32 v17, v19
    v_fma_f32 v17, v17, -0.5, 1.0
    v_lshl_add_u32 v19, v19, 3, 1
    v_cvt_f32_u32 v19, v19
    v_lshlrev_b32 v20, 4, v9
    v_add_u32 v20, {LDS_G}, v20
    s_mov_b32 s27, {FLC}''')
    def clr(n, sreg):
        for i in range(n):
            if i and i % 4 == 0: a(f's_add_u32 s{sreg}, s{sreg}, 4096')
            a.vmem(f'buffer_store_dwordx4 v[12:15], v1, s[12:15], s{sreg} offen offset:{(i%4)*1024} sc1', 'clr')
    TKA = kw.get('TKA', 1); GA = kw.get('GA', 4)
    if HP == 3: hpf()
    if HP == 4: gen_g(2); hpf()
    mark('h0'); gen_g(GA); mark('h1')
    tok_issue()
    wtouch()
    WN = kw.get('WN', 8)
    XH = 32; SH_ = 228
    a(f'v_lshlrev_b32 v28, 4, v9\nv_mov_b32 v29, 0x3f803f80')
    for i in range(8): a(f'v_mov_b32 v{SH_+i}, 0')
    if kw.get('XB', 1): a('s_barrier')
    else: lds_wait(0, 10)
    mark('h2')
    hx = lambda n: a.lds(f'ds_read_b128 {vr(XH+4*n)}, v28 offset:{1024*n}', ('hx', n))
    HXL = kw.get('HXL', 16)
    for n in range(HXL): hx(n)
    mark('h3')
    if HP == 5: hpf()
    for q in range(9):
        WQ = kw.get('WQ', 2)
        if WQ == 0 and q < WN: wdma(q, q+1)
        if WQ == 1 and q >= 5: wdma(2*(q-5), 2*(q-5)+2)
        a.wait(lg=[('hx', 4*q+3)])
        for i in range(4):
            if 4*q+HXL+i < 36: hx(4*q+HXL+i)
            for t in range(4):
                x = XH + 16*q + 4*t + i
                a(f'v_dot2c_f32_bf16 v{SH_+2*t}, v{x}, v29\nv_dot2c_f32_bf16 v{SH_+2*t+1}, v{x}, v{x}')
    a('s_nop 2')
    for perm in ('[1,0,3,2]', '[2,3,0,1]'):
        for i in range(8): a(f'v_add_f32_dpp v{SH_+i}, v{SH_+i}, v{SH_+i} quad_perm:{perm} row_mask:0xf bank_mask:0xf')
    mark('h4')
    a('s_nop 0')
    for i in range(4): a(f'v_permlane32_swap_b32 v{SH_+i}, v{SH_+4+i}')
    a('s_nop 0')
    for i in range(4): a(f'v_add_f32 v{SH_+i}, v{SH_+i}, v{SH_+4+i}')
    for t in range(2):
        a(f'''v_mul_f32 v{SH_+2*t}, {hexf(1.0/576)}, v{SH_+2*t}
        v_mov_b32 v{SH_+4+t}, {hexf(1e-5)}
        v_fmac_f32 v{SH_+4+t}, {hexf(1.0/576)}, v{SH_+2*t+1}
        v_fma_f32 v{SH_+4+t}, -v{SH_+2*t}, v{SH_+2*t}, v{SH_+4+t}
        v_max_f32 v{SH_+4+t}, {hexf(1e-5)}, v{SH_+4+t}
        v_rsq_f32 v{SH_+4+t}, v{SH_+4+t}''')
    a(f'''v_lshrrev_b32 v28, 5, v9
    v_bfe_u32 v29, v9, 2, 3
    v_lshl_add_u32 v30, v28, 4, v29
    v_lshlrev_b32 v30, 2, v30
    v_add_u32 v30, {LDS_ST+128}, v30
    v_bfe_u32 v29, v9, 3, 2
    v_lshl_add_u32 v28, v28, 3, v29
    v_bfe_u32 v29, v9, 2, 1
    v_lshl_add_u32 v28, v29, 4, v28
    v_lshlrev_b32 v28, 2, v28
    v_add_u32 v28, {LDS_ST}, v28
    v_mul_f32 v{SH_+4}, {hexf(2.0**-55)}, v{SH_+4}
    v_mul_f32 v{SH_+5}, {hexf(2.0**-55)}, v{SH_+5}''')
    for t in range(2): a(f'ds_write_b32 v28, v{SH_+4+t} offset:{16*t}\nds_write_b32 v30, v{SH_+2*t} offset:{32*t}')
    lds_arrive(3, 10); mark('hst'); tok_verify(); mark('htk')
    a(f'v_mov_b32 v10, {LDS_ID}\nds_write_b64 v10, {vr(V_TK,2)} offset:8')
    lds_arrive(3, 10); stamp(a, 3, diag)
    if WQ == 2: wdma(0, 8)
    if HP == 6: hpf()
    if kw.get('PAD', 1): a('s_mov_b64 exec, 0\ns_branch L_qad0\nL_qad_end:\ns_mov_b64 exec, -1')
    gen_g(kw.get('GC', 2))
    a.wait(vm='wd'); lds_arrive(2, 10); stamp(a, 7, diag)
    gen_g(kw.get('GD', 0))
    chk_issue(27, 240, 'cc')
    gen_g(2)
    chk_verify(27, 240, 'cc', None, kw.get('HS', 8))
    lds_arrive(2, 10); stamp(a, 4, diag)
    if TKA:
        a(f'''s_waitcnt lgkmcnt(0)
        s_getreg_b32 s30, hwreg(HW_REG_XCC_ID)
        s_and_b32 s30, s30, 7
        s_lshl_b32 s29, s30, 7
        s_add_u32 s29, s29, {TKC}
        s_mov_b32 s35, 1
        s_atomic_add s35, s[12:13], s29 glc''')
    gen_g(2)
    if TKA:
        a(f'''s_waitcnt lgkmcnt(0)
        s_mov_b32 s28, 7
        s_branch L_tkc
        L_tkl:
        s_add_u32 s30, s30, 1
        s_and_b32 s30, s30, 7
        s_lshl_b32 s29, s30, 7
        s_add_u32 s29, s29, {TKC}
        s_mov_b32 s35, 1
        s_atomic_add s35, s[12:13], s29 glc
        s_waitcnt lgkmcnt(0)
        L_tkc:
        s_cmp_lt_u32 s35, 24
        s_cbranch_scc1 L_tkx
        s_sub_u32 s28, s28, 1
        s_cbranch_scc0 L_tkl
        s_mov_b32 s35, s34
        s_mov_b32 s30, s33
        L_tkx:
        s_add_u32 s35, s35, 8
        s_lshl_b32 s35, s35, 3
        s_add_u32 s35, s35, s30''')
    else: a('s_mov_b32 s35, s2')
    a(f'v_mov_b32 v10, {LDS_ID}\nv_mov_b32 v11, s35\nds_write_b32 v10, v11')
    gen_g(18); lds_arrive(2, 10); stamp(a, 6, diag)
    a('s_branch L_ffn')
    a.vm = []; a.lg = []
    npure = len(a.L)
    a(f'''L_pure:
    s_add_u32 s23, s2, s16
    s_cmp_lg_u32 s23, 0
    s_cbranch_scc1 L_notok
    s_memrealtime s[40:41]
    v_lshlrev_b32 v2, 7, v9
    v_add_u32 v2, {TKC}, v2
    v_mov_b32 v3, 0
    s_waitcnt lgkmcnt(0)
    s_or_b32 s40, s40, 1
    v_mov_b32 v4, s40
    v_mov_b32 v5, s41
    s_mov_b64 exec, 1
    global_store_dwordx2 v3, v[4:5], s[36:37] sc1
    s_mov_b64 exec, 0xffff
    global_store_dword v2, v3, s[38:39] sc1
    s_mov_b64 exec, -1
    L_notok:
    s_mov_b32 s58, 0
    v_bfrev_b32 v255, 1''')
    ws_srd()
    a(f'''s_lshl_b32 s17, s2, 2
    s_add_u32 s17, s17, s16
    v_lshlrev_b32 v1, 4, v9
    v_mov_b32 v12, -1
    v_mov_b32 v13, -1
    v_mov_b32 v14, -1
    v_mov_b32 v15, -1
    s_lshl_b32 s27, s2, 6
    s_add_u32 s27, s27, {FLC}
    s_cmp_eq_u32 s16, 0
    s_cselect_b32 s23, 0, 0x80000000
    v_or_b32 v5, s23, v{V_F0}''')
    def wgflag(off, n=0):
        a(f's_waitcnt vmcnt({n})\ns_barrier\ns_add_u32 s23, s27, {off}'); flag_store(23, None, 5)
    if kw.get('WPF', 0):
        srd(a, 40, 48, 2048*578); srd(a, 44, 50, 2048*578)
        a(f's_mul_i32 s23, s17, 4736\nv_lshl_add_u32 v2, v9, 7, s23\ns_bfm_b64 exec, 37, 0')
        for arr in range(2): a(f'buffer_load_dword v254, v2, s[{40+4*arr}:{43+4*arr}], 0 offen')
        a('s_mov_b64 exec, -1')
    a(f's_mul_i32 s26, s17, 9216\ns_add_u32 s25, s26, {WS_T}')
    assert WS_HC == WS_T + NB
    if kw.get('CD', 1): tok_issue(); tok_verify()
    clr(9, 25)
    if not kw.get('CD', 1): tok_issue(); tok_verify()
    a(f's_add_u32 s25, s26, {WS_HC}')
    clr(9, 25)
    wgflag(0); stamp(a, 5, diag)
    PF0 = 0
    a(f'''v_add_u32 v11, 32768, v11
    buffer_load_dword v254, v11, s[44:47], 0 offen
    v_add_u32 v11, 32768, v11
    buffer_load_dword v254, v11, s[44:47], 0 offen''')
    PFE = kw.get('PFE', 1)
    def fin2(n):
        if TKA:
            a('s_cmp_lg_u32 s16, 3\ns_cbranch_scc1 L_ntk')
            a(f's_mov_b32 s23, {FLC}\ns_mov_b64 s[20:21], 1'); chk_issue(23, V_CK, 'c0', 20); chk_verify(23, V_CK, 'c0', 20, 8)
            ticket(8, 1024, 0)
            a('L_ntk:')
    if not PFE: fin2(0)
    if PF:
        PFS = kw.get('PFS', 128); PFF = kw.get('PFF', '')
        a(f'''s_load_dwordx4 s[4:7], s[0:1], 32
        s_load_dwordx2 s[8:9], s[0:1], 48
        s_mul_i32 s23, s17, 20736
        v_mul_u32_u24 v2, {PFS}, v9
        v_add_u32 v2, s23, v2
        s_waitcnt lgkmcnt(0)''')
        srd(a, 40, 4, 576*9216); srd(a, 44, 6, 576*9216); srd(a, 48, 8, 576*9216)
        nl = 20736//PFS
        for r in range(kw.get('PFM', 2)):
            for i in range(64*PF0 if r == 1 else 0, nl, 64):
                a(f'v_add_u32 v3, {PFS*i}, v2')
                if nl - i < 64: a(f's_bfm_b64 exec, {nl-i}, 0')
                if kw.get('NOPF'): a('v_bfrev_b32 v3, 1')
                a(f'buffer_load_dword v254, v3, s[{40+4*r}:{43+4*r}], 0 offen {PFF}')
                if nl - i < 64: a('s_mov_b64 exec, -1')
                if PFE and r == 0 and i == 64: fin2(3)
                if kw.get('PFW1'): a(f's_waitcnt vmcnt({kw["PFW1"]-1})')
    stamp(a, 6, diag)
    if TKA: a('s_barrier'); get_id(2)
    else: a('s_mov_b32 s35, s2')
    stamp(a, 7, diag); mark('pend')
    a('s_branch L_ffn')
    pl = a.L[npure:]; del a.L[npure:]
    k = a.L.index('@@PURE@@'); a.L[k:k+1] = pl

    a.vm = ['pre']; a.lg = []
    from ffn import emit_ffn
    if P128:
        from ffn2 import emit_ffn2 as emit_ffn
        if P128 == 3:
            from ffn3 import emit_ffn3 as emit_ffn
        if P128 == 4:
            from ffn4 import emit_ffn4 as emit_ffn
    nv = emit_ffn(a, dict(kw, mark=mark, sentinel=sentinel, maxchain=maxchain, lds_wait=lds_wait, diag=diag, G2S=G2S, FE=FE, PRE=PRE, R=R, FPX=FPX, UP=UP, RATE0=RATE0, WSC=WSC, chk_issue=chk_issue, chk_verify=chk_verify,
                          flag_store=flag_store, V_L8=V_L8, V_F0=V_F0, V_TK=V_TK, V_CK=V_CK, stamp=stamp, rstamp=rstamp, Ops=Ops))
    if diag:
        vt = 24
        a.waitall()
        stamp(a, 14, True)
        a('s_memrealtime s[94:95]\ns_waitcnt lgkmcnt(0)')
        for i in range(1, 15):
            if kw.get('RT') and i in (2, 4): a(f'v_mov_b32 v{vt+i}, s{60+2*i}'); continue
            a(f's_cmp_eq_u32 s{60+2*i}, 0\ns_cselect_b32 s23, 0, s60\ns_sub_u32 s{60+2*i}, s{60+2*i}, s23\nv_mov_b32 v{vt+i}, s{60+2*i}')
        a(f'v_mov_b32 v{vt}, s92\nv_mov_b32 v{vt+15}, s94')
        a(f'''s_lshl_b32 s23, s2, 2
        s_add_u32 s23, s23, s16
        s_lshl_b32 s23, s23, 6
        s_add_u32 s23, s23, {WS_DBG}
        v_mov_b32 v{vt+16}, 0
        s_mov_b64 exec, 1''')
        for i in range(4): a(f'buffer_store_dwordx4 {vr(vt+4*i)}, v{vt+16}, s[12:15], s23 offen offset:{16*i}')
    if PROBE:
        a('s_waitcnt vmcnt(0)'); mark('end')
        if PROBE == 'tok': a(f's_mov_b32 s62, s{TOK}')
        a('''s_waitcnt lgkmcnt(0)
        s_cmp_eq_u32 s62, 0
        s_cselect_b32 s62, s60, s62
        s_add_u32 s62, s62, 8000
        L_probe:
        s_memrealtime s[64:65]
        s_waitcnt lgkmcnt(0)
        s_sub_u32 s64, s64, s62
        s_cmp_lt_i32 s64, 0
        s_cbranch_scc1 L_probe''')
    a('L_end:\ns_endpgm')
    a.L.extend(cold)
    a('L_codeend:')
    hdr = HEADER + f'; @launch grid=(256,1,1) block=(256,1,1) lds={LDS_TOTAL}\n.amdgcn_target "amdgcn-amd-amdhsa--gfx950"\n.text\n'
    tail = '.section .rodata,"a"\n' + kernel_desc(name, 256, 256, 102)
    if kw.get('PAD', 1): add_pads(a, hdr, tail, kw.get('PADN', 1))
    return hdr + a.text() + tail

def add_pads(a, hdr, tail, per):
    import subprocess, re, os
    tmp = '_pad_%d' % os.getpid()
    open(tmp + '.s', 'w').write(hdr + a.text() + 'L_pad0:\nL_qad0:\n' + tail)
    subprocess.run(['clang', '-x', 'assembler', '-target', 'amdgcn-amd-amdhsa', '-mcpu=gfx950', '-c', tmp + '.s', '-o', tmp + '.o'], check=True)
    dis = subprocess.run(['llvm-objdump', '-d', '--mcpu=gfx950', tmp + '.o'], capture_output=True, text=True).stdout
    dis = dis[dis.index('<L_p1>:'):]
    sizes = [4*len(m.group(1).split()) for m in re.finditer(r'// [0-9A-F]{12}: ([0-9A-F ]+)', dis)]
    i0 = a.L.index('L_p1:')
    out = a.L[:i0+1]; addr = 0; k = 0
    n = {'q': 0, 'p': 0}
    targets = sorted(p*4096 + q*64 for p in range(1, 24) for q in range(per))
    ch = 'q'
    for line in a.L[i0+1:]:
        if line == 'L_help:':
            out += [f'L_qad{n["q"]}:', '  s_branch L_qad_end']; addr += 4; ch = None
        if line == 'L_pad_end:': ch = 'p'
        if line.endswith(':'): out.append(line); continue
        while addr >= targets[0]:
            targets.pop(0)
            if ch and not out[-1].strip().startswith(('s_mov_b64 exec', 's_bfm_b64 exec', 's_add_u32 m0', 's_cmp', 's_sub_u32 s59')):
                out += [f'L_{ch}ad{n[ch]}:', f'  s_cbranch_execz L_{ch}ad{n[ch]+1}']; n[ch] += 1; addr += 4
            elif ch:
                targets.insert(0, addr + 1); break
        out.append(line); addr += sizes[k]; k += 1
    j = out.index('L_codeend:')
    out[j:j] = [f'L_pad{n["p"]}:', '  s_branch L_pad_end']
    a.L = out

if __name__ == '__main__':
    import sys
    out = sys.argv[1] if len(sys.argv) > 1 else 'sequential_preLN__spectral_gfnet__geglu_ffn__prompt.s'
    open(out, 'w').write(gen_mega())
```
